```python
import torch

def _softmax(x, axis=-1):
    return torch.softmax(x, dim=axis)
def _gelu(x):
    return torch.nn.functional.gelu(x, approximate="tanh")
def _silu(x):
    return torch.nn.functional.silu(x)
def _sigmoid(x):
    return torch.sigmoid(x)
def _layernorm(x, axis=-1, eps=1e-5):
    m = x.mean(dim=axis, keepdim=True)
    v = x.var(dim=axis, keepdim=True, unbiased=False)
    return (x - m) / torch.sqrt(v + eps)
def _scatter_add(tgt, idx, src, axis=0):
    return tgt.clone().index_add_(axis, idx, src)
def _segment_sum(src, seg, n):
    out = torch.zeros((n,) + src.shape[1:], dtype=src.dtype)
    return out.index_add_(0, seg, src)
def _pad(x, pw):
    flat = tuple(v for pair in reversed(pw) for v in pair)
    return torch.nn.functional.pad(x, flat)

kernel_name = 'standalone__mha_softmax__near_ridge'

def setup_inputs():

    _w = (lambda a: (lambda t: t.to(torch.bfloat16) if t.is_floating_point() else t)(torch.as_tensor(a)))
    B, H, Sq, Sk, D = 8, 32, 384, 2048, 128
    return {
        "q": _w((lambda *s: torch.randn(*s, dtype=torch.bfloat16) * 0.8)(B, H, Sq, D)),
        "k": _w((lambda *s: torch.randn(*s, dtype=torch.bfloat16) * 0.8)(B, H, Sk, D)),
        "v": _w((lambda *s: torch.randn(*s, dtype=torch.bfloat16) * 0.05)(B, H, Sk, D)),
    }

def reference(q, k, v):
    scale = q.shape[-1] ** -0.5
    scores = torch.einsum("bhqd,bhkd->bhqk", q, k) * scale
    p = _softmax(scores, axis=-1)
    return torch.einsum("bhqk,bhkd->bhqd", p, v)
```

```python
import sys

KN = "standalone__mha_softmax__near_ridge_kernel"
M16 = "v_mfma_f32_16x16x32_bf16"

NT = 64
RING = 8
BLK = 1056
SLOT = 8 * BLK
VBASE = RING * SLOT
LDS_BYTES = 2 * RING * SLOT

def O(t, dt): return 32 * t + 4 * dt
SB = [192, 200]
PB = [208, 212]
L0 = 216
V_KADDR, V_VADDR, V_OFFA, V_OFFB = 222, 223, 224, 225
V_LANE, V_OST, V_T0, V_T1, V_T2, V_T3 = 226, 227, 228, 229, 230, 231
NEGM = 232
def AQ(t, ks): return 16 * t + 4 * ks
def AK(p, kt, ks): return 96 + 32 * p + 16 * kt + 4 * ks
def AV(p, dt): return 160 + 32 * p + 4 * dt

S_QSRD, S_KSRD, S_VSRD, S_OSRD = 4, 8, 12, 16
S_W, S_WOFF, S_TOFF, S_CNT, S_T0, S_T1, S_T2, S_T3 = 20, 21, 22, 23, 24, 25, 26, 27
S_WS = 28
S_STAMP = 40

def v(a, n=1): return f"v{a}" if n == 1 else f"v[{a}:{a+n-1}]"
def a(x, n=1): return f"a{x}" if n == 1 else f"a[{x}:{x+n-1}]"
def s(x, n=1): return f"s{x}" if n == 1 else f"s[{x}:{x+n-1}]"

class Gen:
    def __init__(self, opt):
        self.o = []
        self.opt = opt
        self.nstamp = 0
    def e(self, line): self.o.append("    " + line)
    def lab(self, name): self.o.append(name + ":")
    def c(self, txt): self.o.append("    ; " + txt)

    def stamp(self, idx):
        if self.opt.get("stamp"):
            self.e(f"s_memtime {s(S_STAMP + 2 * idx, 2)}")

    def dma(self, tile_slot, which, kv):
        srd = S_KSRD if kv == 'K' else S_VSRD
        if which == 0:
            return f"buffer_load_dwordx4 {v(V_OFFA)}, {s(srd,4)}, {s(S_TOFF)} offen{self.opt.get('ldfl', ' nt')} lds"
        return f"buffer_load_dwordx4 {v(V_OFFB)}, {s(srd,4)}, {s(S_TOFF)} offen offset:{BLK}{self.opt.get('ldfl', ' nt')} lds"
    def m0set(self, slot, kv):
        base = (0 if kv == 'K' else VBASE) + slot * SLOT
        return f"s_add_u32 m0, {s(S_WOFF)}, {base}"
    def kread(self, p, slot, kt, ks):
        return f"ds_read_b128 {a(AK(p, kt, ks), 4)}, {v(V_KADDR)} offset:{slot * SLOT + kt * 4 * BLK + 256 * ks}"
    def vread(self, p, slot, dt, hh):
        return f"ds_read_b64_tr_b16 {a(AV(p, dt) + 2 * hh, 2)}, {v(V_VADDR)} offset:{slot * SLOT + hh * 4 * BLK + 256 * (dt >> 1) + 32 * (dt & 1)}"
    def qk(self, p, t, kt, ks, cinit="0"):
        d = v(SB[t & 1] + 4 * kt, 4)
        return f"{M16} {d}, {a(AK(p, kt, ks), 4)}, {a(AQ(t, ks), 4)}, {cinit if ks == 0 else d}"
    def pv(self, p, t, dt):
        d = v(O(t, dt), 4)
        return f"{M16} {d}, {a(AV(p, dt), 4)}, {v(PB[t & 1], 4)}, {d}"

    def period(self, j, t, lds, shadow, do_qk=True, do_pv=True, do_sm=True):
        jq, tq = (j, t + 1) if t < 5 else (j + 1, 0)
        jp, tp = (j, t - 1) if t > 0 else (j - 1, 5)
        mf = []
        for ks in range(4): mf.append(self.qk(jq & 1, tq, 0, ks) if do_qk else None)
        for dt in range(4): mf.append(self.pv(jp & 1, tp, dt) if do_pv else None)
        for ks in range(4): mf.append(self.qk(jq & 1, tq, 1, ks) if do_qk else None)
        for dt in range(4, 8): mf.append(self.pv(jp & 1, tp, dt) if do_pv else None)
        S = SB[t & 1]; P = PB[t & 1]; L = L0 + t
        ex = lambda i: f"v_exp_f32 {v(S+i)}, {v(S+i)}"
        ad = lambda i: f"v_add_f32 {v(L)}, {v(L)}, {v(S+i)}"
        cv = lambda i: f"v_cvt_pk_bf16_f32 {v(P+i)}, {v(S+2*i)}, {v(S+2*i+1)}"
        lds = list(lds) + [None] * (4 - len(lds))
        fill = {0: [ex(0)], 1: [ex(1)], 2: [lds[0], ad(0)], 3: [ex(2)], 4: [ad(1), cv(0)], 5: [ex(3)],
                6: [lds[1], ad(2)], 7: [ex(4)], 8: [ad(3), cv(1)], 9: [ex(5)], 10: [lds[2], ad(4)],
                11: [ex(6)], 12: [ad(5), cv(2)], 13: [ex(7)], 14: [lds[3], ad(6)], 15: [ad(7), cv(3)]}
        ldsset = set(x for x in lds if x)
        for g in range(16):
            if mf[g]: self.e(mf[g])
            for x in shadow.get(g, []): self.e(x)
            for x in fill[g]:
                if x is None: continue
                if not do_sm and x not in ldsset: continue
                self.e(x)

    def iteration(self, j, dma_tile, vm_wait, barrier=True, last=False):
        self.c(f"---- iteration j%8={j % 8}")
        p1 = (j + 1) & 1
        s1 = (j + 1) % RING
        reads = []
        rd = not last
        K = [self.kread(p1, s1, kt, ks) for kt in range(2) for ks in range(4)]
        V = [self.vread(p1, s1, dt, hh) for dt in range(8) for hh in range(2)]
        sched = [K[0:4], [K[4]] + V[0:3], [K[5]] + V[3:6], [K[6]] + V[6:9], [K[7]] + V[9:12], V[12:16]]
        if last: sched = [[]] * 6
        for t in range(6):
            sh = {}
            if t == 0:
                pre = []
                if vm_wait is not None: pre.append(f"s_waitcnt vmcnt({vm_wait})")
                if barrier: pre.append("s_barrier")
                sh[0] = pre
            if t == 1:
                n_after = len(sched[0])
                sh[0] = [f"s_waitcnt lgkmcnt({n_after})"]
            if t == 5 and not last:
                sh.setdefault(0, [])
                sh[0] = ["s_waitcnt lgkmcnt(3)"]
            if dma_tile is not None:
                sl = dma_tile % RING
                pos = self.opt.get("dmapos", {1: [(1, 'mK'), (3, 'K0')], 2: [(3, 'K1'), (5, 'mV')], 3: [(3, 'V0')], 4: [(3, 'V1'), (5, 'inc')]})
                for (g, what) in pos.get(t, []):
                    ins = {'mK': self.m0set(sl, 'K'), 'mV': self.m0set(sl, 'V'), 'K0': self.dma(sl, 0, 'K'), 'K1': self.dma(sl, 1, 'K'),
                           'V0': self.dma(sl, 0, 'V'), 'V1': self.dma(sl, 1, 'V'), 'inc': f"s_add_u32 {s(S_TOFF)}, {s(S_TOFF)}, 8192"}[what]
                    sh.setdefault(g, []).append(ins)
            do_qk = not (last and t == 5)
            self.period(j, t, sched[t], sh, do_qk=do_qk)

    def build(self):
        opt = self.opt
        e = self.e
        self.o.append(f"""; MHA forward, B=8 H=32 Sq=384 Sk=2048 D=128, bf16.  One workgroup (4 waves x 96 query rows) per head.
; @launch grid=(256,1,1) block=(256,1,1) lds={LDS_BYTES}
.amdgcn_target "amdgcn-amd-amdhsa--gfx950"
.text
.globl {KN}
.p2align 8
.type {KN},@function
{KN}:""")
        e("s_cmp_ge_u32 s2, 256")
        e("s_cbranch_scc1 L_end")
        self.stamp(0)
        e("s_load_dwordx4 s[32:35], s[0:1], 0")
        e("s_load_dwordx4 s[36:39], s[0:1], 16")
        if opt.get("stamp"):
            e(f"s_load_dwordx2 {s(S_WS,2)}, s[0:1], 40")
            e("s_memrealtime s[70:71]")
        e(f"v_and_b32 {v(V_LANE)}, 63, v0")
        e(f"v_lshrrev_b32 {v(V_T0)}, 6, v0")
        e("s_nop 0")
        e(f"v_readfirstlane_b32 {s(S_W)}, {v(V_T0)}")
        e(f"v_lshrrev_b32 {v(V_T0)}, 4, {v(V_LANE)}")
        e(f"v_and_b32 {v(V_T1)}, 15, {v(V_LANE)}")
        e(f"v_lshrrev_b32 {v(V_T2)}, 2, {v(V_T1)}")
        e(f"v_and_b32 {v(V_T3)}, 3, {v(V_LANE)}")
        e(f"v_mul_u32_u24 {v(V_KADDR)}, {BLK}, {v(V_T2)}")
        e(f"v_lshl_add_u32 {v(V_KADDR)}, {v(V_T3)}, 6, {v(V_KADDR)}")
        e(f"v_lshl_add_u32 {v(V_KADDR)}, {v(V_T0)}, 4, {v(V_KADDR)}")
        e(f"v_mul_u32_u24 {v(V_VADDR)}, {BLK}, {v(V_T0)}")
        e(f"v_lshl_add_u32 {v(V_VADDR)}, {v(V_T2)}, 6, {v(V_VADDR)}")
        e(f"v_lshl_add_u32 {v(V_VADDR)}, {v(V_T3)}, 3, {v(V_VADDR)}")
        e(f"v_add_u32 {v(V_VADDR)}, {VBASE}, {v(V_VADDR)}")
        e(f"v_lshlrev_b32 {v(V_OFFB)}, 8, {v(V_T2)}")
        e(f"v_lshl_add_u32 {v(V_OFFB)}, {v(V_T0)}, 6, {v(V_OFFB)}")
        e(f"v_lshl_add_u32 {v(V_OFFB)}, {v(V_T3)}, 4, {v(V_OFFB)}")
        e(f"s_lshl_b32 {s(S_T0)}, {s(S_W)}, 11")
        e(f"s_mul_i32 {s(S_WOFF)}, {s(S_W)}, {2 * BLK}")
        e(f"v_add_u32 {v(V_OFFB)}, {s(S_T0)}, {v(V_OFFB)}")
        e(f"v_add_u32 {v(V_OFFA)}, 32, {v(V_OFFB)}")
        e(f"s_mul_i32 {s(S_T0)}, {s(S_W)}, {96 * 256}")
        e(f"v_lshlrev_b32 {v(V_OST)}, 8, {v(V_T1)}")
        e(f"v_add_u32 {v(V_OST)}, {s(S_T0)}, {v(V_OST)}")
        e(f"v_lshl_add_u32 {v(V_T2)}, {v(V_T0)}, 4, {v(V_OST)}")
        e(f"v_and_b32 {v(V_T1)}, 1, {v(V_T0)}")
        e(f"v_lshl_add_u32 {v(V_OST)}, {v(V_T1)}, 5, {v(V_OST)}")
        e(f"v_lshrrev_b32 {v(V_T1)}, 1, {v(V_T0)}")
        e(f"v_lshl_add_u32 {v(V_OST)}, {v(V_T1)}, 4, {v(V_OST)}")
        e(f"s_mul_i32 {s(S_T0)}, s2, 98304")
        e(f"s_lshl_b32 {s(S_T1)}, s2, 19")
        e("s_waitcnt lgkmcnt(0)")
        e(f"s_add_u32 {s(S_QSRD)}, s32, {s(S_T0)}")
        e(f"s_addc_u32 {s(S_QSRD+1)}, s33, 0")
        e(f"s_mov_b32 {s(S_QSRD+2)}, 98304")
        e(f"s_mov_b32 {s(S_QSRD+3)}, 0x20000")
        e(f"s_add_u32 {s(S_OSRD)}, s38, {s(S_T0)}")
        e(f"s_addc_u32 {s(S_OSRD+1)}, s39, 0")
        e(f"s_mov_b32 {s(S_OSRD+2)}, 98304")
        e(f"s_mov_b32 {s(S_OSRD+3)}, 0x20000")
        for srd, lo in ((S_KSRD, 34), (S_VSRD, 36)):
            e(f"s_add_u32 {s(srd)}, s{lo}, {s(S_T1)}")
            e(f"s_addc_u32 {s(srd+1)}, s{lo+1}, 0")
            e(f"s_sub_u32 {s(srd)}, {s(srd)}, 32")
            e(f"s_subb_u32 {s(srd+1)}, {s(srd+1)}, 0")
            e(f"s_mov_b32 {s(srd+2)}, {524288 + 32}")
            e(f"s_mov_b32 {s(srd+3)}, 0x20000")
        vm = []
        def dma_half(tile, kv):
            e(f"s_mov_b32 {s(S_TOFF)}, {tile * 8192}")
            e(self.m0set(tile % RING, kv))
            e("s_nop 0")
            e(self.dma(0, 0, kv)); e(self.dma(0, 1, kv))
            vm.extend([f"{kv}{tile}"] * 2)
        def qload(t):
            e(f"s_mov_b32 {s(S_T0)}, {t * 4096}")
            for ks in range(4):
                e(f"buffer_load_dwordx4 {v(O(t, 0) + 4 * ks, 4)}, {v(V_T2)}, {s(S_QSRD,4)}, {s(S_T0)} offen offset:{64 * ks}{self.opt.get('qfl', ' nt')}")
                vm.append(f"Q{t}")
        dma_half(0, 'K')
        for t in range(6): qload(t)
        dma_half(0, 'V')
        for tile in range(1, 7):
            dma_half(tile, 'K'); dma_half(tile, 'V')
        e(f"s_mov_b32 {s(S_TOFF)}, {7 * 8192}")
        def wait_for(lbl):
            last = max(i for i, x in enumerate(vm) if x == lbl)
            e(f"s_waitcnt vmcnt({len(vm) - 1 - last})")
        self.stamp(1)
        for i in range(6): e(f"v_mov_b32 {v(L0+i)}, 0")
        for i in range(4): e(f"v_mov_b32 {v(PB[1]+i)}, 0")
        for i in range(32): e(f"v_accvgpr_write_b32 {a(AV(1,0)+i)}, 0")
        e(f"s_mov_b32 {s(S_T1)}, 0x3e0293ee")
        e(f"v_mov_b32 {v(V_T0)}, {s(S_T1)}")
        e(f"v_mov_b32 {v(V_T1)}, {s(S_T1)}")
        e(f"s_mov_b32 {s(S_T2)}, 0xffff0000")
        for t in range(6):
            wait_for(f"Q{t}")
            for i in range(16):
                x = O(t, 0) + i
                lo, hi = SB[0] + 2 * (i % 4), SB[0] + 2 * (i % 4) + 1
                e(f"v_lshlrev_b32 {v(lo)}, 16, {v(x)}")
                e(f"v_and_b32 {v(hi)}, {s(S_T2)}, {v(x)}")
                e(f"v_pk_mul_f32 {v(lo,2)}, {v(lo,2)}, {v(V_T0,2) if V_T0 % 2 == 0 else 'ERR'}")
                e(f"v_cvt_pk_bf16_f32 {v(x)}, {v(lo)}, {v(hi)}")
                e(f"v_accvgpr_write_b32 {a(AQ(t,0)+i)}, {v(x)}")
            for i in range(32): e(f"v_mov_b32 {v(O(t,0)+i)}, 0")
        self.stamp(2)
        wait_for("V0")
        e("s_barrier")
        for kt in range(2):
            for ks in range(4): e(self.kread(0, 0, kt, ks))
        for dt in range(8):
            for hh in range(2): e(self.vread(0, 0, dt, hh))
        e("s_waitcnt lgkmcnt(0)")
        for kt in range(2):
            for ks in range(4): e(self.qk(0, 0, kt, ks))
        e("s_nop 7")
        self.stamp(3)
        e(f"s_mov_b32 {s(S_CNT)}, 7")
        e(".p2align 6")
        self.lab("L_loop")
        for j in range(8):
            self.iteration(j, j + 7, 20)
        e(f"s_sub_u32 {s(S_CNT)}, {s(S_CNT)}, 1")
        e(f"s_cmp_lg_u32 {s(S_CNT)}, 0")
        e("s_cbranch_scc1 L_loop")
        self.stamp(4)
        for j in range(56, 64):
            issued = min(63, j + 6)
            w = max(0, issued - (j + 1)) * 4 if j + 1 <= 63 else None
            self.iteration(j, j + 7 if j + 7 <= 63 else None, w, barrier=(j < 63), last=(j == 63))
        e("s_nop 1")
        for dt in range(8): e(self.pv(63 & 1, 5, dt))
        self.stamp(5)
        for t in range(6):
            L = L0 + t
            e(f"v_mov_b32 {v(V_T0)}, {v(L)}")
            e("s_nop 1")
            e(f"v_permlane32_swap_b32 {v(L)}, {v(V_T0)}")
            e("s_nop 1")
            e(f"v_add_f32 {v(L)}, {v(L)}, {v(V_T0)}")
            e(f"v_mov_b32 {v(V_T0)}, {v(L)}")
            e("s_nop 1")
            e(f"v_permlane16_swap_b32 {v(L)}, {v(V_T0)}")
            e("s_nop 1")
            e(f"v_add_f32 {v(L)}, {v(L)}, {v(V_T0)}")
            e(f"v_rcp_f32 {v(L)}, {v(L)}")
        e("s_nop 7")
        TMP = SB[0]
        for t in range(6):
            L = L0 + t
            e(f"s_mov_b32 {s(S_T0)}, {t * 4096}")
            for pr in range(4):
                st = TMP + 4 * pr
                for h in range(2):
                    o = O(t, 2 * pr + h)
                    for r in range(4): e(f"v_mul_f32 {v(o+r)}, {v(o+r)}, {v(L)}")
                    e(f"v_cvt_pk_bf16_f32 {v(st + 2*h)}, {v(o)}, {v(o+1)}")
                    e(f"v_cvt_pk_bf16_f32 {v(st + 2*h + 1)}, {v(o+2)}, {v(o+3)}")
                e("s_nop 1")
                e(f"v_permlane16_swap_b32 {v(st)}, {v(st+2)}")
                e(f"v_permlane16_swap_b32 {v(st+1)}, {v(st+3)}")
                e("s_nop 0")
                e(f"buffer_store_dwordx4 {v(st,4)}, {v(V_OST)}, {s(S_OSRD,4)}, {s(S_T0)} offen offset:{64 * pr}{self.opt.get('stfl', '')}")
        self.stamp(6)
        if opt.get("stamp"):
            e("s_waitcnt vmcnt(0)")
            self.stamp(7)
            e("s_memrealtime s[72:73]")
            e("s_waitcnt lgkmcnt(0)")
            e(f"s_mov_b32 {s(S_WS+2)}, 0x20000000")
            e(f"s_mov_b32 {s(S_WS+3)}, 0x20000")
            e(f"v_mov_b32 {v(V_T0)}, 0")
            for i in range(8):
                e(f"v_writelane_b32 {v(V_T0)}, {s(S_STAMP + 2*i)}, {i}")
            e(f"v_writelane_b32 {v(V_T0)}, s70, 8")
            e(f"v_writelane_b32 {v(V_T0)}, s72, 9")
            e(f"s_lshl_b32 {s(S_T0)}, s2, 2")
            e(f"s_add_u32 {s(S_T0)}, {s(S_T0)}, {s(S_W)}")
            e(f"s_lshl_b32 {s(S_T0)}, {s(S_T0)}, 8")
            e(f"v_lshlrev_b32 {v(V_T1)}, 2, {v(V_LANE)}")
            e(f"buffer_store_dword {v(V_T0)}, {v(V_T1)}, {s(S_WS,4)}, {s(S_T0)} offen")
        self.lab("L_end")
        e("s_endpgm")
        self.o.append(f""".section .rodata,"a"
.p2align 6
.amdhsa_kernel {KN}
  .amdhsa_next_free_vgpr 512
  .amdhsa_next_free_sgpr 102
  .amdhsa_accum_offset 256
  .amdhsa_group_segment_fixed_size 0
  .amdhsa_kernarg_size 48
  .amdhsa_user_sgpr_count 2
  .amdhsa_user_sgpr_kernarg_segment_ptr 1
  .amdhsa_system_sgpr_workgroup_id_x 1
.end_amdhsa_kernel""")
        return "\n".join(self.o) + "\n"

if __name__ == "__main__":
    opt = {}
    out = sys.argv[1]
    for x in sys.argv[2:]:
        k, _, val = x.partition("=")
        opt[k] = eval(val) if val else True
    open(out, "w").write(Gen(opt).build())
```

```python
import sys

KN = "standalone__mha_softmax__near_ridge_kernel"
M16 = "v_mfma_f32_16x16x32_bf16"
NT = 64
BLK = 1056
QRT = 4 * BLK
SLOT = 4 * QRT
R = 4
STG = 16 * 272
QBUF = 4 * BLK
PRIV = 3 * QBUF

def O(t, dt): return 32 * t + 4 * dt
SB = [192, 200]
PB = [208, 212]
L0 = 216
V_KADDR, V_VADDR, V_OFFA, V_OFFB = 222, 223, 224, 225
V_LANE, V_OST, V_T0, V_T1, V_T2, V_T3 = 226, 227, 228, 229, 230, 231
NEGM = 232
def AQ(t, ks): return 16 * t + 4 * ks
def AK(p, kt, ks): return 96 + 32 * p + 16 * kt + 4 * ks
def AV(p, dt): return 160 + 32 * p + 4 * dt

S_QSRD, S_KSRD, S_VSRD, S_OSRD = 4, 8, 12, 16
S_W, S_WOFF, S_TOFF, S_CNT, S_T0, S_T1, S_T2, S_T3 = 20, 21, 22, 23, 24, 25, 26, 27
S_WS = 28
S_PRIV = 88
S_RST = 40
S_CST = 72

def v(a, n=1): return f"v{a}" if n == 1 else f"v[{a}:{a+n-1}]"
def a(x, n=1): return f"a{x}" if n == 1 else f"a[{x}:{x+n-1}]"
def s(x, n=1): return f"s{x}" if n == 1 else f"s[{x}:{x+n-1}]"

class Gen:
    def __init__(self, opt):
        self.o = []
        self.opt = opt
        self.LDS = R * SLOT + 4 * PRIV
        self.ldfl = opt.get("ldfl", " nt")
        self.qfl = opt.get("qfl", " nt")
        self.stfl = opt.get("stfl", "")
        self.inloop = False
        self.D = 3
    def e(self, line): self.o.append("    " + line)
    def lab(self, name): self.o.append(name + ":")
    def c(self, txt): self.o.append("    ; " + txt)
    def stamp(self, idx, cyc=None):
        if self.opt.get("stamp"):
            self.e(f"s_memrealtime {s(S_RST + 2 * idx, 2)}")
            if cyc is not None: self.e(f"s_memtime {s(S_CST + 2 * cyc, 2)}")

    def dma(self, i, va=V_OFFA, vb=V_OFFB):
        srd = S_KSRD if i < 2 else S_VSRD
        off = f" offset:{i * BLK}" if i else ""
        return f"buffer_load_dwordx4 {v(va if i % 2 == 0 else vb)}, {s(srd,4)}, {s(S_TOFF)} offen{off}{self.ldfl} lds"
    def m0set(self, slot): return f"s_add_u32 m0, {s(S_WOFF)}, {slot * SLOT}"
    def kread(self, p, slot, kt, ks, addr=V_KADDR):
        return f"ds_read_b128 {a(AK(p, kt, ks), 4)}, {v(addr)} offset:{slot * SLOT + kt * 2 * QRT + 256 * ks}"
    def vread(self, p, slot, dt, hh, addr=V_VADDR):
        return f"ds_read_b64_tr_b16 {a(AV(p, dt) + 2 * hh, 2)}, {v(addr)} offset:{slot * SLOT + hh * 2 * QRT + 256 * (dt >> 1) + 32 * (dt & 1)}"
    def qk(self, p, t, kt, ks, cinit="0"):
        d = v(SB[t & 1] + 4 * kt, 4)
        return f"{M16} {d}, {a(AK(p, kt, ks), 4)}, {a(AQ(t, ks), 4)}, {cinit if ks == 0 else d}"
    def pv(self, p, t, dt):
        d = v(O(t, dt), 4)
        return f"{M16} {d}, {a(AV(p, dt), 4)}, {v(PB[t & 1], 4)}, {d}"

    def period(self, j, t, lds, shadow, do_qk=True, do_pv=True):
        jq, tq = (j, t + 1) if t < 5 else (j + 1, 0)
        jp, tp = (j, t - 1) if t > 0 else (j - 1, 5)
        mf = []
        if self.opt.get("order", "88") == "4444":
            for ks in range(4): mf.append(self.qk(jq & 1, tq, 0, ks) if do_qk else None)
            for dt in range(4): mf.append(self.pv(jp & 1, tp, dt) if do_pv else None)
            for ks in range(4): mf.append(self.qk(jq & 1, tq, 1, ks) if do_qk else None)
            for dt in range(4, 8): mf.append(self.pv(jp & 1, tp, dt) if do_pv else None)
        elif self.opt.get("order", "88") == "88":
            for kt in range(2):
                for ks in range(4): mf.append(self.qk(jq & 1, tq, kt, ks) if do_qk else None)
            for dt in range(8): mf.append(self.pv(jp & 1, tp, dt) if do_pv else None)
        elif self.opt["order"] == "88r":
            for dt in range(8): mf.append(self.pv(jp & 1, tp, dt) if do_pv else None)
            for kt in range(2):
                for ks in range(4): mf.append(self.qk(jq & 1, tq, kt, ks) if do_qk else None)
        S = SB[t & 1]; P = PB[t & 1]; L = L0 + t
        ex = lambda i: f"v_exp_f32 {v(S+i)}, {v(S+i)}"
        ad = lambda i: f"v_add_f32 {v(L)}, {v(L)}, {v(S+i)}"
        cv = lambda i: f"v_cvt_pk_bf16_f32 {v(P+i)}, {v(S+2*i)}, {v(S+2*i+1)}"
        lds = list(lds) + [None] * (4 - len(lds))
        fill = {0: [ex(0)], 1: [ex(1)], 2: [lds[0], ad(0)], 3: [ex(2)], 4: [ad(1), cv(0)], 5: [ex(3)],
                6: [lds[1], ad(2)], 7: [ex(4)], 8: [ad(3), cv(1)], 9: [ex(5)], 10: [lds[2], ad(4)],
                11: [ex(6)], 12: [ad(5), cv(2)], 13: [ex(7)], 14: [lds[3], ad(6)], 15: [ad(7), cv(3)]}
        abl = self.opt.get("abl", "") if self.inloop else ""
        for g in range(16):
            if mf[g]: self.e(mf[g])
            for x in shadow.get(g, []):
                if 'D' in abl and x.startswith("buffer_load"): continue
                if 'B' in abl and x.startswith("s_barrier"): continue
                self.e(x)
            for x in fill[g]:
                if x is None: continue
                if 'e' in abl and x.startswith("v_exp"): continue
                if 'a' in abl and x.startswith("v_add"): continue
                if 'c' in abl and x.startswith("v_cvt"): continue
                if 'l' in abl and x.startswith("ds_read"): continue
                self.e(x)

    def iteration(self, j):
        self.c(f"---- iteration j%R={j % R}")
        p1 = (j + 1) & 1
        s1 = (j + 1) % R
        K = [self.kread(p1, s1, kt, ks) for kt in range(2) for ks in range(4)]
        V = [self.vread(p1, s1, dt, hh) for dt in range(8) for hh in range(2)]
        sched = [K[0:4], [K[4]] + V[0:3], [K[5]] + V[3:6], [K[6]] + V[6:9], [K[7]] + V[9:12], V[12:16]]
        sl = (j + self.D) % R
        pos = self.opt.get("dmapos", {0: [(1, 'm'), (3, 0), (7, 1), (11, 2)], 1: [(3, 3), (7, 'inc')]})
        for t in range(6):
            sh = {}
            if t == 0: sh[0] = [f"s_waitcnt vmcnt({4 * (self.D - 2)})", "s_barrier"]
            if t == 1: sh[0] = ["s_waitcnt lgkmcnt(4)"]
            if t == 5: sh[0] = ["s_waitcnt lgkmcnt(3)"]
            for (g, what) in pos.get(t, []):
                if what == 'm': ins = self.m0set(sl)
                elif what == 'inc': ins = f"s_add_u32 {s(S_TOFF)}, {s(S_TOFF)}, 8192"
                else: ins = self.dma(what)
                sh.setdefault(g, []).append(ins)
            if t == 5 and j % R == R - 1:
                sh.setdefault(3, []).append(f"s_sub_u32 {s(S_CNT)}, {s(S_CNT)}, 1")
                sh.setdefault(5, []).append(f"s_cmp_lg_u32 {s(S_CNT)}, 0")
            self.period(j, t, sched[t], sh)

    def lreduce(self, op="v_add_f32", regs=None):
        regs = regs or [L0 + t for t in range(6)]
        red = []
        for t in range(6): red.append(f"v_mov_b32 {v(NEGM+t)}, {v(regs[t])}")
        for t in range(6): red.append(f"v_permlane32_swap_b32 {v(regs[t])}, {v(NEGM+t)}")
        for t in range(6): red.append(f"{op} {v(regs[t])}, {v(regs[t])}, {v(NEGM+t)}")
        for t in range(6): red.append(f"v_mov_b32 {v(NEGM+t)}, {v(regs[t])}")
        for t in range(6): red.append(f"v_permlane16_swap_b32 {v(regs[t])}, {v(NEGM+t)}")
        for t in range(6): red.append(f"{op} {v(regs[t])}, {v(regs[t])}, {v(NEGM+t)}")
        return red

    def build(self):
        opt = self.opt
        e = self.e
        self.o.append(f"""; MHA forward, B=8 H=32 Sq=384 Sk=2048 D=128, bf16.  One workgroup (4 waves x 96 query rows) per head.
; @launch grid=(256,1,1) block=(256,1,1) lds={self.LDS}
.amdgcn_target "amdgcn-amd-amdhsa--gfx950"
.text
.globl {KN}
.p2align 8
.type {KN},@function
{KN}:""")
        e("s_load_dwordx4 s[32:35], s[0:1], 0")
        e("s_load_dwordx4 s[36:39], s[0:1], 16")
        e("s_cmp_ge_u32 s2, 256")
        e("s_cbranch_scc1 L_end")
        self.stamp(0, 0)
        if opt.get("stamp"):
            e(f"s_load_dwordx2 {s(S_WS,2)}, s[0:1], 40")
        e(f"v_lshrrev_b32 {v(V_T0)}, 6, v0")
        e(f"v_and_b32 {v(V_LANE)}, 63, v0")
        e(f"v_readfirstlane_b32 {s(S_W)}, {v(V_T0)}")
        e(f"v_lshrrev_b32 {v(V_T0)}, 4, {v(V_LANE)}")
        e(f"v_and_b32 {v(V_T1)}, 15, {v(V_LANE)}")
        e(f"v_lshrrev_b32 {v(V_T2)}, 2, {v(V_T1)}")
        e(f"v_and_b32 {v(V_T3)}, 3, {v(V_LANE)}")
        e(f"v_lshlrev_b32 {v(V_OFFB)}, 8, {v(V_T2)}")
        e(f"v_lshl_add_u32 {v(V_OFFB)}, {v(V_T0)}, 6, {v(V_OFFB)}")
        e(f"v_lshl_add_u32 {v(V_OFFB)}, {v(V_T3)}, 4, {v(V_OFFB)}")
        e(f"s_lshl_b32 {s(S_T0)}, {s(S_W)}, 11")
        e(f"s_mul_i32 {s(S_WOFF)}, {s(S_W)}, {QRT}")
        e(f"v_add_u32 {v(V_OFFB)}, {s(S_T0)}, {v(V_OFFB)}")
        e(f"v_add_u32 {v(V_OFFA)}, 32, {v(V_OFFB)}")
        QV = NEGM + 8
        e(f"s_mul_i32 {s(S_T0)}, {s(S_W)}, {96 * 256 - 2048}")
        e(f"v_add_u32 {v(QV+3)}, {s(S_T0)}, {v(V_OFFB)}")
        e(f"v_add_u32 {v(QV+2)}, 32, {v(QV+3)}")
        e(f"v_add_u32 {v(QV+1)}, 64, {v(QV+3)}")
        e(f"v_add_u32 {v(QV)}, 96, {v(QV+3)}")
        e(f"s_mul_i32 {s(S_PRIV)}, {s(S_W)}, {PRIV}")
        e(f"s_add_u32 {s(S_PRIV)}, {s(S_PRIV)}, {R * SLOT}")
        if opt.get("remap", True):
            e(f"s_and_b32 {s(S_T0)}, s2, 7")
            e(f"s_lshl_b32 {s(S_T0)}, {s(S_T0)}, 5")
            e(f"s_lshr_b32 {s(S_T1)}, s2, 3")
            e(f"s_add_u32 s3, {s(S_T0)}, {s(S_T1)}")
        else:
            e("s_mov_b32 s3, s2")
        e(f"s_mul_i32 {s(S_T0)}, s3, 98304")
        e(f"s_lshl_b32 {s(S_T1)}, s3, 19")
        e(f"s_mov_b32 {s(S_QSRD+2)}, {98304 + 96}")
        e(f"s_mov_b32 {s(S_QSRD+3)}, 0x20000")
        e(f"s_mov_b32 {s(S_KSRD+2)}, {524288 + 32}")
        e(f"s_mov_b32 {s(S_KSRD+3)}, 0x20000")
        e(f"s_mov_b32 {s(S_VSRD+2)}, {524288 + 2144}")
        e(f"s_mov_b32 {s(S_VSRD+3)}, 0x20000")
        e(f"s_mov_b32 {s(S_OSRD+2)}, 98304")
        e(f"s_mov_b32 {s(S_OSRD+3)}, 0x20000")
        e(f"s_mov_b32 {s(S_TOFF)}, 0")
        e(self.m0set(0))
        e(f"s_sub_u32 {s(S_T2)}, {s(S_T1)}, 32")
        e(f"s_ashr_i32 {s(S_T3)}, {s(S_T2)}, 31")
        e("s_waitcnt lgkmcnt(0)")
        self.stamp(1)
        e(f"s_add_u32 {s(S_KSRD)}, s34, {s(S_T2)}")
        e(f"s_addc_u32 {s(S_KSRD+1)}, s35, {s(S_T3)}")
        vm = []
        e(self.dma(0)); e(self.dma(1)); vm += ["K0", "K0"]
        if opt.get("fine"): self.stamp(3)
        e(f"s_sub_u32 {s(S_T2)}, {s(S_T0)}, 96")
        e(f"s_ashr_i32 {s(S_T3)}, {s(S_T2)}, 31")
        e(f"s_add_u32 {s(S_QSRD)}, s32, {s(S_T2)}")
        e(f"s_addc_u32 {s(S_QSRD+1)}, s33, {s(S_T3)}")
        QPLACE = {0: ('p', 0), 1: ('p', QBUF), 2: ('p', 2 * QBUF), 3: ('r', 2 * SLOT), 4: ('r', 3 * SLOT), 5: ('p', 0)}
        def qload(t):
            kind, off_ = QPLACE[t]
            e(f"s_add_u32 m0, {s(S_PRIV if kind == 'p' else S_WOFF)}, {off_}")
            e(f"s_mov_b32 {s(S_T3)}, {t * 4096}")
            for b in range(4):
                off = f" offset:{b * BLK}" if b else ""
                e(f"buffer_load_dwordx4 {v(QV+b)}, {s(S_QSRD,4)}, {s(S_T3)} offen{off}{self.qfl} lds")
                vm.append(f"Q{t}")
        qload(0)
        if opt.get("fine"): self.stamp(4)
        e(f"s_sub_u32 {s(S_T2)}, {s(S_T1)}, 2144")
        e(f"s_ashr_i32 {s(S_T3)}, {s(S_T2)}, 31")
        e(f"s_add_u32 {s(S_VSRD)}, s36, {s(S_T2)}")
        e(f"s_addc_u32 {s(S_VSRD+1)}, s37, {s(S_T3)}")
        e(self.m0set(0))
        e("s_nop 0")
        e(self.dma(2)); e(self.dma(3)); vm += ["V0", "V0"]
        if opt.get("fine"): self.stamp(5)
        qload(1)
        e(f"s_add_u32 {s(S_OSRD)}, s38, {s(S_T0)}")
        e(f"s_addc_u32 {s(S_OSRD+1)}, s39, 0")
        self.stamp(2)
        def dma_half(tile, kv):
            e(f"s_mov_b32 {s(S_TOFF)}, {tile * 8192}")
            e(self.m0set(tile % R))
            e("s_nop 0")
            for i in ((0, 1) if kv == 'K' else (2, 3)): e(self.dma(i))
            vm.extend([f"{kv}{tile}"] * 2)
        def wait_for(lbl):
            last = max(i for i, x in enumerate(vm) if x == lbl)
            e(f"s_waitcnt vmcnt({len(vm) - 1 - last})")
        TMPC = NEGM
        QA = NEGM + 12
        def qconv(t, after_read=None):
            wait_for(f"Q{t}")
            if not opt.get("fs"): self.stamp(3 + t)
            for ks in range(4):
                kind, off_ = QPLACE[t]
                e(f"ds_read_b128 {v(O(t, 0) + 4 * ks, 4)}, {v(QA if kind == 'p' else QA + 2)} offset:{off_ + 256 * ks}")
            e("s_waitcnt lgkmcnt(0)")
            if after_read: after_read()
            for i in range(16):
                x = O(t, 0) + i
                lo = TMPC + 2 * (i % 4); hi = lo + 1
                e(f"v_lshlrev_b32 {v(lo)}, 16, {v(x)}")
                e(f"v_and_b32 {v(hi)}, {s(S_T2)}, {v(x)}")
                e(f"v_pk_mul_f32 {v(lo,2)}, {v(lo,2)}, {v(V_T0,2)}")
                e(f"v_cvt_pk_bf16_f32 {v(x)}, {v(lo)}, {v(hi)}")
                e(f"v_accvgpr_write_b32 {a(AQ(t,0)+i)}, {v(x)}")
                e(f"v_mov_b32 {v(x)}, 0")
        e(f"v_lshrrev_b32 {v(V_KADDR)}, 1, {v(V_T2)}")
        e(f"v_mul_u32_u24 {v(V_KADDR)}, {QRT}, {v(V_KADDR)}")
        e(f"v_and_b32 {v(V_VADDR)}, 1, {v(V_T2)}")
        e(f"v_mul_u32_u24 {v(V_VADDR)}, {BLK}, {v(V_VADDR)}")
        e(f"v_add_u32 {v(V_KADDR)}, {v(V_KADDR)}, {v(V_VADDR)}")
        e(f"v_lshl_add_u32 {v(V_KADDR)}, {v(V_T3)}, 6, {v(V_KADDR)}")
        e(f"v_lshl_add_u32 {v(V_KADDR)}, {v(V_T0)}, 4, {v(V_KADDR)}")
        e(f"v_mul_u32_u24 {v(QA)}, {BLK}, {v(V_T2)}")
        e(f"v_lshl_add_u32 {v(QA)}, {v(V_T3)}, 6, {v(QA)}")
        e(f"v_lshl_add_u32 {v(QA)}, {v(V_T0)}, 4, {v(QA)}")
        e(f"v_add_u32 {v(QA+2)}, {s(S_WOFF)}, {v(QA)}")
        e(f"v_add_u32 {v(QA)}, {s(S_PRIV)}, {v(QA)}")
        e(f"v_lshrrev_b32 {v(V_VADDR)}, 1, {v(V_T0)}")
        e(f"v_mul_u32_u24 {v(V_VADDR)}, {QRT}, {v(V_VADDR)}")
        e(f"v_and_b32 {v(V_T1)}, 1, {v(V_T0)}")
        e(f"v_mul_u32_u24 {v(NEGM+13)}, {BLK}, {v(V_T1)}")
        e(f"v_add_u32 {v(V_VADDR)}, {v(V_VADDR)}, {v(NEGM+13)}")
        e(f"v_lshl_add_u32 {v(V_VADDR)}, {v(V_T2)}, 6, {v(V_VADDR)}")
        e(f"v_lshl_add_u32 {v(V_VADDR)}, {v(V_T3)}, 3, {v(V_VADDR)}")
        e(f"v_add_u32 {v(V_VADDR)}, {2 * BLK}, {v(V_VADDR)}")
        for i in range(6): e(f"v_mov_b32 {v(L0+i)}, 0")
        for i in range(4): e(f"v_mov_b32 {v(PB[1]+i)}, 0")
        for i in range(32): e(f"v_accvgpr_write_b32 {a(AV(1,0)+i)}, 0")
        for t in range(6):
            for i in range(16, 32): e(f"v_mov_b32 {v(O(t,0)+i)}, 0")
        e(f"s_mov_b32 {s(S_T1)}, 0x3e0293ee")
        e(f"v_mov_b32 {v(V_T0)}, {s(S_T1)}")
        e(f"v_mov_b32 {v(V_T1)}, {s(S_T1)}")
        e(f"s_mov_b32 {s(S_T2)}, 0xffff0000")
        hd = opt.get("hd", "d")
        fs = opt.get("fs")
        def fstamp(i):
            if fs: self.stamp(i)
        qload(2)
        fstamp(3)
        if hd == "d":
            qconv(0, lambda: (fstamp(4), qload(3), fstamp(5)))
            fstamp(6)
        else:
            qconv(0, lambda: qload(3))
            qload(4)
        wait_for("V0")
        fstamp(7)
        e("s_barrier")
        fstamp(8)
        for kt in range(2):
            for ks in range(4): e(self.kread(0, 0, kt, ks))
        for dt in range(8):
            for hh in range(2): e(self.vread(0, 0, dt, hh))
        if hd != "d":
            qload(5)
            dma_half(1, 'K'); dma_half(1, 'V')
        e("s_waitcnt lgkmcnt(15)")
        for kt in range(2):
            for ks in range(4): e(self.qk(0, 0, kt, ks))
        fstamp(9)
        K1 = [self.kread(1, 1 % R, kt, ks) for kt in range(2) for ks in range(4)]
        V1 = [self.vread(1, 1 % R, dt, hh) for dt in range(8) for hh in range(2)]
        for t in range(6):
            if t + 1 <= 5:
                def after(t=t):
                    if hd == "d":
                        if t == 0: qload(4)
                        if t == 1: qload(5)
                        if t == 2: dma_half(1, 'K'); dma_half(1, 'V')
                        if t == 3: dma_half(2, 'K'); dma_half(2, 'V')
                    else:
                        if t == 2: dma_half(2, 'K'); dma_half(2, 'V')
                        if t == 3: dma_half(3, 'K'); dma_half(3, 'V')
                qconv(t + 1, after)
                e("s_nop 1")
            if t == 0: e("s_waitcnt lgkmcnt(0)")
            if t == 5:
                wait_for("K1")
                e("s_barrier")
                if not opt.get("fs"): self.stamp(9)
                for x in K1: e(x)
                e("s_waitcnt lgkmcnt(0)")
            self.period(0, t, [], {}, do_pv=True)
        wait_for("V1")
        e("s_barrier")
        for x in V1: e(x)
        if hd == "d":
            dma_half(3, 'K'); dma_half(3, 'V')
        e(f"s_mov_b32 {s(S_TOFF)}, {(self.D + 1) * 8192}")
        self.stamp(10, 1)
        e(f"s_mov_b32 {s(S_CNT)}, {NT // R}")
        e("s_branch L_it1")
        e(".p2align 6")
        self.lab("L_loop")
        self.inloop = True
        for j in range(R):
            if j == 1: self.lab("L_it1")
            self.iteration(j)
        e("s_cbranch_scc1 L_loop")
        self.inloop = False
        self.stamp(11, 2)
        red = self.lreduce()
        e("s_nop 1")
        for dt in range(8):
            e(self.pv(63 & 1, 5, dt))
            for x in red[2*dt:2*dt+2]: e(x)
        for x in red[16:]: e(x)
        if not opt.get("nocheck"):
            e(f"v_max3_f32 {v(V_T0)}, {v(L0)}, {v(L0+1)}, {v(L0+2)}")
            e(f"v_min3_f32 {v(V_T1)}, {v(L0)}, {v(L0+1)}, {v(L0+2)}")
            e(f"v_max3_f32 {v(V_T0)}, {v(V_T0)}, {v(L0+3)}, {v(L0+4)}")
            e(f"v_min3_f32 {v(V_T1)}, {v(V_T1)}, {v(L0+3)}, {v(L0+4)}")
            e(f"v_max_f32 {v(V_T0)}, {v(V_T0)}, {v(L0+5)}")
            e(f"v_min_f32 {v(V_T1)}, {v(V_T1)}, {v(L0+5)}")
            e(f"s_mov_b32 {s(S_T0)}, 0x53800000")
            e(f"s_mov_b32 {s(S_T1)}, 0x37800000")
            e(f"v_cmp_ge_f32 vcc, {s(S_T0)}, {v(V_T0)}")
            e(f"v_cmp_le_f32 {s(S_T2,2)}, {s(S_T1)}, {v(V_T1)}")
            e(f"s_and_b64 vcc, vcc, {s(S_T2,2)}")
            e("s_cmp_eq_u64 vcc, -1")
            e("s_cbranch_scc0 L_fallback")
        self.lab("L_norm")
        for t in range(6): e(f"v_rcp_f32 {v(L0+t)}, {v(L0+t)}")
        self.stamp(12, 3)
        self.epilogue()
        self.stamp(13, 4)
        if opt.get("stamp"):
            e("s_waitcnt vmcnt(0)")
            self.stamp(14, 5)
            e("s_waitcnt lgkmcnt(0)")
            e(f"s_mov_b32 {s(S_WS+2)}, 0x20000000")
            e(f"s_mov_b32 {s(S_WS+3)}, 0x20000")
            e(f"v_mov_b32 {v(V_T0)}, 0")
            for i in range(16): e(f"v_writelane_b32 {v(V_T0)}, {s(S_RST + 2*i)}, {i}")
            for i in range(8): e(f"v_writelane_b32 {v(V_T0)}, {s(S_CST + 2*i)}, {16+i}")
            e(f"s_lshl_b32 {s(S_T0)}, s2, 2")
            e(f"s_add_u32 {s(S_T0)}, {s(S_T0)}, {s(S_W)}")
            e(f"s_lshl_b32 {s(S_T0)}, {s(S_T0)}, 8")
            e(f"v_lshlrev_b32 {v(V_T1)}, 2, {v(V_LANE)}")
            e(f"buffer_store_dword {v(V_T0)}, {v(V_T1)}, {s(S_WS,4)}, {s(S_T0)} offen")
        self.lab("L_end")
        e("s_endpgm")
        if not opt.get("nocheck"): self.fallback()
        self.o.append(f""".section .rodata,"a"
.p2align 6
.amdhsa_kernel {KN}
  .amdhsa_next_free_vgpr 512
  .amdhsa_next_free_sgpr 102
  .amdhsa_accum_offset 256
  .amdhsa_group_segment_fixed_size 0
  .amdhsa_kernarg_size 48
  .amdhsa_user_sgpr_count 2
  .amdhsa_user_sgpr_kernarg_segment_ptr 1
  .amdhsa_system_sgpr_workgroup_id_x 1
.end_amdhsa_kernel""")
        return "\n".join(self.o) + "\n"

    def epilogue(self):
        e = self.e; opt = self.opt
        WA, RA, GA = V_T2, V_T3, V_OST
        PK = [SB[0], NEGM]
        RD = [160 - 160 + 0, 0]
        e(f"s_mul_i32 {s(S_T1)}, {s(S_W)}, {PRIV}")
        e(f"s_add_u32 {s(S_T1)}, {s(S_T1)}, {R * SLOT}")
        e(f"v_and_b32 {v(V_T0)}, 15, {v(V_LANE)}")
        e(f"v_lshrrev_b32 {v(V_T1)}, 4, {v(V_LANE)}")
        e(f"v_mul_u32_u24 {v(WA)}, 272, {v(V_T0)}")
        e(f"v_lshl_add_u32 {v(WA)}, {v(V_T1)}, 3, {v(WA)}")
        e(f"v_add_u32 {v(WA)}, {s(S_T1)}, {v(WA)}")
        e(f"v_mul_u32_u24 {v(RA)}, 272, {v(V_T1)}")
        e(f"v_lshl_add_u32 {v(RA)}, {v(V_T0)}, 4, {v(RA)}")
        e(f"v_add_u32 {v(RA)}, {s(S_T1)}, {v(RA)}")
        e(f"s_mul_i32 {s(S_T1)}, {s(S_W)}, {96 * 256}")
        e(f"v_lshlrev_b32 {v(GA)}, 4, {v(V_LANE)}")
        e(f"v_add_u32 {v(GA)}, {s(S_T1)}, {v(GA)}")
        def pack(t):
            L = L0 + t
            e(f"v_mov_b32 {v(V_T0)}, {v(L)}")
            e(f"v_mov_b32 {v(V_T1)}, {v(L)}")
            for dt in range(8):
                o = O(t, dt)
                e(f"v_pk_mul_f32 {v(o,2)}, {v(o,2)}, {v(V_T0,2)}")
                e(f"v_pk_mul_f32 {v(o+2,2)}, {v(o+2,2)}, {v(V_T0,2)}")
            for dt in range(8):
                o = O(t, dt)
                e(f"v_cvt_pk_bf16_f32 {v(o)}, {v(o)}, {v(o+1)}")
                e(f"v_cvt_pk_bf16_f32 {v(o+1)}, {v(o+2)}, {v(o+3)}")
                e(f"ds_write_b64 {v(WA)}, {v(o,2)} offset:{(t & 1) * STG + 32 * dt}")
        def unload(t):
            for k in range(4):
                e(f"ds_read_b128 {v(O(t, 0) + 4 * k, 4)}, {v(RA)} offset:{(t & 1) * STG + k * 4 * 272}")
        def store(t):
            e(f"s_mov_b32 {s(S_T0)}, {t * 4096}")
            for k in range(4):
                if not opt.get("nostore"):
                    e(f"buffer_store_dwordx4 {v(O(t, 0) + 4 * k, 4)}, {v(GA)}, {s(S_OSRD,4)}, {s(S_T0)} offen offset:{1024 * k}{self.stfl}")
        pack(0); unload(0)
        for t in range(1, 6):
            pack(t)
            e("s_waitcnt lgkmcnt(8)")
            store(t - 1)
            unload(t)
        e("s_waitcnt lgkmcnt(0)")
        store(5)

    def fallback(self):
        e = self.e
        FA, FB, FK, FV = V_T0, V_T1, V_T2, V_T3
        MX = L0
        self.lab("L_fallback")
        e("s_waitcnt vmcnt(0) lgkmcnt(0)")
        e("s_barrier")
        e(f"s_lshl_b32 {s(S_T0)}, {s(S_W)}, 11")
        e(f"v_subrev_u32 {v(FA)}, {s(S_T0)}, {v(V_OFFA)}")
        e(f"v_subrev_u32 {v(FB)}, {s(S_T0)}, {v(V_OFFB)}")
        e(f"s_mul_i32 {s(S_WOFF)}, {s(S_W)}, {SLOT}")
        e(f"v_add_u32 {v(FK)}, {s(S_WOFF)}, {v(V_KADDR)}")
        e(f"v_add_u32 {v(FV)}, {s(S_WOFF)}, {v(V_VADDR)}")
        def load_tile(with_v):
            for q in range(4):
                e(f"s_add_u32 m0, {s(S_WOFF)}, {q * QRT}")
                e(f"s_add_u32 {s(S_TOFF)}, {s(S_T1)}, {q * 2048}")
                for i in range(4 if with_v else 2): e(self.dma(i, FA, FB))
            e("s_waitcnt vmcnt(0)")
            for kt in range(2):
                for ks in range(4): e(self.kread(0, 0, kt, ks, FK))
            if with_v:
                for dt in range(8):
                    for hh in range(2): e(self.vread(0, 0, dt, hh, FV))
            e("s_waitcnt lgkmcnt(0)")
        for t in range(6): e(f"v_mov_b32 {v(MX+t)}, 0xff800000")
        e(f"s_mov_b32 {s(S_T1)}, 0")
        self.lab("L_fb1")
        load_tile(False)
        for t in range(6):
            for kt in range(2):
                for ks in range(4): e(self.qk(0, t, kt, ks))
            e("s_nop 7")
            e("s_nop 1")
            S = SB[t & 1]
            for i in range(0, 8, 2): e(f"v_max3_f32 {v(MX+t)}, {v(MX+t)}, {v(S+i)}, {v(S+i+1)}")
        e(f"s_add_u32 {s(S_T1)}, {s(S_T1)}, 8192")
        e(f"s_cmp_lt_u32 {s(S_T1)}, {NT * 8192}")
        e("s_cbranch_scc1 L_fb1")
        for x in self.lreduce("v_max_f32"):
            e(x); e("s_nop 1")
        for t in range(6):
            for r in range(4): e(f"v_sub_f32 {v(NEGM + 4*t + r)}, 0, {v(MX+t)}")
        for t in range(6): e(f"v_mov_b32 {v(L0+t)}, 0")
        for i in range(192): e(f"v_mov_b32 {v(i)}, 0")
        e(f"s_mov_b32 {s(S_T1)}, 0")
        self.lab("L_fb2")
        load_tile(True)
        for t in range(6):
            for kt in range(2):
                for ks in range(4): e(self.qk(0, t, kt, ks, v(NEGM + 4*t, 4)))
            e("s_nop 7")
            e("s_nop 1")
            S = SB[t & 1]; P = PB[t & 1]
            for i in range(8): e(f"v_exp_f32 {v(S+i)}, {v(S+i)}")
            e("s_nop 0")
            for i in range(8): e(f"v_add_f32 {v(L0+t)}, {v(L0+t)}, {v(S+i)}")
            for i in range(4): e(f"v_cvt_pk_bf16_f32 {v(P+i)}, {v(S+2*i)}, {v(S+2*i+1)}")
            e("s_nop 1")
            for dt in range(8): e(self.pv(0, t, dt))
        e(f"s_add_u32 {s(S_T1)}, {s(S_T1)}, 8192")
        e(f"s_cmp_lt_u32 {s(S_T1)}, {NT * 8192}")
        e("s_cbranch_scc1 L_fb2")
        for x in self.lreduce():
            e(x); e("s_nop 1")
        e("s_nop 7")
        e("s_branch L_norm")

if __name__ == "__main__":
    opt = {}
    out = sys.argv[1]
    for x in sys.argv[2:]:
        k, _, val = x.partition("=")
        opt[k] = eval(val) if val else True
    open(out, "w").write(Gen(opt).build())
```

```python
import sys

KN = "standalone__mha_softmax__near_ridge_kernel"
M16 = "v_mfma_f32_16x16x32_bf16"
NT = 64
BLK = 1056
QRT = 4 * BLK
SLOT = 4 * QRT
R = 4
STG = 16 * 272
QBUF = 4 * BLK
PRIV = 3 * QBUF

def O(t, dt): return 32 * t + 4 * dt
SB = [192, 200]
PB = [208, 212]
L0 = 216
V_KADDR, V_VADDR, V_OFFA, V_OFFB = 222, 223, 224, 225
V_LANE, V_OST, V_T0, V_T1, V_T2, V_T3 = 226, 227, 228, 229, 230, 231
NEGM = 232
def AQ(t, ks): return 16 * t + 4 * ks
def AK(p, kt, ks): return 96 + 32 * p + 16 * kt + 4 * ks
def AV(p, dt): return 160 + 32 * p + 4 * dt

S_QSRD, S_KSRD, S_VSRD, S_OSRD = 4, 8, 12, 16
S_W, S_WOFF, S_TOFF, S_CNT, S_T0, S_T1, S_T2, S_T3 = 20, 21, 22, 23, 24, 25, 26, 27
S_WS = 28
S_PRIV = 88
S_RST = 40
S_CST = 72

def v(a, n=1): return f"v{a}" if n == 1 else f"v[{a}:{a+n-1}]"
def a(x, n=1): return f"a{x}" if n == 1 else f"a[{x}:{x+n-1}]"
def s(x, n=1): return f"s{x}" if n == 1 else f"s[{x}:{x+n-1}]"

class Gen:
    def __init__(self, opt):
        self.o = []
        self.opt = opt
        self.LDS = R * SLOT + 4 * PRIV
        self.ldfl = opt.get("ldfl", " nt")
        self.qfl = opt.get("qfl", " nt")
        self.stfl = opt.get("stfl", "")
        self.inloop = False
        self.D = 3
    def e(self, line): self.o.append("    " + line)
    def lab(self, name): self.o.append(name + ":")
    def c(self, txt): self.o.append("    ; " + txt)
    def stamp(self, idx, cyc=None):
        if self.opt.get("stamp"):
            self.e(f"s_memrealtime {s(S_RST + 2 * idx, 2)}")
            if cyc is not None: self.e(f"s_memtime {s(S_CST + 2 * cyc, 2)}")

    def dma(self, i, va=V_OFFA, vb=V_OFFB):
        srd = S_KSRD if i < 2 else S_VSRD
        off = f" offset:{i * BLK}" if i else ""
        return f"buffer_load_dwordx4 {v(va if i % 2 == 0 else vb)}, {s(srd,4)}, {s(S_TOFF)} offen{off}{self.ldfl} lds"
    def m0set(self, slot): return f"s_add_u32 m0, {s(S_WOFF)}, {slot * SLOT}"
    def kread(self, p, slot, kt, ks, addr=V_KADDR):
        return f"ds_read_b128 {a(AK(p, kt, ks), 4)}, {v(addr)} offset:{slot * SLOT + kt * 2 * QRT + 256 * ks}"
    def vread(self, p, slot, dt, hh, addr=V_VADDR):
        return f"ds_read_b64_tr_b16 {a(AV(p, dt) + 2 * hh, 2)}, {v(addr)} offset:{slot * SLOT + hh * 2 * QRT + 256 * (dt >> 1) + 32 * (dt & 1)}"
    def qk(self, p, t, kt, ks, cinit="0"):
        d = v(SB[t & 1] + 4 * kt, 4)
        return f"{M16} {d}, {a(AK(p, kt, ks), 4)}, {a(AQ(t, ks), 4)}, {cinit if ks == 0 else d}"
    def pv(self, p, t, dt):
        d = v(O(t, dt), 4)
        return f"{M16} {d}, {a(AV(p, dt), 4)}, {v(PB[t & 1], 4)}, {d}"

    def period(self, j, t, lds, shadow, do_qk=True, do_pv=True):
        jq, tq = (j, t + 1) if t < 5 else (j + 1, 0)
        jp, tp = (j, t - 1) if t > 0 else (j - 1, 5)
        mf = []
        if self.opt.get("order", "88") == "4444":
            for ks in range(4): mf.append(self.qk(jq & 1, tq, 0, ks) if do_qk else None)
            for dt in range(4): mf.append(self.pv(jp & 1, tp, dt) if do_pv else None)
            for ks in range(4): mf.append(self.qk(jq & 1, tq, 1, ks) if do_qk else None)
            for dt in range(4, 8): mf.append(self.pv(jp & 1, tp, dt) if do_pv else None)
        elif self.opt.get("order", "88") == "88":
            for kt in range(2):
                for ks in range(4): mf.append(self.qk(jq & 1, tq, kt, ks) if do_qk else None)
            for dt in range(8): mf.append(self.pv(jp & 1, tp, dt) if do_pv else None)
        elif self.opt["order"] == "88r":
            for dt in range(8): mf.append(self.pv(jp & 1, tp, dt) if do_pv else None)
            for kt in range(2):
                for ks in range(4): mf.append(self.qk(jq & 1, tq, kt, ks) if do_qk else None)
        S = SB[t & 1]; P = PB[t & 1]; L = L0 + t
        ex = lambda i: f"v_exp_f32 {v(S+i)}, {v(S+i)}"
        ad = lambda i: f"v_add_f32 {v(L)}, {v(L)}, {v(S+i)}"
        cv = lambda i: f"v_cvt_pk_bf16_f32 {v(P+i)}, {v(S+2*i)}, {v(S+2*i+1)}"
        lds = list(lds) + [None] * (4 - len(lds))
        fill = {0: [ex(0)], 1: [ex(1)], 2: [lds[0], ad(0)], 3: [ex(2)], 4: [ad(1), cv(0)], 5: [ex(3)],
                6: [lds[1], ad(2)], 7: [ex(4)], 8: [ad(3), cv(1)], 9: [ex(5)], 10: [lds[2], ad(4)],
                11: [ex(6)], 12: [ad(5), cv(2)], 13: [ex(7)], 14: [lds[3], ad(6)], 15: [ad(7), cv(3)]}
        abl = self.opt.get("abl", "") if self.inloop else ""
        for g in range(16):
            if mf[g]: self.e(mf[g])
            for x in shadow.get(g, []):
                if 'D' in abl and x.startswith("buffer_load"): continue
                if 'B' in abl and x.startswith("s_barrier"): continue
                self.e(x)
            for x in fill[g]:
                if x is None: continue
                if 'e' in abl and x.startswith("v_exp"): continue
                if 'a' in abl and x.startswith("v_add"): continue
                if 'c' in abl and x.startswith("v_cvt"): continue
                if 'l' in abl and x.startswith("ds_read"): continue
                self.e(x)

    def iteration(self, j):
        self.c(f"---- iteration j%R={j % R}")
        p1 = (j + 1) & 1
        s1 = (j + 1) % R
        K = [self.kread(p1, s1, kt, ks) for kt in range(2) for ks in range(4)]
        V = [self.vread(p1, s1, dt, hh) for dt in range(8) for hh in range(2)]
        sched = [K[0:4], [K[4]] + V[0:3], [K[5]] + V[3:6], [K[6]] + V[6:9], [K[7]] + V[9:12], V[12:16]]
        sl = (j + self.D) % R
        pos = self.opt.get("dmapos", {0: [(1, 'm'), (3, 0), (7, 1), (11, 2)], 1: [(3, 3), (7, 'inc')]})
        for t in range(6):
            sh = {}
            if t == 0: sh[0] = [f"s_waitcnt vmcnt({4 * (self.D - 2)})", "s_barrier"]
            if t == 1: sh[0] = ["s_waitcnt lgkmcnt(4)"]
            if t == 5: sh[0] = ["s_waitcnt lgkmcnt(3)"]
            for (g, what) in pos.get(t, []):
                if what == 'm': ins = self.m0set(sl)
                elif what == 'inc': ins = f"s_add_u32 {s(S_TOFF)}, {s(S_TOFF)}, 8192"
                else: ins = self.dma(what)
                sh.setdefault(g, []).append(ins)
            if t == 5 and j % R == R - 1:
                sh.setdefault(3, []).append(f"s_sub_u32 {s(S_CNT)}, {s(S_CNT)}, 1")
                sh.setdefault(5, []).append(f"s_cmp_lg_u32 {s(S_CNT)}, 0")
            self.period(j, t, sched[t], sh)

    def lreduce(self, op="v_add_f32", regs=None):
        regs = regs or [L0 + t for t in range(6)]
        red = []
        for t in range(6): red.append(f"v_mov_b32 {v(NEGM+t)}, {v(regs[t])}")
        for t in range(6): red.append(f"v_permlane32_swap_b32 {v(regs[t])}, {v(NEGM+t)}")
        for t in range(6): red.append(f"{op} {v(regs[t])}, {v(regs[t])}, {v(NEGM+t)}")
        for t in range(6): red.append(f"v_mov_b32 {v(NEGM+t)}, {v(regs[t])}")
        for t in range(6): red.append(f"v_permlane16_swap_b32 {v(regs[t])}, {v(NEGM+t)}")
        for t in range(6): red.append(f"{op} {v(regs[t])}, {v(regs[t])}, {v(NEGM+t)}")
        return red

    def build(self):
        opt = self.opt
        e = self.e
        self.o.append(f"""; MHA forward, B=8 H=32 Sq=384 Sk=2048 D=128, bf16.  One workgroup (4 waves x 96 query rows) per head.
; @launch grid=(256,1,1) block=(256,1,1) lds={self.LDS}
.amdgcn_target "amdgcn-amd-amdhsa--gfx950"
.text
.globl {KN}
.p2align 8
.type {KN},@function
{KN}:""")
        e("s_load_dwordx4 s[32:35], s[0:1], 0")
        e("s_load_dwordx4 s[36:39], s[0:1], 16")
        e("s_cmp_ge_u32 s2, 256")
        e("s_cbranch_scc1 L_end")
        self.stamp(0, 0)
        if opt.get("stamp") and opt.get("dbg") is None:
            e(f"s_load_dwordx2 {s(S_WS,2)}, s[0:1], 40")
        e(f"v_lshrrev_b32 {v(V_T0)}, 6, v0")
        e(f"v_and_b32 {v(V_LANE)}, 63, v0")
        e(f"v_readfirstlane_b32 {s(S_W)}, {v(V_T0)}")
        e(f"v_lshrrev_b32 {v(V_T0)}, 4, {v(V_LANE)}")
        e(f"v_and_b32 {v(V_T1)}, 15, {v(V_LANE)}")
        e(f"v_lshrrev_b32 {v(V_T2)}, 2, {v(V_T1)}")
        e(f"v_and_b32 {v(V_T3)}, 3, {v(V_LANE)}")
        e(f"v_lshlrev_b32 {v(V_OFFB)}, 8, {v(V_T2)}")
        e(f"v_lshl_add_u32 {v(V_OFFB)}, {v(V_T0)}, 6, {v(V_OFFB)}")
        e(f"v_lshl_add_u32 {v(V_OFFB)}, {v(V_T3)}, 4, {v(V_OFFB)}")
        e(f"s_lshl_b32 {s(S_T0)}, {s(S_W)}, 11")
        e(f"s_mul_i32 {s(S_WOFF)}, {s(S_W)}, {QRT}")
        e(f"v_add_u32 {v(V_OFFB)}, {s(S_T0)}, {v(V_OFFB)}")
        e(f"v_add_u32 {v(V_OFFA)}, 32, {v(V_OFFB)}")
        QV = NEGM + 8
        e(f"s_mul_i32 {s(S_T0)}, {s(S_W)}, {96 * 256 - 2048}")
        e(f"v_add_u32 {v(QV+3)}, {s(S_T0)}, {v(V_OFFB)}")
        e(f"v_add_u32 {v(QV+2)}, 32, {v(QV+3)}")
        e(f"v_add_u32 {v(QV+1)}, 64, {v(QV+3)}")
        e(f"v_add_u32 {v(QV)}, 96, {v(QV+3)}")
        e(f"s_mul_i32 {s(S_PRIV)}, {s(S_W)}, {PRIV}")
        e(f"s_add_u32 {s(S_PRIV)}, {s(S_PRIV)}, {R * SLOT}")
        if opt.get("remap", True):
            e(f"s_and_b32 {s(S_T0)}, s2, 7")
            e(f"s_lshl_b32 {s(S_T0)}, {s(S_T0)}, 5")
            e(f"s_lshr_b32 {s(S_T1)}, s2, 3")
            e(f"s_add_u32 s3, {s(S_T0)}, {s(S_T1)}")
        else:
            e("s_mov_b32 s3, s2")
        e(f"s_mul_i32 {s(S_T0)}, s3, 98304")
        e(f"s_lshl_b32 {s(S_T1)}, s3, 19")
        e(f"s_mov_b32 {s(S_QSRD+2)}, {98304 + 96}")
        e(f"s_mov_b32 {s(S_QSRD+3)}, 0x20000")
        e(f"s_mov_b32 {s(S_KSRD+2)}, {524288 + 32}")
        e(f"s_mov_b32 {s(S_KSRD+3)}, 0x20000")
        e(f"s_mov_b32 {s(S_VSRD+2)}, {524288 + 2144}")
        e(f"s_mov_b32 {s(S_VSRD+3)}, 0x20000")
        e(f"s_mov_b32 {s(S_OSRD+2)}, 98304")
        e(f"s_mov_b32 {s(S_OSRD+3)}, 0x20000")
        e(f"s_mov_b32 {s(S_TOFF)}, 0")
        e(self.m0set(0))
        e(f"s_sub_u32 {s(S_T2)}, {s(S_T1)}, 32")
        e(f"s_ashr_i32 {s(S_T3)}, {s(S_T2)}, 31")
        e("s_waitcnt lgkmcnt(0)")
        self.stamp(1)
        e(f"s_add_u32 {s(S_KSRD)}, s34, {s(S_T2)}")
        e(f"s_addc_u32 {s(S_KSRD+1)}, s35, {s(S_T3)}")
        vm = []
        e(self.dma(0)); e(self.dma(1)); vm += ["K0", "K0"]
        if opt.get("fine"): self.stamp(3)
        e(f"s_sub_u32 {s(S_T2)}, {s(S_T0)}, 96")
        e(f"s_ashr_i32 {s(S_T3)}, {s(S_T2)}, 31")
        e(f"s_add_u32 {s(S_QSRD)}, s32, {s(S_T2)}")
        e(f"s_addc_u32 {s(S_QSRD+1)}, s33, {s(S_T3)}")
        QPLACE = {0: ('p', 0), 1: ('p', QBUF), 2: ('p', 2 * QBUF), 3: ('r', 2 * SLOT), 4: ('r', 3 * SLOT), 5: ('p', 0)}
        def qload(t):
            kind, off_ = QPLACE[t]
            e(f"s_add_u32 m0, {s(S_PRIV if kind == 'p' else S_WOFF)}, {off_}")
            e(f"s_mov_b32 {s(S_T3)}, {t * 4096}")
            for b in range(4):
                off = f" offset:{b * BLK}" if b else ""
                e(f"buffer_load_dwordx4 {v(QV+b)}, {s(S_QSRD,4)}, {s(S_T3)} offen{off}{self.qfl} lds")
                vm.append(f"Q{t}")
        qload(0)
        if opt.get("fine"): self.stamp(4)
        e(f"s_sub_u32 {s(S_T2)}, {s(S_T1)}, 2144")
        e(f"s_ashr_i32 {s(S_T3)}, {s(S_T2)}, 31")
        e(f"s_add_u32 {s(S_VSRD)}, s36, {s(S_T2)}")
        e(f"s_addc_u32 {s(S_VSRD+1)}, s37, {s(S_T3)}")
        e(self.m0set(0))
        e("s_nop 0")
        e(self.dma(2)); e(self.dma(3)); vm += ["V0", "V0"]
        if opt.get("fine"): self.stamp(5)
        qload(1)
        e(f"s_add_u32 {s(S_OSRD)}, s38, {s(S_T0)}")
        e(f"s_addc_u32 {s(S_OSRD+1)}, s39, 0")
        self.stamp(2)
        def dma_half(tile, kv):
            e(f"s_mov_b32 {s(S_TOFF)}, {tile * 8192}")
            e(self.m0set(tile % R))
            e("s_nop 0")
            for i in ((0, 1) if kv == 'K' else (2, 3)): e(self.dma(i))
            vm.extend([f"{kv}{tile}"] * 2)
        def wait_for(lbl):
            last = max(i for i, x in enumerate(vm) if x == lbl)
            e(f"s_waitcnt vmcnt({len(vm) - 1 - last})")
        TMPC = NEGM
        QA = NEGM + 12
        def qconv(t, after_read=None):
            wait_for(f"Q{t}")
            if not opt.get("fs"): self.stamp(3 + t)
            for ks in range(4):
                kind, off_ = QPLACE[t]
                e(f"ds_read_b128 {v(O(t, 0) + 4 * ks, 4)}, {v(QA if kind == 'p' else QA + 2)} offset:{off_ + 256 * ks}")
            e("s_waitcnt lgkmcnt(0)")
            if after_read: after_read()
            for i in range(16):
                x = O(t, 0) + i
                lo = TMPC + 2 * (i % 4); hi = lo + 1
                e(f"v_lshlrev_b32 {v(lo)}, 16, {v(x)}")
                e(f"v_and_b32 {v(hi)}, {s(S_T2)}, {v(x)}")
                e(f"v_pk_mul_f32 {v(lo,2)}, {v(lo,2)}, {v(V_T0,2)}")
                e(f"v_cvt_pk_bf16_f32 {v(x)}, {v(lo)}, {v(hi)}")
                e(f"v_accvgpr_write_b32 {a(AQ(t,0)+i)}, {v(x)}")
                e(f"v_mov_b32 {v(x)}, 0")
        e(f"v_lshrrev_b32 {v(V_KADDR)}, 1, {v(V_T2)}")
        e(f"v_mul_u32_u24 {v(V_KADDR)}, {QRT}, {v(V_KADDR)}")
        e(f"v_and_b32 {v(V_VADDR)}, 1, {v(V_T2)}")
        e(f"v_mul_u32_u24 {v(V_VADDR)}, {BLK}, {v(V_VADDR)}")
        e(f"v_add_u32 {v(V_KADDR)}, {v(V_KADDR)}, {v(V_VADDR)}")
        e(f"v_lshl_add_u32 {v(V_KADDR)}, {v(V_T3)}, 6, {v(V_KADDR)}")
        e(f"v_lshl_add_u32 {v(V_KADDR)}, {v(V_T0)}, 4, {v(V_KADDR)}")
        e(f"v_mul_u32_u24 {v(QA)}, {BLK}, {v(V_T2)}")
        e(f"v_lshl_add_u32 {v(QA)}, {v(V_T3)}, 6, {v(QA)}")
        e(f"v_lshl_add_u32 {v(QA)}, {v(V_T0)}, 4, {v(QA)}")
        e(f"v_add_u32 {v(QA+2)}, {s(S_WOFF)}, {v(QA)}")
        e(f"v_add_u32 {v(QA)}, {s(S_PRIV)}, {v(QA)}")
        e(f"v_lshrrev_b32 {v(V_VADDR)}, 1, {v(V_T0)}")
        e(f"v_mul_u32_u24 {v(V_VADDR)}, {QRT}, {v(V_VADDR)}")
        e(f"v_and_b32 {v(V_T1)}, 1, {v(V_T0)}")
        e(f"v_mul_u32_u24 {v(NEGM+13)}, {BLK}, {v(V_T1)}")
        e(f"v_add_u32 {v(V_VADDR)}, {v(V_VADDR)}, {v(NEGM+13)}")
        e(f"v_lshl_add_u32 {v(V_VADDR)}, {v(V_T2)}, 6, {v(V_VADDR)}")
        e(f"v_lshl_add_u32 {v(V_VADDR)}, {v(V_T3)}, 3, {v(V_VADDR)}")
        e(f"v_add_u32 {v(V_VADDR)}, {2 * BLK}, {v(V_VADDR)}")
        for i in range(6): e(f"v_mov_b32 {v(L0+i)}, 0")
        for i in range(4): e(f"v_mov_b32 {v(PB[1]+i)}, 0")
        for i in range(32): e(f"v_accvgpr_write_b32 {a(AV(1,0)+i)}, 0")
        for t in range(6):
            for i in range(16, 32): e(f"v_mov_b32 {v(O(t,0)+i)}, 0")
        e(f"s_mov_b32 {s(S_T1)}, 0x3e0293ee")
        e(f"v_mov_b32 {v(V_T0)}, {s(S_T1)}")
        e(f"v_mov_b32 {v(V_T1)}, {s(S_T1)}")
        e(f"s_mov_b32 {s(S_T2)}, 0xffff0000")
        hd = opt.get("hd", "d")
        fs = opt.get("fs")
        def fstamp(i):
            if fs: self.stamp(i)
        qload(2)
        fstamp(3)
        if hd == "d":
            qconv(0, lambda: (fstamp(4), qload(3), fstamp(5)))
            fstamp(6)
        else:
            qconv(0, lambda: qload(3))
            qload(4)
        wait_for("V0")
        fstamp(7)
        e("s_barrier")
        fstamp(8)
        for kt in range(2):
            for ks in range(4): e(self.kread(0, 0, kt, ks))
        for dt in range(8):
            for hh in range(2): e(self.vread(0, 0, dt, hh))
        if hd != "d":
            qload(5)
            dma_half(1, 'K'); dma_half(1, 'V')
        e("s_waitcnt lgkmcnt(15)")
        for kt in range(2):
            for ks in range(4): e(self.qk(0, 0, kt, ks))
        fstamp(9)
        K1 = [self.kread(1, 1 % R, kt, ks) for kt in range(2) for ks in range(4)]
        V1 = [self.vread(1, 1 % R, dt, hh) for dt in range(8) for hh in range(2)]
        for t in range(6):
            if t + 1 <= 5:
                def after(t=t):
                    if hd == "d":
                        if t == 0: qload(4)
                        if t == 1: qload(5)
                        if t == 2: dma_half(1, 'K'); dma_half(1, 'V')
                        if t == 3: dma_half(2, 'K'); dma_half(2, 'V')
                    else:
                        if t == 2: dma_half(2, 'K'); dma_half(2, 'V')
                        if t == 3: dma_half(3, 'K'); dma_half(3, 'V')
                qconv(t + 1, after)
                e("s_nop 1")
            if t == 0: e("s_waitcnt lgkmcnt(0)")
            if t == 5:
                wait_for("K1")
                e("s_barrier")
                if not opt.get("fs"): self.stamp(9)
                for x in K1: e(x)
                e("s_waitcnt lgkmcnt(0)")
            self.period(0, t, [], {}, do_pv=True)
        wait_for("V1")
        e("s_barrier")
        for x in V1: e(x)
        if hd == "d":
            dma_half(3, 'K'); dma_half(3, 'V')
        e(f"s_mov_b32 {s(S_TOFF)}, {(self.D + 1) * 8192}")
        self.stamp(10, 1)
        e(f"s_mov_b32 {s(S_CNT)}, {NT // R}")
        e("s_branch L_it1")
        e(".p2align 6")
        self.lab("L_loop")
        self.inloop = True
        for j in range(R):
            if j == 1: self.lab("L_it1")
            self.iteration(j)
        e("s_cbranch_scc1 L_loop")
        self.inloop = False
        self.stamp(11, 2)
        red = self.lreduce()
        e("s_nop 1")
        for dt in range(8):
            e(self.pv(63 & 1, 5, dt))
            for x in red[2*dt:2*dt+2]: e(x)
        for x in red[16:]: e(x)
        if not opt.get("nocheck"):
            e(f"v_max3_f32 {v(V_T0)}, {v(L0)}, {v(L0+1)}, {v(L0+2)}")
            e(f"v_min3_f32 {v(V_T1)}, {v(L0)}, {v(L0+1)}, {v(L0+2)}")
            e(f"v_max3_f32 {v(V_T0)}, {v(V_T0)}, {v(L0+3)}, {v(L0+4)}")
            e(f"v_min3_f32 {v(V_T1)}, {v(V_T1)}, {v(L0+3)}, {v(L0+4)}")
            e(f"v_max_f32 {v(V_T0)}, {v(V_T0)}, {v(L0+5)}")
            e(f"v_min_f32 {v(V_T1)}, {v(V_T1)}, {v(L0+5)}")
            e(f"s_mov_b32 {s(S_T0)}, 0x53800000")
            e(f"s_mov_b32 {s(S_T1)}, 0x37800000")
            e(f"v_cmp_ge_f32 vcc, {s(S_T0)}, {v(V_T0)}")
            e(f"v_cmp_le_f32 {s(S_T2,2)}, {s(S_T1)}, {v(V_T1)}")
            e(f"s_and_b64 vcc, vcc, {s(S_T2,2)}")
            e("s_cmp_eq_u64 vcc, -1")
            e("s_cbranch_scc0 L_fallback")
        self.lab("L_norm")
        for t in range(6): e(f"v_rcp_f32 {v(L0+t)}, {v(L0+t)}")
        self.stamp(12, 3)
        self.epilogue()
        self.stamp(13, 4)
        if opt.get("stamp") and opt.get("dbg") is None:
            e("s_waitcnt vmcnt(0)")
            self.stamp(14, 5)
            e("s_waitcnt lgkmcnt(0)")
            e(f"s_mov_b32 {s(S_WS+2)}, 0x20000000")
            e(f"s_mov_b32 {s(S_WS+3)}, 0x20000")
            e(f"v_mov_b32 {v(V_T0)}, 0")
            for i in range(16): e(f"v_writelane_b32 {v(V_T0)}, {s(S_RST + 2*i)}, {i}")
            for i in range(8): e(f"v_writelane_b32 {v(V_T0)}, {s(S_CST + 2*i)}, {16+i}")
            e(f"s_lshl_b32 {s(S_T0)}, s2, 2")
            e(f"s_add_u32 {s(S_T0)}, {s(S_T0)}, {s(S_W)}")
            e(f"s_lshl_b32 {s(S_T0)}, {s(S_T0)}, 8")
            e(f"v_lshlrev_b32 {v(V_T1)}, 2, {v(V_LANE)}")
            e(f"buffer_store_dword {v(V_T0)}, {v(V_T1)}, {s(S_WS,4)}, {s(S_T0)} offen")
        if opt.get("dbg") is not None:
            e("s_waitcnt vmcnt(0)")
            self.stamp(14, 5)
            e(f"s_load_dwordx2 {s(S_WS,2)}, s[0:1], 32")
            e("s_waitcnt lgkmcnt(0)")
            e(f"s_cmp_lg_u32 s2, {opt['dbg']}")
            e("s_cbranch_scc1 L_end")
            e(f"s_cmp_lg_u32 {s(S_W)}, 0")
            e("s_cbranch_scc1 L_end")
            e(f"s_mov_b32 {s(S_WS+2)}, 256")
            e(f"s_mov_b32 {s(S_WS+3)}, 0x20000")
            e(f"v_mov_b32 {v(V_T0)}, 0")
            for i in range(1, 15):
                e(f"s_sub_u32 {s(S_T0)}, {s(S_RST + 2*i)}, {s(S_RST)}")
                e(f"v_writelane_b32 {v(V_T0)}, {s(S_T0)}, {i - 1}")
            e(f"s_sub_u32 {s(S_T0)}, {s(S_CST + 4)}, {s(S_CST + 2)}")
            e(f"v_writelane_b32 {v(V_T0)}, {s(S_T0)}, 14")
            e(f"s_sub_u32 {s(S_T0)}, {s(S_CST + 10)}, {s(S_CST)}")
            e(f"v_writelane_b32 {v(V_T0)}, {s(S_T0)}, 15")
            e(f"v_lshlrev_b32 {v(V_T1)}, 2, {v(V_LANE)}")
            e(f"buffer_store_dword {v(V_T0)}, {v(V_T1)}, {s(S_WS,4)}, 0 offen")
        self.lab("L_end")
        e("s_endpgm")
        if not opt.get("nocheck"): self.fallback()
        self.o.append(f""".section .rodata,"a"
.p2align 6
.amdhsa_kernel {KN}
  .amdhsa_next_free_vgpr 512
  .amdhsa_next_free_sgpr 102
  .amdhsa_accum_offset 256
  .amdhsa_group_segment_fixed_size 0
  .amdhsa_kernarg_size 48
  .amdhsa_user_sgpr_count 2
  .amdhsa_user_sgpr_kernarg_segment_ptr 1
  .amdhsa_system_sgpr_workgroup_id_x 1
.end_amdhsa_kernel""")
        return "\n".join(self.o) + "\n"

    def epilogue(self):
        e = self.e; opt = self.opt
        WA, RA, GA = V_T2, V_T3, V_OST
        PK = [SB[0], NEGM]
        RD = [160 - 160 + 0, 0]
        e(f"s_mul_i32 {s(S_T1)}, {s(S_W)}, {PRIV}")
        e(f"s_add_u32 {s(S_T1)}, {s(S_T1)}, {R * SLOT}")
        e(f"v_and_b32 {v(V_T0)}, 15, {v(V_LANE)}")
        e(f"v_lshrrev_b32 {v(V_T1)}, 4, {v(V_LANE)}")
        e(f"v_mul_u32_u24 {v(WA)}, 272, {v(V_T0)}")
        e(f"v_lshl_add_u32 {v(WA)}, {v(V_T1)}, 3, {v(WA)}")
        e(f"v_add_u32 {v(WA)}, {s(S_T1)}, {v(WA)}")
        e(f"v_mul_u32_u24 {v(RA)}, 272, {v(V_T1)}")
        e(f"v_lshl_add_u32 {v(RA)}, {v(V_T0)}, 4, {v(RA)}")
        e(f"v_add_u32 {v(RA)}, {s(S_T1)}, {v(RA)}")
        e(f"s_mul_i32 {s(S_T1)}, {s(S_W)}, {96 * 256}")
        e(f"v_lshlrev_b32 {v(GA)}, 4, {v(V_LANE)}")
        e(f"v_add_u32 {v(GA)}, {s(S_T1)}, {v(GA)}")
        def pack(t):
            L = L0 + t
            e(f"v_mov_b32 {v(V_T0)}, {v(L)}")
            e(f"v_mov_b32 {v(V_T1)}, {v(L)}")
            for dt in range(8):
                o = O(t, dt)
                e(f"v_pk_mul_f32 {v(o,2)}, {v(o,2)}, {v(V_T0,2)}")
                e(f"v_pk_mul_f32 {v(o+2,2)}, {v(o+2,2)}, {v(V_T0,2)}")
            for dt in range(8):
                o = O(t, dt)
                e(f"v_cvt_pk_bf16_f32 {v(o)}, {v(o)}, {v(o+1)}")
                e(f"v_cvt_pk_bf16_f32 {v(o+1)}, {v(o+2)}, {v(o+3)}")
                e(f"ds_write_b64 {v(WA)}, {v(o,2)} offset:{(t & 1) * STG + 32 * dt}")
        def unload(t):
            for k in range(4):
                e(f"ds_read_b128 {v(O(t, 0) + 4 * k, 4)}, {v(RA)} offset:{(t & 1) * STG + k * 4 * 272}")
        def store(t):
            e(f"s_mov_b32 {s(S_T0)}, {t * 4096}")
            for k in range(4):
                if not opt.get("nostore"):
                    e(f"buffer_store_dwordx4 {v(O(t, 0) + 4 * k, 4)}, {v(GA)}, {s(S_OSRD,4)}, {s(S_T0)} offen offset:{1024 * k}{self.stfl}")
        pack(0); unload(0)
        for t in range(1, 6):
            pack(t)
            e("s_waitcnt lgkmcnt(8)")
            store(t - 1)
            unload(t)
        e("s_waitcnt lgkmcnt(0)")
        store(5)

    def fallback(self):
        e = self.e
        FA, FB, FK, FV = V_T0, V_T1, V_T2, V_T3
        MX = L0
        self.lab("L_fallback")
        e("s_waitcnt vmcnt(0) lgkmcnt(0)")
        e("s_barrier")
        e(f"s_lshl_b32 {s(S_T0)}, {s(S_W)}, 11")
        e(f"v_subrev_u32 {v(FA)}, {s(S_T0)}, {v(V_OFFA)}")
        e(f"v_subrev_u32 {v(FB)}, {s(S_T0)}, {v(V_OFFB)}")
        e(f"s_mul_i32 {s(S_WOFF)}, {s(S_W)}, {SLOT}")
        e(f"v_add_u32 {v(FK)}, {s(S_WOFF)}, {v(V_KADDR)}")
        e(f"v_add_u32 {v(FV)}, {s(S_WOFF)}, {v(V_VADDR)}")
        def load_tile(with_v):
            for q in range(4):
                e(f"s_add_u32 m0, {s(S_WOFF)}, {q * QRT}")
                e(f"s_add_u32 {s(S_TOFF)}, {s(S_T1)}, {q * 2048}")
                for i in range(4 if with_v else 2): e(self.dma(i, FA, FB))
            e("s_waitcnt vmcnt(0)")
            for kt in range(2):
                for ks in range(4): e(self.kread(0, 0, kt, ks, FK))
            if with_v:
                for dt in range(8):
                    for hh in range(2): e(self.vread(0, 0, dt, hh, FV))
            e("s_waitcnt lgkmcnt(0)")
        for t in range(6): e(f"v_mov_b32 {v(MX+t)}, 0xff800000")
        e(f"s_mov_b32 {s(S_T1)}, 0")
        self.lab("L_fb1")
        load_tile(False)
        for t in range(6):
            for kt in range(2):
                for ks in range(4): e(self.qk(0, t, kt, ks))
            e("s_nop 7")
            e("s_nop 1")
            S = SB[t & 1]
            for i in range(0, 8, 2): e(f"v_max3_f32 {v(MX+t)}, {v(MX+t)}, {v(S+i)}, {v(S+i+1)}")
        e(f"s_add_u32 {s(S_T1)}, {s(S_T1)}, 8192")
        e(f"s_cmp_lt_u32 {s(S_T1)}, {NT * 8192}")
        e("s_cbranch_scc1 L_fb1")
        for x in self.lreduce("v_max_f32"):
            e(x); e("s_nop 1")
        for t in range(6):
            for r in range(4): e(f"v_sub_f32 {v(NEGM + 4*t + r)}, 0, {v(MX+t)}")
        for t in range(6): e(f"v_mov_b32 {v(L0+t)}, 0")
        for i in range(192): e(f"v_mov_b32 {v(i)}, 0")
        e(f"s_mov_b32 {s(S_T1)}, 0")
        self.lab("L_fb2")
        load_tile(True)
        for t in range(6):
            for kt in range(2):
                for ks in range(4): e(self.qk(0, t, kt, ks, v(NEGM + 4*t, 4)))
            e("s_nop 7")
            e("s_nop 1")
            S = SB[t & 1]; P = PB[t & 1]
            for i in range(8): e(f"v_exp_f32 {v(S+i)}, {v(S+i)}")
            e("s_nop 0")
            for i in range(8): e(f"v_add_f32 {v(L0+t)}, {v(L0+t)}, {v(S+i)}")
            for i in range(4): e(f"v_cvt_pk_bf16_f32 {v(P+i)}, {v(S+2*i)}, {v(S+2*i+1)}")
            e("s_nop 1")
            for dt in range(8): e(self.pv(0, t, dt))
        e(f"s_add_u32 {s(S_T1)}, {s(S_T1)}, 8192")
        e(f"s_cmp_lt_u32 {s(S_T1)}, {NT * 8192}")
        e("s_cbranch_scc1 L_fb2")
        for x in self.lreduce():
            e(x); e("s_nop 1")
        e("s_nop 7")
        e("s_branch L_norm")

if __name__ == "__main__":
    opt = {}
    out = sys.argv[1]
    for x in sys.argv[2:]:
        k, _, val = x.partition("=")
        opt[k] = eval(val) if val else True
    open(out, "w").write(Gen(opt).build())
```

```python
import sys

KN = "standalone__mha_softmax__near_ridge_kernel"
M16 = "v_mfma_f32_16x16x32_bf16"
NT = 64
BLK = 1056
QRT = 4 * BLK
SLOT = 4 * QRT
R = 4
STG = 16 * 272
QBUF = 4 * BLK
PRIV = 3 * QBUF

def O(t, dt): return 32 * t + 4 * dt
SB = [192, 200]
PB = [208, 212]
L0 = 216
V_KADDR, V_VADDR, V_OFFA, V_OFFB = 222, 223, 224, 225
V_LANE, V_OST, V_T0, V_T1, V_T2, V_T3 = 226, 227, 228, 229, 230, 231
NEGM = 232
def AQ(t, ks): return 16 * t + 4 * ks
def AK(p, kt, ks): return 96 + 32 * p + 16 * kt + 4 * ks
def AV(p, dt): return 160 + 32 * p + 4 * dt

S_QSRD, S_KSRD, S_VSRD, S_OSRD = 4, 8, 12, 16
S_W, S_WOFF, S_TOFF, S_CNT, S_T0, S_T1, S_T2, S_T3 = 20, 21, 22, 23, 24, 25, 26, 27
S_WS = 28
S_PRIV = 88
S_CMP = 90
S_RST = 40
S_CST = 72

def v(a, n=1): return f"v{a}" if n == 1 else f"v[{a}:{a+n-1}]"
def a(x, n=1): return f"a{x}" if n == 1 else f"a[{x}:{x+n-1}]"
def s(x, n=1): return f"s{x}" if n == 1 else f"s[{x}:{x+n-1}]"

class Gen:
    def __init__(self, opt):
        self.o = []
        self.opt = opt
        self.LDS = R * SLOT + 4 * PRIV
        self.ldfl = opt.get("ldfl", " nt")
        self.qfl = opt.get("qfl", " nt")
        self.stfl = opt.get("stfl", " sc0 sc1 nt")
        self.inloop = False
        self.D = 3
        self.peel = opt.get('peel', True)
        self.exitpos = 2 if self.peel else 3
    def e(self, line): self.o.append("    " + line)
    def lab(self, name): self.o.append(name + ":")
    def c(self, txt): self.o.append("    ; " + txt)
    def stamp(self, idx, cyc=None):
        if self.opt.get("stamp"):
            self.e(f"s_memrealtime {s(S_RST + 2 * idx, 2)}")
            if cyc is not None: self.e(f"s_memtime {s(S_CST + 2 * cyc, 2)}")

    def dma(self, i, va=V_OFFA, vb=V_OFFB):
        srd = S_KSRD if i < 2 else S_VSRD
        off = f" offset:{i * BLK}" if i else ""
        return f"buffer_load_dwordx4 {v(va if i % 2 == 0 else vb)}, {s(srd,4)}, {s(S_TOFF)} offen{off}{self.ldfl} lds"
    def m0set(self, slot): return f"s_add_u32 m0, {s(S_WOFF)}, {slot * SLOT}"
    def kread(self, p, slot, kt, ks, addr=V_KADDR):
        return f"ds_read_b128 {a(AK(p, kt, ks), 4)}, {v(addr)} offset:{slot * SLOT + kt * 2 * QRT + 256 * ks}"
    def vread(self, p, slot, dt, hh, addr=V_VADDR):
        return f"ds_read_b64_tr_b16 {a(AV(p, dt) + 2 * hh, 2)}, {v(addr)} offset:{slot * SLOT + hh * 2 * QRT + 256 * (dt >> 1) + 32 * (dt & 1)}"
    def qk(self, p, t, kt, ks, cinit="0"):
        d = v(SB[t & 1] + 4 * kt, 4)
        return f"{M16} {d}, {a(AK(p, kt, ks), 4)}, {a(AQ(t, ks), 4)}, {cinit if ks == 0 else d}"
    def pv(self, p, t, dt):
        d = v(O(t, dt), 4)
        return f"{M16} {d}, {a(AV(p, dt), 4)}, {v(PB[t & 1], 4)}, {d}"

    def period(self, j, t, lds, shadow, do_qk=True, do_pv=True, extras=None):
        jq, tq = (j, t + 1) if t < 5 else (j + 1, 0)
        jp, tp = (j, t - 1) if t > 0 else (j - 1, 5)
        mf = []
        if self.opt.get("order", "88") == "4444":
            for ks in range(4): mf.append(self.qk(jq & 1, tq, 0, ks) if do_qk else None)
            for dt in range(4): mf.append(self.pv(jp & 1, tp, dt) if do_pv else None)
            for ks in range(4): mf.append(self.qk(jq & 1, tq, 1, ks) if do_qk else None)
            for dt in range(4, 8): mf.append(self.pv(jp & 1, tp, dt) if do_pv else None)
        elif self.opt.get("order", "88") == "88":
            for kt in range(2):
                for ks in range(4): mf.append(self.qk(jq & 1, tq, kt, ks) if do_qk else None)
            for dt in range(8): mf.append(self.pv(jp & 1, tp, dt) if do_pv else None)
        elif self.opt["order"] == "88r":
            for dt in range(8): mf.append(self.pv(jp & 1, tp, dt) if do_pv else None)
            for kt in range(2):
                for ks in range(4): mf.append(self.qk(jq & 1, tq, kt, ks) if do_qk else None)
        S = SB[t & 1]; P = PB[t & 1]; L = L0 + t
        ex = lambda i: f"v_exp_f32 {v(S+i)}, {v(S+i)}"
        ad = lambda i: f"v_add_f32 {v(L)}, {v(L)}, {v(S+i)}"
        cv = lambda i: f"v_cvt_pk_bf16_f32 {v(P+i)}, {v(S+2*i)}, {v(S+2*i+1)}"
        lds = list(lds) + [None] * (4 - len(lds))
        fill = {0: [ex(0)], 1: [ex(1)], 2: [lds[0], ad(0)], 3: [ex(2)], 4: [ad(1), cv(0)], 5: [ex(3)],
                6: [lds[1], ad(2)], 7: [ex(4)], 8: [ad(3), cv(1)], 9: [ex(5)], 10: [lds[2], ad(4)],
                11: [ex(6)], 12: [ad(5), cv(2)], 13: [ex(7)], 14: [lds[3], ad(6)], 15: [ad(7), cv(3)]}
        abl = self.opt.get("abl", "") if self.inloop else ""
        for g in range(16):
            if mf[g]: self.e(mf[g])
            for x in shadow.get(g, []):
                if 'D' in abl and x.startswith("buffer_load"): continue
                if 'B' in abl and x.startswith("s_barrier"): continue
                self.e(x)
            for x in fill[g]:
                if x is None: continue
                if 'e' in abl and x.startswith("v_exp"): continue
                if 'a' in abl and x.startswith("v_add"): continue
                if 'c' in abl and x.startswith("v_cvt"): continue
                if 'l' in abl and x.startswith("ds_read"): continue
                self.e(x)
            if extras:
                n = len(extras)
                for x in extras[g * n // 16:(g + 1) * n // 16]: self.e(x)

    def iteration(self, j):
        self.c(f"---- iteration j%R={j % R}")
        p1 = (j + 1) & 1
        s1 = (j + 1) % R
        K = [self.kread(p1, s1, kt, ks) for kt in range(2) for ks in range(4)]
        V = [self.vread(p1, s1, dt, hh) for dt in range(8) for hh in range(2)]
        sched = [K[0:4], [K[4]] + V[0:3], [K[5]] + V[3:6], [K[6]] + V[6:9], [K[7]] + V[9:12], V[12:16]]
        sl = (j + self.D) % R
        pos = self.opt.get("dmapos", {0: [(1, 'm'), (3, 0), (7, 1), (11, 2)], 1: [(3, 3), (7, 'inc')]})
        for t in range(6):
            sh = {}
            if t == 0: sh[0] = [f"s_waitcnt vmcnt({4 * (self.D - 2)})", "s_barrier"]
            if t == 1: sh[0] = ["s_waitcnt lgkmcnt(4)"]
            if t == 5: sh[0] = ["s_waitcnt lgkmcnt(3)"]
            for (g, what) in pos.get(t, []):
                if what == 'm': ins = self.m0set(sl)
                elif what == 'inc': ins = f"s_add_u32 {s(S_TOFF)}, {s(S_TOFF)}, 8192"
                else: ins = self.dma(what)
                sh.setdefault(g, []).append(ins)
            if t == 5 and j % R == self.exitpos:
                sh.setdefault(3, []).append(f"s_sub_u32 {s(S_CNT)}, {s(S_CNT)}, 1")
                sh.setdefault(5, []).append(f"s_cmp_lg_u32 {s(S_CNT)}, 0")
            self.period(j, t, sched[t], sh)

    def lreduce(self, op="v_add_f32", regs=None):
        regs = regs or [L0 + t for t in range(6)]
        red = []
        for t in range(6): red.append(f"v_mov_b32 {v(NEGM+t)}, {v(regs[t])}")
        for t in range(6): red.append(f"v_permlane32_swap_b32 {v(regs[t])}, {v(NEGM+t)}")
        for t in range(6): red.append(f"{op} {v(regs[t])}, {v(regs[t])}, {v(NEGM+t)}")
        for t in range(6): red.append(f"v_mov_b32 {v(NEGM+t)}, {v(regs[t])}")
        for t in range(6): red.append(f"v_permlane16_swap_b32 {v(regs[t])}, {v(NEGM+t)}")
        for t in range(6): red.append(f"{op} {v(regs[t])}, {v(regs[t])}, {v(NEGM+t)}")
        return red

    def build(self):
        opt = self.opt
        e = self.e
        self.o.append(f"""; MHA forward, B=8 H=32 Sq=384 Sk=2048 D=128, bf16.  One workgroup (4 waves x 96 query rows) per head.
; @launch grid=(256,1,1) block=(256,1,1) lds={self.LDS}
.amdgcn_target "amdgcn-amd-amdhsa--gfx950"
.text
.globl {KN}
.p2align 8
.type {KN},@function
{KN}:""")
        e("s_load_dwordx4 s[32:35], s[0:1], 0")
        e("s_load_dwordx4 s[36:39], s[0:1], 16")
        e("s_cmp_ge_u32 s2, 256")
        e("s_cbranch_scc1 L_end")
        self.stamp(0, 0)
        for _ in range(opt.get("sleep0", 0)): e("s_sleep 32")
        if opt.get("stamp") and opt.get("dbg") is None:
            e(f"s_load_dwordx2 {s(S_WS,2)}, s[0:1], 40")
        e(f"v_lshrrev_b32 {v(V_T0)}, 6, v0")
        e(f"v_and_b32 {v(V_LANE)}, 63, v0")
        e(f"v_readfirstlane_b32 {s(S_W)}, {v(V_T0)}")
        e(f"v_lshrrev_b32 {v(V_T0)}, 4, {v(V_LANE)}")
        e(f"v_and_b32 {v(V_T1)}, 15, {v(V_LANE)}")
        e(f"v_lshrrev_b32 {v(V_T2)}, 2, {v(V_T1)}")
        e(f"v_and_b32 {v(V_T3)}, 3, {v(V_LANE)}")
        e(f"v_lshlrev_b32 {v(V_OFFB)}, 8, {v(V_T2)}")
        e(f"v_lshl_add_u32 {v(V_OFFB)}, {v(V_T0)}, 6, {v(V_OFFB)}")
        e(f"v_lshl_add_u32 {v(V_OFFB)}, {v(V_T3)}, 4, {v(V_OFFB)}")
        if opt.get("dmalin"):
            e(f"v_lshlrev_b32 {v(V_OFFB)}, 4, {v(V_LANE)}")
        e(f"s_lshl_b32 {s(S_T0)}, {s(S_W)}, 11")
        e(f"s_mul_i32 {s(S_WOFF)}, {s(S_W)}, {QRT}")
        e(f"v_add_u32 {v(V_OFFB)}, {s(S_T0)}, {v(V_OFFB)}")
        e(f"v_add_u32 {v(V_OFFA)}, 32, {v(V_OFFB)}")
        QV = NEGM + 8
        e(f"s_mul_i32 {s(S_T0)}, {s(S_W)}, {96 * 256 - 2048}")
        e(f"v_add_u32 {v(QV+3)}, {s(S_T0)}, {v(V_OFFB)}")
        e(f"v_add_u32 {v(QV+2)}, 32, {v(QV+3)}")
        e(f"v_add_u32 {v(QV+1)}, 64, {v(QV+3)}")
        e(f"v_add_u32 {v(QV)}, 96, {v(QV+3)}")
        e(f"s_mul_i32 {s(S_PRIV)}, {s(S_W)}, {PRIV}")
        e(f"s_add_u32 {s(S_PRIV)}, {s(S_PRIV)}, {R * SLOT}")
        if opt.get("remap", True):
            e(f"s_and_b32 {s(S_T0)}, s2, 7")
            e(f"s_lshl_b32 {s(S_T0)}, {s(S_T0)}, 5")
            e(f"s_lshr_b32 {s(S_T1)}, s2, 3")
            e(f"s_add_u32 s3, {s(S_T0)}, {s(S_T1)}")
        else:
            e("s_mov_b32 s3, s2")
        e(f"s_mul_i32 {s(S_T0)}, s3, 98304")
        e(f"s_lshl_b32 {s(S_T1)}, s3, 19")
        e(f"s_mov_b32 {s(S_QSRD+2)}, {98304 + 96}")
        e(f"s_mov_b32 {s(S_QSRD+3)}, 0x20000")
        e(f"s_mov_b32 {s(S_KSRD+2)}, {524288 + 32}")
        e(f"s_mov_b32 {s(S_KSRD+3)}, 0x20000")
        e(f"s_mov_b32 {s(S_VSRD+2)}, {524288 + 2144}")
        e(f"s_mov_b32 {s(S_VSRD+3)}, 0x20000")
        e(f"s_mov_b32 {s(S_OSRD+2)}, 98304")
        e(f"s_mov_b32 {s(S_OSRD+3)}, 0x20000")
        e(f"s_mov_b32 {s(S_TOFF)}, 0")
        e(self.m0set(0))
        e(f"s_sub_u32 {s(S_T2)}, {s(S_T1)}, 32")
        e(f"s_ashr_i32 {s(S_T3)}, {s(S_T2)}, 31")
        e("s_waitcnt lgkmcnt(0)")
        self.stamp(1)
        e(f"s_add_u32 {s(S_KSRD)}, s34, {s(S_T2)}")
        e(f"s_addc_u32 {s(S_KSRD+1)}, s35, {s(S_T3)}")
        vm = []
        e(self.dma(0)); e(self.dma(1)); vm += ["K0", "K0"]
        if opt.get("fine"): self.stamp(3)
        e(f"s_sub_u32 {s(S_T2)}, {s(S_T0)}, 96")
        e(f"s_ashr_i32 {s(S_T3)}, {s(S_T2)}, 31")
        e(f"s_add_u32 {s(S_QSRD)}, s32, {s(S_T2)}")
        e(f"s_addc_u32 {s(S_QSRD+1)}, s33, {s(S_T3)}")
        QPLACE = {0: ('p', 0), 1: ('p', QBUF), 2: ('p', 2 * QBUF), 3: ('r', 2 * SLOT), 4: ('r', 3 * SLOT), 5: ('p', 0)}
        def qload(t):
            kind, off_ = QPLACE[t]
            e(f"s_add_u32 m0, {s(S_PRIV if kind == 'p' else S_WOFF)}, {off_}")
            e(f"s_mov_b32 {s(S_T3)}, {t * 4096}")
            for b in range(4):
                off = f" offset:{b * BLK}" if b else ""
                e(f"buffer_load_dwordx4 {v(QV+b)}, {s(S_QSRD,4)}, {s(S_T3)} offen{off}{self.qfl} lds")
                vm.append(f"Q{t}")
        qload(0)
        if opt.get("fine"): self.stamp(4)
        e(f"s_sub_u32 {s(S_T2)}, {s(S_T1)}, 2144")
        e(f"s_ashr_i32 {s(S_T3)}, {s(S_T2)}, 31")
        e(f"s_add_u32 {s(S_VSRD)}, s36, {s(S_T2)}")
        e(f"s_addc_u32 {s(S_VSRD+1)}, s37, {s(S_T3)}")
        e(self.m0set(0))
        e("s_nop 0")
        e(self.dma(2)); e(self.dma(3)); vm += ["V0", "V0"]
        if opt.get("fine"): self.stamp(5)
        qload(1)
        e(f"s_add_u32 {s(S_OSRD)}, s38, {s(S_T0)}")
        e(f"s_addc_u32 {s(S_OSRD+1)}, s39, 0")
        self.stamp(2)
        def dma_half(tile, kv):
            e(f"s_mov_b32 {s(S_TOFF)}, {tile * 8192}")
            e(self.m0set(tile % R))
            e("s_nop 0")
            for i in ((0, 1) if kv == 'K' else (2, 3)): e(self.dma(i))
            vm.extend([f"{kv}{tile}"] * 2)
        def wait_for(lbl):
            last = max(i for i, x in enumerate(vm) if x == lbl)
            e(f"s_waitcnt vmcnt({len(vm) - 1 - last})")
        TMPC = NEGM
        QA = NEGM + 12
        def qconv(t, after_read=None):
            wait_for(f"Q{t}")
            if not opt.get("fs"): self.stamp(3 + t)
            for ks in range(4):
                kind, off_ = QPLACE[t]
                e(f"ds_read_b128 {v(O(t, 0) + 4 * ks, 4)}, {v(QA if kind == 'p' else QA + 2)} offset:{off_ + 256 * ks}")
            e("s_waitcnt lgkmcnt(0)")
            if after_read: after_read()
            for i in range(16):
                x = O(t, 0) + i
                lo = TMPC + 2 * (i % 4); hi = lo + 1
                e(f"v_lshlrev_b32 {v(lo)}, 16, {v(x)}")
                e(f"v_and_b32 {v(hi)}, {s(S_T2)}, {v(x)}")
                e(f"v_pk_mul_f32 {v(lo,2)}, {v(lo,2)}, {v(V_T0,2)}")
                e(f"v_cvt_pk_bf16_f32 {v(x)}, {v(lo)}, {v(hi)}")
                e(f"v_accvgpr_write_b32 {a(AQ(t,0)+i)}, {v(x)}")
                e(f"v_mov_b32 {v(x)}, 0")
        e(f"v_lshrrev_b32 {v(V_KADDR)}, 1, {v(V_T2)}")
        e(f"v_mul_u32_u24 {v(V_KADDR)}, {QRT}, {v(V_KADDR)}")
        e(f"v_and_b32 {v(V_VADDR)}, 1, {v(V_T2)}")
        e(f"v_mul_u32_u24 {v(V_VADDR)}, {BLK}, {v(V_VADDR)}")
        e(f"v_add_u32 {v(V_KADDR)}, {v(V_KADDR)}, {v(V_VADDR)}")
        e(f"v_lshl_add_u32 {v(V_KADDR)}, {v(V_T3)}, 6, {v(V_KADDR)}")
        e(f"v_lshl_add_u32 {v(V_KADDR)}, {v(V_T0)}, 4, {v(V_KADDR)}")
        e(f"v_mul_u32_u24 {v(QA)}, {BLK}, {v(V_T2)}")
        e(f"v_lshl_add_u32 {v(QA)}, {v(V_T3)}, 6, {v(QA)}")
        e(f"v_lshl_add_u32 {v(QA)}, {v(V_T0)}, 4, {v(QA)}")
        e(f"v_add_u32 {v(QA+2)}, {s(S_WOFF)}, {v(QA)}")
        e(f"v_add_u32 {v(QA)}, {s(S_PRIV)}, {v(QA)}")
        e(f"v_lshrrev_b32 {v(V_VADDR)}, 1, {v(V_T0)}")
        e(f"v_mul_u32_u24 {v(V_VADDR)}, {QRT}, {v(V_VADDR)}")
        e(f"v_and_b32 {v(V_T1)}, 1, {v(V_T0)}")
        e(f"v_mul_u32_u24 {v(NEGM+13)}, {BLK}, {v(V_T1)}")
        e(f"v_add_u32 {v(V_VADDR)}, {v(V_VADDR)}, {v(NEGM+13)}")
        e(f"v_lshl_add_u32 {v(V_VADDR)}, {v(V_T2)}, 6, {v(V_VADDR)}")
        e(f"v_lshl_add_u32 {v(V_VADDR)}, {v(V_T3)}, 3, {v(V_VADDR)}")
        e(f"v_add_u32 {v(V_VADDR)}, {2 * BLK}, {v(V_VADDR)}")
        for i in range(6): e(f"v_mov_b32 {v(L0+i)}, 0")
        for i in range(4): e(f"v_mov_b32 {v(PB[1]+i)}, 0")
        for i in range(32): e(f"v_accvgpr_write_b32 {a(AV(1,0)+i)}, 0")
        for t in range(6):
            for i in range(16, 32): e(f"v_mov_b32 {v(O(t,0)+i)}, 0")
        self.epi_addr()
        e(f"s_mov_b32 {s(S_T1)}, 0x3e0293ee")
        e(f"v_mov_b32 {v(V_T0)}, {s(S_T1)}")
        e(f"v_mov_b32 {v(V_T1)}, {s(S_T1)}")
        e(f"s_mov_b32 {s(S_T2)}, 0xffff0000")
        hd = opt.get("hd", "d")
        fs = opt.get("fs")
        def fstamp(i):
            if fs: self.stamp(i)
        qload(2)
        fstamp(3)
        if hd == "d":
            qconv(0, lambda: (fstamp(4), qload(3), fstamp(5)))
            fstamp(6)
        else:
            qconv(0, lambda: qload(3))
            qload(4)
        wait_for("V0")
        fstamp(7)
        e("s_barrier")
        fstamp(8)
        for kt in range(2):
            for ks in range(4): e(self.kread(0, 0, kt, ks))
        for dt in range(8):
            for hh in range(2): e(self.vread(0, 0, dt, hh))
        if hd != "d":
            qload(5)
            dma_half(1, 'K'); dma_half(1, 'V')
        e("s_waitcnt lgkmcnt(15)")
        for kt in range(2):
            for ks in range(4): e(self.qk(0, 0, kt, ks))
        fstamp(9)
        K1 = [self.kread(1, 1 % R, kt, ks) for kt in range(2) for ks in range(4)]
        V1 = [self.vread(1, 1 % R, dt, hh) for dt in range(8) for hh in range(2)]
        for t in range(6):
            if t + 1 <= 5:
                def after(t=t):
                    if hd == "d":
                        if t == 0: qload(4)
                        if t == 1: qload(5)
                        if t == 2: dma_half(1, 'K'); dma_half(1, 'V')
                        if t == 3: dma_half(2, 'K'); dma_half(2, 'V')
                    else:
                        if t == 2: dma_half(2, 'K'); dma_half(2, 'V')
                        if t == 3: dma_half(3, 'K'); dma_half(3, 'V')
                qconv(t + 1, after)
                e("s_nop 1")
            if t == 0: e("s_waitcnt lgkmcnt(0)")
            if t == 5:
                wait_for("K1")
                e("s_barrier")
                if not opt.get("fs"): self.stamp(9)
                for x in K1: e(x)
                e("s_waitcnt lgkmcnt(0)")
            self.period(0, t, [], {}, do_pv=True)
        wait_for("V1")
        e("s_barrier")
        for x in V1: e(x)
        if hd == "d":
            dma_half(3, 'K'); dma_half(3, 'V')
        e(f"s_mov_b32 {s(S_TOFF)}, {(self.D + 1) * 8192}")
        self.stamp(10, 1)
        e(f"s_mov_b32 {s(S_CNT)}, {NT // R}")
        e("s_branch L_it1")
        e(".p2align 6")
        self.lab("L_loop")
        self.inloop = True
        for j in range(R):
            if j == 1: self.lab("L_it1")
            self.iteration(j)
            if self.peel and j == 2: e("s_cbranch_scc0 L_last")
        if self.peel: e("s_branch L_loop")
        else: e("s_cbranch_scc1 L_loop")
        self.inloop = False
        if self.peel:
            self.lab("L_last")
            self.stamp(11, 2)
            self.last_iteration()
        else:
            self.stamp(11, 2)
            red = self.lreduce()
            e("s_nop 1")
            for dt in range(8):
                e(self.pv(63 & 1, 5, dt))
                for x in red[2*dt:2*dt+2]: e(x)
            for x in red[16:]: e(x)
            self.check()
            self.lab("L_norm")
            for t in range(6): e(f"v_rcp_f32 {v(L0+t)}, {v(L0+t)}")
            self.stamp(12, 3)
            self.epilogue()
        self.stamp(13, 4)
        if opt.get("stamp") and opt.get("dbg") is None:
            e("s_waitcnt vmcnt(0)")
            self.stamp(14, 5)
            e("s_waitcnt lgkmcnt(0)")
            e(f"s_mov_b32 {s(S_WS+2)}, 0x20000000")
            e(f"s_mov_b32 {s(S_WS+3)}, 0x20000")
            e(f"v_mov_b32 {v(V_T0)}, 0")
            for i in range(16): e(f"v_writelane_b32 {v(V_T0)}, {s(S_RST + 2*i)}, {i}")
            for i in range(8): e(f"v_writelane_b32 {v(V_T0)}, {s(S_CST + 2*i)}, {16+i}")
            e(f"s_lshl_b32 {s(S_T0)}, s2, 2")
            e(f"s_add_u32 {s(S_T0)}, {s(S_T0)}, {s(S_W)}")
            e(f"s_lshl_b32 {s(S_T0)}, {s(S_T0)}, 8")
            e(f"v_lshlrev_b32 {v(V_T1)}, 2, {v(V_LANE)}")
            e(f"buffer_store_dword {v(V_T0)}, {v(V_T1)}, {s(S_WS,4)}, {s(S_T0)} offen")
        if opt.get("dbg") is not None:
            e("s_waitcnt vmcnt(0)")
            self.stamp(14, 5)
            e(f"s_load_dwordx2 {s(S_WS,2)}, s[0:1], 32")
            e("s_waitcnt lgkmcnt(0)")
            e(f"s_cmp_lg_u32 s2, {opt['dbg']}")
            e("s_cbranch_scc1 L_end")
            e(f"s_cmp_lg_u32 {s(S_W)}, 0")
            e("s_cbranch_scc1 L_end")
            e(f"s_mov_b32 {s(S_WS+2)}, 256")
            e(f"s_mov_b32 {s(S_WS+3)}, 0x20000")
            e(f"v_mov_b32 {v(V_T0)}, 0")
            for i in range(1, 15):
                e(f"s_sub_u32 {s(S_T0)}, {s(S_RST + 2*i)}, {s(S_RST)}")
                e(f"v_writelane_b32 {v(V_T0)}, {s(S_T0)}, {i - 1}")
            e(f"s_sub_u32 {s(S_T0)}, {s(S_CST + 4)}, {s(S_CST + 2)}")
            e(f"v_writelane_b32 {v(V_T0)}, {s(S_T0)}, 14")
            e(f"s_sub_u32 {s(S_T0)}, {s(S_CST + 10)}, {s(S_CST)}")
            e(f"v_writelane_b32 {v(V_T0)}, {s(S_T0)}, 15")
            e(f"v_lshlrev_b32 {v(V_T1)}, 2, {v(V_LANE)}")
            e(f"buffer_store_dword {v(V_T0)}, {v(V_T1)}, {s(S_WS,4)}, 0 offen")
        for _ in range(opt.get("sleep1", 0)): e("s_sleep 32")
        self.lab("L_end")
        e("s_endpgm")
        if not opt.get("nocheck"): self.fallback()
        self.o.append(f""".section .rodata,"a"
.p2align 6
.amdhsa_kernel {KN}
  .amdhsa_next_free_vgpr 512
  .amdhsa_next_free_sgpr 102
  .amdhsa_accum_offset 256
  .amdhsa_group_segment_fixed_size 0
  .amdhsa_kernarg_size 48
  .amdhsa_user_sgpr_count 2
  .amdhsa_user_sgpr_kernarg_segment_ptr 1
  .amdhsa_system_sgpr_workgroup_id_x 1
.end_amdhsa_kernel""")
        return "\n".join(self.o) + "\n"

    def check(self):
        if self.opt.get("nocheck"): return
        e = self.e
        e(f"v_max3_f32 {v(NEGM)}, {v(L0)}, {v(L0+1)}, {v(L0+2)}")
        e(f"v_min3_f32 {v(NEGM+1)}, {v(L0)}, {v(L0+1)}, {v(L0+2)}")
        e(f"v_max3_f32 {v(NEGM)}, {v(NEGM)}, {v(L0+3)}, {v(L0+4)}")
        e(f"v_min3_f32 {v(NEGM+1)}, {v(NEGM+1)}, {v(L0+3)}, {v(L0+4)}")
        e(f"v_max_f32 {v(NEGM)}, {v(NEGM)}, {v(L0+5)}")
        e(f"v_min_f32 {v(NEGM+1)}, {v(NEGM+1)}, {v(L0+5)}")
        e(f"s_mov_b32 {s(S_T1)}, 0x53800000")
        e(f"s_mov_b32 {s(S_T3)}, 0x37800000")
        e(f"v_cmp_ge_f32 vcc, {s(S_T1)}, {v(NEGM)}")
        e(f"v_cmp_le_f32 {s(S_CMP,2)}, {s(S_T3)}, {v(NEGM+1)}")
        e(f"s_and_b64 vcc, vcc, {s(S_CMP,2)}")
        e("s_cmp_eq_u64 vcc, -1")
        e("s_cbranch_scc0 L_fallback")

    def epi_addr(self):
        e = self.e
        WA, RA, GA = V_T2, V_T3, V_OST
        e(f"v_and_b32 {v(NEGM+16)}, 15, {v(V_LANE)}")
        e(f"v_lshrrev_b32 {v(NEGM+17)}, 4, {v(V_LANE)}")
        e(f"v_mul_u32_u24 {v(WA)}, 272, {v(NEGM+16)}")
        e(f"v_lshl_add_u32 {v(WA)}, {v(NEGM+17)}, 3, {v(WA)}")
        e(f"v_add_u32 {v(WA)}, {s(S_PRIV)}, {v(WA)}")
        e(f"v_mul_u32_u24 {v(RA)}, 272, {v(NEGM+17)}")
        e(f"v_lshl_add_u32 {v(RA)}, {v(NEGM+16)}, 4, {v(RA)}")
        e(f"v_add_u32 {v(RA)}, {s(S_PRIV)}, {v(RA)}")
        e(f"s_mul_i32 {s(S_T1)}, {s(S_W)}, {96 * 256}")
        e(f"v_lshlrev_b32 {v(GA)}, 4, {v(V_LANE)}")
        e(f"v_add_u32 {v(GA)}, {s(S_T1)}, {v(GA)}")

    def last_iteration(self):
        e = self.e; opt = self.opt
        WA, RA, GA = V_T2, V_T3, V_OST
        RC = NEGM + 8
        def lred(t):
            L, T = L0 + t, NEGM + t
            return [f"v_mov_b32 {v(T)}, {v(L)}", "s_nop 1", f"v_permlane32_swap_b32 {v(L)}, {v(T)}", "s_nop 0", f"v_add_f32 {v(L)}, {v(L)}, {v(T)}",
                    f"v_mov_b32 {v(T)}, {v(L)}", "s_nop 1", f"v_permlane16_swap_b32 {v(L)}, {v(T)}", "s_nop 0", f"v_add_f32 {v(L)}, {v(L)}, {v(T)}",
                    f"v_rcp_f32 {v(RC+t)}, {v(L)}", "s_nop 0"]
        def norm(t, pk=False):
            x = []
            if pk:
                x += [f"v_mov_b32 {v(V_T0)}, {v(RC+t)}", f"v_mov_b32 {v(V_T1)}, {v(RC+t)}"]
            for dt in range(8):
                o = O(t, dt)
                if pk:
                    x += [f"v_pk_mul_f32 {v(o,2)}, {v(o,2)}, {v(V_T0,2)}", f"v_pk_mul_f32 {v(o+2,2)}, {v(o+2,2)}, {v(V_T0,2)}"]
                else:
                    x += [f"v_mul_f32 {v(o+r)}, {v(o+r)}, {v(RC+t)}" for r in range(4)]
                x += [f"v_cvt_pk_bf16_f32 {v(o)}, {v(o)}, {v(o+1)}", f"v_cvt_pk_bf16_f32 {v(o+1)}, {v(o+2)}, {v(o+3)}",
                      f"ds_write_b64 {v(WA)}, {v(o,2)} offset:{(t & 1) * STG + 32 * dt}"]
            x += [f"ds_read_b128 {v(O(t, 0) + 4 * k, 4)}, {v(RA)} offset:{(t & 1) * STG + k * 4 * 272}" for k in range(4)]
            return x
        def stores(t):
            if opt.get("nostore"): return []
            return [f"buffer_store_dwordx4 {v(O(t, 0) + 4 * k, 4)}, {v(GA)}, {s(S_OSRD,4)}, {s(S_T0)} offen offset:{1024 * k}{self.stfl}" for k in range(4)]
        def pre(t, n=0): return [f"s_waitcnt lgkmcnt({n})", f"s_mov_b32 {s(S_T0)}, {t * 4096}"]
        def weave(main, sts):
            out = []; n = len(main); k = len(sts)
            marks = {(i * n) // k + 1: i for i in range(k)} if k else {}
            for i, x in enumerate(main):
                if i in marks: out.append(sts[marks[i]])
                out.append(x)
            return out
        pk = opt.get("epipk", False)
        self.c("---- last tile")
        for t in range(6):
            sh = {}
            if t == 1: sh[0] = ["s_waitcnt lgkmcnt(0)"]
            ex = []
            if t >= 1: ex += lred(t - 1)
            if t >= 2: ex += norm(t - 2, pk)
            if t >= 3: ex = pre(t - 3) + weave(ex, stores(t - 3))
            self.period(63, t, [], sh, do_qk=(t < 5), extras=ex)
        ex = pre(3) + weave(lred(5) + norm(4, pk), stores(3))
        e("s_nop 1")
        n = len(ex)
        for dt in range(8):
            e(self.pv(63 & 1, 5, dt))
            for x in ex[dt * n // 8:(dt + 1) * n // 8]: e(x)
        self.check()
        self.stamp(12, 3)
        nx = norm(5, pk=True)
        for x in pre(4) + weave(nx[:-4], stores(4)) + nx[-4:]: e(x)
        for x in pre(5) + stores(5): e(x)

    def epilogue(self):
        e = self.e; opt = self.opt
        WA, RA, GA = V_T2, V_T3, V_OST
        PK = [SB[0], NEGM]
        RD = [160 - 160 + 0, 0]
        e(f"s_mul_i32 {s(S_T1)}, {s(S_W)}, {PRIV}")
        e(f"s_add_u32 {s(S_T1)}, {s(S_T1)}, {R * SLOT}")
        e(f"v_and_b32 {v(V_T0)}, 15, {v(V_LANE)}")
        e(f"v_lshrrev_b32 {v(V_T1)}, 4, {v(V_LANE)}")
        e(f"v_mul_u32_u24 {v(WA)}, 272, {v(V_T0)}")
        e(f"v_lshl_add_u32 {v(WA)}, {v(V_T1)}, 3, {v(WA)}")
        e(f"v_add_u32 {v(WA)}, {s(S_T1)}, {v(WA)}")
        e(f"v_mul_u32_u24 {v(RA)}, 272, {v(V_T1)}")
        e(f"v_lshl_add_u32 {v(RA)}, {v(V_T0)}, 4, {v(RA)}")
        e(f"v_add_u32 {v(RA)}, {s(S_T1)}, {v(RA)}")
        e(f"s_mul_i32 {s(S_T1)}, {s(S_W)}, {96 * 256}")
        e(f"v_lshlrev_b32 {v(GA)}, 4, {v(V_LANE)}")
        e(f"v_add_u32 {v(GA)}, {s(S_T1)}, {v(GA)}")
        def pack(t):
            L = L0 + t
            e(f"v_mov_b32 {v(V_T0)}, {v(L)}")
            e(f"v_mov_b32 {v(V_T1)}, {v(L)}")
            for dt in range(8):
                o = O(t, dt)
                e(f"v_pk_mul_f32 {v(o,2)}, {v(o,2)}, {v(V_T0,2)}")
                e(f"v_pk_mul_f32 {v(o+2,2)}, {v(o+2,2)}, {v(V_T0,2)}")
            for dt in range(8):
                o = O(t, dt)
                e(f"v_cvt_pk_bf16_f32 {v(o)}, {v(o)}, {v(o+1)}")
                e(f"v_cvt_pk_bf16_f32 {v(o+1)}, {v(o+2)}, {v(o+3)}")
                e(f"ds_write_b64 {v(WA)}, {v(o,2)} offset:{(t & 1) * STG + 32 * dt}")
        def unload(t):
            for k in range(4):
                e(f"ds_read_b128 {v(O(t, 0) + 4 * k, 4)}, {v(RA)} offset:{(t & 1) * STG + k * 4 * 272}")
        def store(t):
            e(f"s_mov_b32 {s(S_T0)}, {t * 4096}")
            for k in range(4):
                if not opt.get("nostore"):
                    e(f"buffer_store_dwordx4 {v(O(t, 0) + 4 * k, 4)}, {v(GA)}, {s(S_OSRD,4)}, {s(S_T0)} offen offset:{1024 * k}{self.stfl}")
        pack(0); unload(0)
        for t in range(1, 6):
            pack(t)
            e("s_waitcnt lgkmcnt(8)")
            store(t - 1)
            unload(t)
        e("s_waitcnt lgkmcnt(0)")
        store(5)

    def fallback(self):
        e = self.e
        FA, FB, FK, FV = V_T0, V_T1, V_T2, V_T3
        MX = L0
        self.lab("L_fallback")
        e("s_waitcnt vmcnt(0) lgkmcnt(0)")
        e("s_barrier")
        e(f"s_lshl_b32 {s(S_T0)}, {s(S_W)}, 11")
        e(f"v_subrev_u32 {v(FA)}, {s(S_T0)}, {v(V_OFFA)}")
        e(f"v_subrev_u32 {v(FB)}, {s(S_T0)}, {v(V_OFFB)}")
        e(f"s_mul_i32 {s(S_WOFF)}, {s(S_W)}, {SLOT}")
        e(f"v_add_u32 {v(FK)}, {s(S_WOFF)}, {v(V_KADDR)}")
        e(f"v_add_u32 {v(FV)}, {s(S_WOFF)}, {v(V_VADDR)}")
        def load_tile(with_v):
            for q in range(4):
                e(f"s_add_u32 m0, {s(S_WOFF)}, {q * QRT}")
                e(f"s_add_u32 {s(S_TOFF)}, {s(S_T1)}, {q * 2048}")
                for i in range(4 if with_v else 2): e(self.dma(i, FA, FB))
            e("s_waitcnt vmcnt(0)")
            for kt in range(2):
                for ks in range(4): e(self.kread(0, 0, kt, ks, FK))
            if with_v:
                for dt in range(8):
                    for hh in range(2): e(self.vread(0, 0, dt, hh, FV))
            e("s_waitcnt lgkmcnt(0)")
        for t in range(6): e(f"v_mov_b32 {v(MX+t)}, 0xff800000")
        e(f"s_mov_b32 {s(S_T1)}, 0")
        self.lab("L_fb1")
        load_tile(False)
        for t in range(6):
            for kt in range(2):
                for ks in range(4): e(self.qk(0, t, kt, ks))
            e("s_nop 7")
            e("s_nop 1")
            S = SB[t & 1]
            for i in range(0, 8, 2): e(f"v_max3_f32 {v(MX+t)}, {v(MX+t)}, {v(S+i)}, {v(S+i+1)}")
        e(f"s_add_u32 {s(S_T1)}, {s(S_T1)}, 8192")
        e(f"s_cmp_lt_u32 {s(S_T1)}, {NT * 8192}")
        e("s_cbranch_scc1 L_fb1")
        for x in self.lreduce("v_max_f32"):
            e(x); e("s_nop 1")
        for t in range(6):
            for r in range(4): e(f"v_sub_f32 {v(NEGM + 4*t + r)}, 0, {v(MX+t)}")
        for t in range(6): e(f"v_mov_b32 {v(L0+t)}, 0")
        for i in range(192): e(f"v_mov_b32 {v(i)}, 0")
        e(f"s_mov_b32 {s(S_T1)}, 0")
        self.lab("L_fb2")
        load_tile(True)
        for t in range(6):
            for kt in range(2):
                for ks in range(4): e(self.qk(0, t, kt, ks, v(NEGM + 4*t, 4)))
            e("s_nop 7")
            e("s_nop 1")
            S = SB[t & 1]; P = PB[t & 1]
            for i in range(8): e(f"v_exp_f32 {v(S+i)}, {v(S+i)}")
            e("s_nop 0")
            for i in range(8): e(f"v_add_f32 {v(L0+t)}, {v(L0+t)}, {v(S+i)}")
            for i in range(4): e(f"v_cvt_pk_bf16_f32 {v(P+i)}, {v(S+2*i)}, {v(S+2*i+1)}")
            e("s_nop 1")
            for dt in range(8): e(self.pv(0, t, dt))
        e(f"s_add_u32 {s(S_T1)}, {s(S_T1)}, 8192")
        e(f"s_cmp_lt_u32 {s(S_T1)}, {NT * 8192}")
        e("s_cbranch_scc1 L_fb2")
        for x in self.lreduce():
            e(x); e("s_nop 1")
        e("s_nop 7")
        if self.peel:
            for t in range(6): e(f"v_rcp_f32 {v(L0+t)}, {v(L0+t)}")
            self.epilogue()
            e("s_endpgm")
        else:
            e("s_branch L_norm")

if __name__ == "__main__":
    opt = {}
    out = sys.argv[1]
    for x in sys.argv[2:]:
        k, _, val = x.partition("=")
        opt[k] = eval(val) if val else True
    open(out, "w").write(Gen(opt).build())
```

```python
import sys

KN = "standalone__mha_softmax__near_ridge_kernel"
M16 = "v_mfma_f32_16x16x32_bf16"
NT = 64
BLK = 1056
QRT = 4 * BLK
SLOT = 4 * QRT
R = 4
STG = 16 * 272
QBUF = 4 * BLK
PRIV = 3 * QBUF

def O(t, dt): return 32 * t + 4 * dt
SB = [192, 200]
PB = [208, 212]
L0 = 216
V_KADDR, V_VADDR, V_OFFA, V_OFFB = 222, 223, 224, 225
V_LANE, V_OST, V_T0, V_T1, V_T2, V_T3 = 226, 227, 228, 229, 230, 231
NEGM = 232
def AQ(t, ks): return 16 * t + 4 * ks
def AK(p, kt, ks): return 96 + 32 * p + 16 * kt + 4 * ks
def AV(p, dt): return 160 + 32 * p + 4 * dt

S_QSRD, S_KSRD, S_VSRD, S_OSRD = 4, 8, 12, 16
S_W, S_WOFF, S_TOFF, S_CNT, S_T0, S_T1, S_T2, S_T3 = 20, 21, 22, 23, 24, 25, 26, 27
S_WS = 28
S_PRIV = 88
S_CMP = 90
S_RST = 40
S_CST = 72

def v(a, n=1): return f"v{a}" if n == 1 else f"v[{a}:{a+n-1}]"
def a(x, n=1): return f"a{x}" if n == 1 else f"a[{x}:{x+n-1}]"
def s(x, n=1): return f"s{x}" if n == 1 else f"s[{x}:{x+n-1}]"

class Gen:
    def __init__(self, opt):
        self.o = []
        self.opt = opt
        self.LDS = R * SLOT + 4 * PRIV
        self.ldfl = opt.get("ldfl", " nt")
        self.qfl = opt.get("qfl", " nt")
        self.stfl = opt.get("stfl", " sc0 sc1 nt")
        self.inloop = False
        self.D = 3
        self.peel = opt.get('peel', True)
        self.exitpos = 2 if self.peel else 3
    def e(self, line): self.o.append("    " + line)
    def lab(self, name): self.o.append(name + ":")
    def c(self, txt): self.o.append("    ; " + txt)
    def stamp(self, idx, cyc=None):
        if self.opt.get("stamp"):
            self.e(f"s_memrealtime {s(S_RST + 2 * idx, 2)}")
            if cyc is not None: self.e(f"s_memtime {s(S_CST + 2 * cyc, 2)}")

    def dma(self, i, va=V_OFFA, vb=V_OFFB):
        srd = S_KSRD if i < 2 else S_VSRD
        off = f" offset:{i * BLK}" if i else ""
        return f"buffer_load_dwordx4 {v(va if i % 2 == 0 else vb)}, {s(srd,4)}, {s(S_TOFF)} offen{off}{self.ldfl} lds"
    def m0set(self, slot): return f"s_add_u32 m0, {s(S_WOFF)}, {slot * SLOT}"
    def kread(self, p, slot, kt, ks, addr=V_KADDR):
        return f"ds_read_b128 {a(AK(p, kt, ks), 4)}, {v(addr)} offset:{slot * SLOT + kt * 2 * QRT + 256 * ks}"
    def vread(self, p, slot, dt, hh, addr=V_VADDR):
        return f"ds_read_b64_tr_b16 {a(AV(p, dt) + 2 * hh, 2)}, {v(addr)} offset:{slot * SLOT + hh * 2 * QRT + 256 * (dt >> 1) + 32 * (dt & 1)}"
    def qk(self, p, t, kt, ks, cinit="0", sb=None):
        d = v(SB[t & 1 if sb is None else sb] + 4 * kt, 4)
        return f"{M16} {d}, {a(AK(p, kt, ks), 4)}, {a(AQ(t, ks), 4)}, {cinit if ks == 0 else d}"
    def pv(self, p, t, dt, pb=None):
        d = v(O(t, dt), 4)
        return f"{M16} {d}, {a(AV(p, dt), 4)}, {v(PB[t & 1 if pb is None else pb], 4)}, {d}"

    def period(self, j, t, lds, shadow, do_qk=True, do_pv=True, extras=None):
        jq, tq = (j, t + 1) if t < 5 else (j + 1, 0)
        jp, tp = (j, t - 1) if t > 0 else (j - 1, 5)
        self.period_x((jq & 1, tq, tq & 1) if do_qk else None, (t, t & 1), (jp & 1, tp, tp & 1) if do_pv else None, lds, shadow, extras)

    def period_x(self, qkb, sm, pvb, lds, shadow, extras=None):
        Q = [self.qk(qkb[0], qkb[1], kt, ks, sb=qkb[2]) if qkb else None for kt in range(2) for ks in range(4)]
        V = [self.pv(pvb[0], pvb[1], dt, pb=pvb[2]) if pvb else None for dt in range(8)]
        if self.opt.get("order", "88") == "4444": mf = Q[0:4] + V[0:4] + Q[4:8] + V[4:8]
        else: mf = Q + V
        t, sb = sm
        S = SB[sb]; P = PB[sb]; L = L0 + t
        ex = lambda i: f"v_exp_f32 {v(S+i)}, {v(S+i)}"
        ad = lambda i: f"v_add_f32 {v(L)}, {v(L)}, {v(S+i)}"
        cv = lambda i: f"v_cvt_pk_bf16_f32 {v(P+i)}, {v(S+2*i)}, {v(S+2*i+1)}"
        lds = list(lds) + [None] * (4 - len(lds))
        fill = {0: [ex(0)], 1: [ex(1)], 2: [lds[0], ad(0)], 3: [ex(2)], 4: [ad(1), cv(0)], 5: [ex(3)],
                6: [lds[1], ad(2)], 7: [ex(4)], 8: [ad(3), cv(1)], 9: [ex(5)], 10: [lds[2], ad(4)],
                11: [ex(6)], 12: [ad(5), cv(2)], 13: [ex(7)], 14: [lds[3], ad(6)], 15: [ad(7), cv(3)]}
        abl = self.opt.get("abl", "") if self.inloop else ""
        for g in range(16):
            if mf[g]: self.e(mf[g])
            for x in shadow.get(g, []):
                if 'D' in abl and x.startswith("buffer_load"): continue
                if 'B' in abl and x.startswith("s_barrier"): continue
                self.e(x)
            for x in fill[g]:
                if x is None: continue
                if 'e' in abl and x.startswith("v_exp"): continue
                if 'a' in abl and x.startswith("v_add"): continue
                if 'c' in abl and x.startswith("v_cvt"): continue
                if 'l' in abl and x.startswith("ds_read"): continue
                self.e(x)
            if extras:
                n = len(extras)
                for x in extras[g * n // 16:(g + 1) * n // 16]: self.e(x)

    def iteration(self, j):
        self.c(f"---- iteration j%R={j % R}")
        p1 = (j + 1) & 1
        s1 = (j + 1) % R
        K = [self.kread(p1, s1, kt, ks) for kt in range(2) for ks in range(4)]
        V = [self.vread(p1, s1, dt, hh) for dt in range(8) for hh in range(2)]
        sched = [K[0:4], [K[4]] + V[0:3], [K[5]] + V[3:6], [K[6]] + V[6:9], [K[7]] + V[9:12], V[12:16]]
        sl = (j + self.D) % R
        pos = self.opt.get("dmapos", {0: [(1, 'm'), (3, 0), (7, 1), (11, 2)], 1: [(3, 3), (7, 'inc')]})
        for t in range(6):
            sh = {}
            if t == 0: sh[0] = [f"s_waitcnt vmcnt({4 * (self.D - 2)})", "s_barrier"]
            if t == 1: sh[0] = ["s_waitcnt lgkmcnt(4)"]
            if t == 5: sh[0] = ["s_waitcnt lgkmcnt(3)"]
            for (g, what) in pos.get(t, []):
                if what == 'm': ins = self.m0set(sl)
                elif what == 'inc': ins = f"s_add_u32 {s(S_TOFF)}, {s(S_TOFF)}, 8192"
                else: ins = self.dma(what)
                sh.setdefault(g, []).append(ins)
            if t == 5 and j % R == self.exitpos:
                sh.setdefault(3, []).append(f"s_sub_u32 {s(S_CNT)}, {s(S_CNT)}, 1")
                sh.setdefault(5, []).append(f"s_cmp_lg_u32 {s(S_CNT)}, 0")
            self.period(j, t, sched[t], sh)

    def lreduce(self, op="v_add_f32", regs=None):
        regs = regs or [L0 + t for t in range(6)]
        red = []
        for t in range(6): red.append(f"v_mov_b32 {v(NEGM+t)}, {v(regs[t])}")
        for t in range(6): red.append(f"v_permlane32_swap_b32 {v(regs[t])}, {v(NEGM+t)}")
        for t in range(6): red.append(f"{op} {v(regs[t])}, {v(regs[t])}, {v(NEGM+t)}")
        for t in range(6): red.append(f"v_mov_b32 {v(NEGM+t)}, {v(regs[t])}")
        for t in range(6): red.append(f"v_permlane16_swap_b32 {v(regs[t])}, {v(NEGM+t)}")
        for t in range(6): red.append(f"{op} {v(regs[t])}, {v(regs[t])}, {v(NEGM+t)}")
        return red

    def build(self):
        opt = self.opt
        e = self.e
        self.o.append(f"""; MHA forward, B=8 H=32 Sq=384 Sk=2048 D=128, bf16.  One workgroup (4 waves x 96 query rows) per head.
; @launch grid=(256,1,1) block=(256,1,1) lds={self.LDS}
.amdgcn_target "amdgcn-amd-amdhsa--gfx950"
.text
.globl {KN}
.p2align 8
.type {KN},@function
{KN}:""")
        e("s_load_dwordx4 s[32:35], s[0:1], 0")
        e("s_load_dwordx4 s[36:39], s[0:1], 16")
        e("s_cmpk_ge_u32 s2, 0x100")
        e("s_cbranch_scc1 L_end")
        self.stamp(0)
        for _ in range(opt.get("sleep0", 0)): e("s_sleep 32")
        QV = NEGM + 8
        X = QV + 3
        e(f"v_lshrrev_b32 {v(V_T1)}, 6, v0")
        e(f"v_bfe_u32 {v(V_T2)}, v0, 2, 2")
        e(f"v_bfe_u32 {v(V_T0)}, v0, 4, 2")
        e(f"v_readfirstlane_b32 {s(S_W)}, {v(V_T1)}")
        e(f"v_and_b32 {v(V_T3)}, 3, v0")
        e(f"v_lshlrev_b32 {v(X)}, 8, {v(V_T2)}")
        e(f"v_lshl_add_u32 {v(X)}, {v(V_T0)}, 6, {v(X)}")
        e(f"v_lshl_add_u32 {v(X)}, {v(V_T3)}, 4, {v(X)}")
        if opt.get("dmalin"):
            e(f"v_and_b32 {v(X)}, 63, v0"); e(f"v_lshlrev_b32 {v(X)}, 4, {v(X)}")
        e(f"s_lshl_b32 {s(S_T0)}, {s(S_W)}, 11")
        e(f"s_mul_i32 {s(S_WOFF)}, {s(S_W)}, {QRT}")
        e(f"v_add_u32 {v(V_OFFB)}, {s(S_T0)}, {v(X)}")
        e(f"v_add_u32 {v(V_OFFA)}, 32, {v(V_OFFB)}")
        e(f"s_mul_i32 {s(S_T0)}, {s(S_W)}, {96 * 256}")
        e(f"v_add_u32 {v(QV+3)}, {s(S_T0)}, {v(X)}")
        e(f"v_add_u32 {v(QV+2)}, 32, {v(QV+3)}")
        e(f"v_add_u32 {v(QV+1)}, 32, {v(QV+2)}")
        e(f"v_add_u32 {v(QV)}, 32, {v(QV+1)}")
        e(f"s_mul_i32 {s(S_PRIV)}, {s(S_W)}, {PRIV}")
        e(f"s_add_u32 {s(S_PRIV)}, {s(S_PRIV)}, {R * SLOT}")
        if opt.get("remap", False):
            e(f"s_and_b32 {s(S_T0)}, s2, 7")
            e(f"s_lshl_b32 {s(S_T0)}, {s(S_T0)}, 5")
            e(f"s_lshr_b32 {s(S_T1)}, s2, 3")
            e(f"s_add_u32 s2, {s(S_T0)}, {s(S_T1)}")
        e(f"s_mul_i32 {s(S_T0)}, s2, 98304")
        e(f"s_lshl_b32 {s(S_T1)}, s2, 19")
        e(f"s_mov_b32 {s(S_KSRD+3)}, 0x20000")
        e(f"s_mov_b32 {s(S_KSRD+2)}, {524288 + 32}")
        e(f"s_mov_b32 {s(S_QSRD+3)}, {s(S_KSRD+3)}")
        e(f"s_mov_b32 {s(S_QSRD+2)}, {s(S_KSRD+2)}")
        e(f"s_mov_b32 {s(S_VSRD+3)}, {s(S_KSRD+3)}")
        e(f"s_mov_b32 {s(S_VSRD+2)}, {s(S_KSRD+2)}")
        e(f"s_mov_b32 {s(S_TOFF)}, 0")
        e(f"s_mov_b32 m0, {s(S_WOFF)}")
        e("s_waitcnt lgkmcnt(0)")
        if opt.get("fine"): self.stamp(1)
        e(f"s_add_u32 {s(S_KSRD)}, s34, {s(S_T1)}")
        e(f"s_addc_u32 {s(S_KSRD+1)}, s35, 0")
        e(f"s_sub_u32 {s(S_KSRD)}, {s(S_KSRD)}, 32")
        e(f"s_subb_u32 {s(S_KSRD+1)}, {s(S_KSRD+1)}, 0")
        vm = []
        e(self.dma(0)); e(self.dma(1)); vm += ["K0", "K0"]
        if opt.get("fine"): self.stamp(3)
        e(f"s_add_u32 {s(S_QSRD)}, s32, {s(S_T0)}")
        e(f"s_addc_u32 {s(S_QSRD+1)}, s33, 0")
        e(f"s_sub_u32 {s(S_QSRD)}, {s(S_QSRD)}, 96")
        e(f"s_subb_u32 {s(S_QSRD+1)}, {s(S_QSRD+1)}, 0")
        QPLACE = {0: ('p', 0), 1: ('p', QBUF), 2: ('p', 2 * QBUF), 3: ('r', 2 * SLOT), 4: ('r', 3 * SLOT), 5: ('p', 0)}
        def qload(t, pad=None):
            kind, off_ = QPLACE[t]
            base = s(S_PRIV if kind == 'p' else S_WOFF)
            e(f"s_add_u32 m0, {base}, {off_}" if off_ else f"s_mov_b32 m0, {base}")
            if t == 0: e(pad or "s_nop 0")
            else: e(f"s_movk_i32 {s(S_T3)}, {t * 4096}")
            for b in range(4):
                off = f" offset:{b * BLK}" if b else ""
                e(f"buffer_load_dwordx4 {v(QV+b)}, {s(S_QSRD,4)}, {s(S_TOFF if t == 0 else S_T3)} offen{off}{self.qfl} lds")
                vm.append(f"Q{t}")
        qload(0, pad=f"s_add_u32 {s(S_VSRD)}, s36, {s(S_T1)}")
        if opt.get("fine"): self.stamp(4)
        e(f"s_addc_u32 {s(S_VSRD+1)}, s37, 0")
        e(f"s_sub_u32 {s(S_VSRD)}, {s(S_VSRD)}, 2144")
        e(f"s_mov_b32 m0, {s(S_WOFF)}")
        e(f"s_subb_u32 {s(S_VSRD+1)}, {s(S_VSRD+1)}, 0")
        e(self.dma(2)); e(self.dma(3)); vm += ["V0", "V0"]
        if opt.get("fine"): self.stamp(5)
        if opt.get("hd", "2") == "2":
            e(f"s_add_u32 m0, {s(S_WOFF)}, {SLOT}")
            e(f"s_movk_i32 {s(S_TOFF)}, 0x2000")
            for i in range(4): e(self.dma(i))
            vm += ["K1", "K1", "V1", "V1"]
        else:
            qload(1)
        self.stamp(2, 0)
        if opt.get("stamp") and not opt.get("fine"): self.stamp(1)
        e(f"s_mov_b32 {s(S_QSRD+2)}, {98304 + 96}")
        e(f"s_mov_b32 {s(S_VSRD+2)}, {524288 + 2144}")
        e(f"s_mov_b32 {s(S_OSRD+2)}, 98304")
        e(f"s_mov_b32 {s(S_OSRD+3)}, {s(S_KSRD+3)}")
        e(f"s_add_u32 {s(S_OSRD)}, s38, {s(S_T0)}")
        e(f"s_addc_u32 {s(S_OSRD+1)}, s39, 0")
        e(f"v_and_b32 {v(V_LANE)}, 63, v0")
        def dma_half(tile, kv):
            e(f"s_mov_b32 {s(S_TOFF)}, {tile * 8192}")
            e(self.m0set(tile % R))
            e("s_nop 0")
            for i in ((0, 1) if kv == 'K' else (2, 3)): e(self.dma(i))
            vm.extend([f"{kv}{tile}"] * 2)
        def wait_for(lbl):
            last = max(i for i, x in enumerate(vm) if x == lbl)
            e(f"s_waitcnt vmcnt({len(vm) - 1 - last})")
        TMPC = NEGM
        QA = NEGM + 12
        two = opt.get("hd", "2") == "2"
        def qconv(t, after_read=None):
            land = (O(5, 0) + (16 if t == 5 else 0)) if two else O(t, 0)
            wait_for(f"Q{t}")
            if not opt.get("fs"): self.stamp(3 + t)
            for ks in range(4):
                kind, off_ = QPLACE[t]
                e(f"ds_read_b128 {v(land + 4 * ks, 4)}, {v(QA if kind == 'p' else QA + 2)} offset:{off_ + 256 * ks}")
            if two and t == 5:
                for i in range(16): e(f"v_mov_b32 {v(O(5, 0) + i)}, 0")
            e("s_waitcnt lgkmcnt(0)")
            if after_read: after_read()
            for i in range(16):
                x = land + i
                lo = TMPC + 2 * (i % 4); hi = lo + 1
                e(f"v_lshlrev_b32 {v(lo)}, 16, {v(x)}")
                e(f"v_and_b32 {v(hi)}, {s(S_T2)}, {v(x)}")
                e(f"v_pk_mul_f32 {v(lo,2)}, {v(lo,2)}, {v(V_T0,2)}")
                e(f"v_cvt_pk_bf16_f32 {v(lo)}, {v(lo)}, {v(hi)}")
                e(f"v_accvgpr_write_b32 {a(AQ(t,0)+i)}, {v(lo)}")
                if not two or t == 5: e(f"v_mov_b32 {v(x)}, 0")
        e(f"v_lshrrev_b32 {v(V_KADDR)}, 1, {v(V_T2)}")
        e(f"v_mul_u32_u24 {v(V_KADDR)}, {QRT}, {v(V_KADDR)}")
        e(f"v_and_b32 {v(V_VADDR)}, 1, {v(V_T2)}")
        e(f"v_mul_u32_u24 {v(V_VADDR)}, {BLK}, {v(V_VADDR)}")
        e(f"v_add_u32 {v(V_KADDR)}, {v(V_KADDR)}, {v(V_VADDR)}")
        e(f"v_lshl_add_u32 {v(V_KADDR)}, {v(V_T3)}, 6, {v(V_KADDR)}")
        e(f"v_lshl_add_u32 {v(V_KADDR)}, {v(V_T0)}, 4, {v(V_KADDR)}")
        e(f"v_mul_u32_u24 {v(QA)}, {BLK}, {v(V_T2)}")
        e(f"v_lshl_add_u32 {v(QA)}, {v(V_T3)}, 6, {v(QA)}")
        e(f"v_lshl_add_u32 {v(QA)}, {v(V_T0)}, 4, {v(QA)}")
        e(f"v_add_u32 {v(QA+2)}, {s(S_WOFF)}, {v(QA)}")
        e(f"v_add_u32 {v(QA)}, {s(S_PRIV)}, {v(QA)}")
        e(f"v_lshrrev_b32 {v(V_VADDR)}, 1, {v(V_T0)}")
        e(f"v_mul_u32_u24 {v(V_VADDR)}, {QRT}, {v(V_VADDR)}")
        e(f"v_and_b32 {v(V_T1)}, 1, {v(V_T0)}")
        e(f"v_mul_u32_u24 {v(NEGM+13)}, {BLK}, {v(V_T1)}")
        e(f"v_add_u32 {v(V_VADDR)}, {v(V_VADDR)}, {v(NEGM+13)}")
        e(f"v_lshl_add_u32 {v(V_VADDR)}, {v(V_T2)}, 6, {v(V_VADDR)}")
        e(f"v_lshl_add_u32 {v(V_VADDR)}, {v(V_T3)}, 3, {v(V_VADDR)}")
        e(f"v_add_u32 {v(V_VADDR)}, {2 * BLK}, {v(V_VADDR)}")
        for i in range(6): e(f"v_mov_b32 {v(L0+i)}, 0")
        if opt.get("hd", "2") != "2":
            for i in range(4): e(f"v_mov_b32 {v(PB[1]+i)}, 0")
            for i in range(32): e(f"v_accvgpr_write_b32 {a(AV(1,0)+i)}, 0")
        if opt.get("hd", "2") == "2":
            for i in range(160): e(f"v_mov_b32 {v(i)}, 0")
        else:
            for t in range(6):
                for i in range(16, 32): e(f"v_mov_b32 {v(O(t,0)+i)}, 0")
        self.epi_addr()
        e(f"s_mov_b32 {s(S_T1)}, 0x3e0293ee")
        e(f"v_mov_b32 {v(V_T0)}, {s(S_T1)}")
        e(f"v_mov_b32 {v(V_T1)}, {s(S_T1)}")
        e(f"s_mov_b32 {s(S_T2)}, 0xffff0000")
        hd = opt.get("hd", "2")
        if hd == "2":
            Kf = lambda tile: [self.kread(tile & 1, tile % R, kt, ks) for kt in range(2) for ks in range(4)]
            Vf = lambda tile: [self.vread(tile & 1, tile % R, dt, hh) for dt in range(8) for hh in range(2)]
            def tile_dma(tile): dma_half(tile, 'K'); dma_half(tile, 'V')
            qload(1)
            qconv(0, lambda: qload(2))
            wait_for("V1")
            e("s_barrier")
            for x in Kf(0) + Kf(1): e(x)
            e("s_waitcnt lgkmcnt(8)")
            V0r = Vf(0)
            for kt in range(2):
                for ks in range(4):
                    e(self.qk(0, 0, kt, ks, sb=0))
                    for x in V0r[8 * kt + 2 * ks: 8 * kt + 2 * ks + 2]: e(x)
            e("s_waitcnt lgkmcnt(15)")
            qload(3)
            K2 = Kf(2)
            for n in range(12):
                nq = n + 1
                if nq < 12 and nq % 2 == 0:
                    tq = nq >> 1
                    def after(tq=tq):
                        if tq == 1: qload(4)
                        if tq == 2: qload(5)
                        if tq == 3: tile_dma(2)
                        if tq == 4: tile_dma(3)
                    qconv(tq, after)
                    e("s_nop 1")
                lds = []; extras = None; sh = {}
                if n == 0: extras = Vf(1)
                if n == 9:
                    wait_for("K2")
                    e("s_barrier")
                    if not opt.get("fs"): self.stamp(9)
                    lds = [None, None, K2[0], K2[1]]
                if n == 10:
                    lds = K2[2:6]
                    sh = {1: [K2[6]], 3: [K2[7]]}
                if n == 11: e("s_waitcnt lgkmcnt(0)")
                qkb = (nq & 1, nq >> 1, nq & 1) if nq < 12 else (0, 0, 0)
                pvb = ((n - 1) & 1, (n - 1) >> 1, (n - 1) & 1) if n >= 1 else None
                self.period_x(qkb, (n >> 1, n & 1), pvb, lds, sh, extras)
            wait_for("V2")
            e("s_barrier")
            for x in Vf(2): e(x)
            tile_dma(4)
            e(f"s_mov_b32 {s(S_TOFF)}, {5 * 8192}")
            self.stamp(10, 1)
            e(f"s_mov_b32 {s(S_CNT)}, {NT // R}")
            e("s_branch L_it2")
        else:
            fs = opt.get("fs")
            def fstamp(i):
                if fs and not (opt.get("fine") and i in (3, 4, 5)): self.stamp(i)
            qload(2)
            fstamp(3)
            if hd == "d":
                qconv(0, lambda: (fstamp(4), qload(3), fstamp(5)))
                fstamp(6)
            else:
                qconv(0, lambda: qload(3))
                qload(4)
            wait_for("V0")
            fstamp(7)
            e("s_barrier")
            fstamp(8)
            for kt in range(2):
                for ks in range(4): e(self.kread(0, 0, kt, ks))
            for dt in range(8):
                for hh in range(2): e(self.vread(0, 0, dt, hh))
            if hd != "d":
                qload(5)
                dma_half(1, 'K'); dma_half(1, 'V')
            e("s_waitcnt lgkmcnt(15)")
            for kt in range(2):
                for ks in range(4): e(self.qk(0, 0, kt, ks))
            fstamp(9)
            K1 = [self.kread(1, 1 % R, kt, ks) for kt in range(2) for ks in range(4)]
            V1 = [self.vread(1, 1 % R, dt, hh) for dt in range(8) for hh in range(2)]
            for t in range(6):
                if t + 1 <= 5:
                    def after(t=t):
                        if hd == "d":
                            if t == 0: qload(4)
                            if t == 1: qload(5)
                            if t == 2: dma_half(1, 'K'); dma_half(1, 'V')
                            if t == 3: dma_half(2, 'K'); dma_half(2, 'V')
                        else:
                            if t == 2: dma_half(2, 'K'); dma_half(2, 'V')
                            if t == 3: dma_half(3, 'K'); dma_half(3, 'V')
                    qconv(t + 1, after)
                    e("s_nop 1")
                if t == 0: e("s_waitcnt lgkmcnt(0)")
                if t == 5:
                    wait_for("K1")
                    e("s_barrier")
                    if not opt.get("fs"): self.stamp(9)
                    for x in K1: e(x)
                    e("s_waitcnt lgkmcnt(0)")
                self.period(0, t, [], {}, do_pv=True)
            wait_for("V1")
            e("s_barrier")
            for x in V1: e(x)
            if hd == "d":
                dma_half(3, 'K'); dma_half(3, 'V')
            e(f"s_mov_b32 {s(S_TOFF)}, {(self.D + 1) * 8192}")
            self.stamp(10, 1)
            e(f"s_mov_b32 {s(S_CNT)}, {NT // R}")
            e("s_branch L_it1")
        e(".p2align 6")
        self.lab("L_loop")
        self.inloop = True
        for j in range(R):
            if j == 1: self.lab("L_it1")
            if j == 2: self.lab("L_it2")
            self.iteration(j)
            if self.peel and j == 2: e("s_cbranch_scc0 L_last")
        if self.peel: e("s_branch L_loop")
        else: e("s_cbranch_scc1 L_loop")
        self.inloop = False
        if self.peel:
            self.lab("L_last")
            self.stamp(11, 2)
            self.last_iteration()
        else:
            self.stamp(11, 2)
            red = self.lreduce()
            e("s_nop 1")
            for dt in range(8):
                e(self.pv(63 & 1, 5, dt))
                for x in red[2*dt:2*dt+2]: e(x)
            for x in red[16:]: e(x)
            self.check()
            self.lab("L_norm")
            for t in range(6): e(f"v_rcp_f32 {v(L0+t)}, {v(L0+t)}")
            self.stamp(12, 3)
            self.epilogue()
        self.stamp(13, 4)
        if opt.get("stamp") and opt.get("dbg") is None:
            e("s_waitcnt vmcnt(0)")
            self.stamp(14, 5)
            e(f"s_load_dwordx2 {s(S_WS,2)}, s[0:1], 40")
            e("s_waitcnt lgkmcnt(0)")
            e(f"s_mov_b32 {s(S_WS+2)}, 0x20000000")
            e(f"s_mov_b32 {s(S_WS+3)}, 0x20000")
            e(f"v_mov_b32 {v(V_T0)}, 0")
            for i in range(16): e(f"v_writelane_b32 {v(V_T0)}, {s(S_RST + 2*i)}, {i}")
            for i in range(8): e(f"v_writelane_b32 {v(V_T0)}, {s(S_CST + 2*i)}, {16+i}")
            e(f"s_lshl_b32 {s(S_T0)}, s2, 2")
            e(f"s_add_u32 {s(S_T0)}, {s(S_T0)}, {s(S_W)}")
            e(f"s_lshl_b32 {s(S_T0)}, {s(S_T0)}, 8")
            e(f"v_lshlrev_b32 {v(V_T1)}, 2, {v(V_LANE)}")
            e(f"buffer_store_dword {v(V_T0)}, {v(V_T1)}, {s(S_WS,4)}, {s(S_T0)} offen")
        if opt.get("dbg") is not None:
            e("s_waitcnt vmcnt(0)")
            self.stamp(14, 5)
            e(f"s_load_dwordx2 {s(S_WS,2)}, s[0:1], 32")
            e("s_waitcnt lgkmcnt(0)")
            e(f"s_cmp_lg_u32 s2, {opt['dbg']}")
            e("s_cbranch_scc1 L_end")
            e(f"s_cmp_lg_u32 {s(S_W)}, 0")
            e("s_cbranch_scc1 L_end")
            e(f"s_mov_b32 {s(S_WS+2)}, 256")
            e(f"s_mov_b32 {s(S_WS+3)}, 0x20000")
            e(f"v_mov_b32 {v(V_T0)}, 0")
            for i in range(1, 15):
                e(f"s_sub_u32 {s(S_T0)}, {s(S_RST + 2*i)}, {s(S_RST)}")
                e(f"v_writelane_b32 {v(V_T0)}, {s(S_T0)}, {i - 1}")
            e(f"s_sub_u32 {s(S_T0)}, {s(S_CST + 4)}, {s(S_CST + 2)}")
            e(f"v_writelane_b32 {v(V_T0)}, {s(S_T0)}, 14")
            e(f"s_sub_u32 {s(S_T0)}, {s(S_CST + 10)}, {s(S_CST)}")
            e(f"v_writelane_b32 {v(V_T0)}, {s(S_T0)}, 15")
            e(f"v_lshlrev_b32 {v(V_T1)}, 2, {v(V_LANE)}")
            e(f"buffer_store_dword {v(V_T0)}, {v(V_T1)}, {s(S_WS,4)}, 0 offen")
        for _ in range(opt.get("sleep1", 0)): e("s_sleep 32")
        self.lab("L_end")
        e("s_endpgm")
        if not opt.get("nocheck"): self.fallback()
        self.o.append(f""".section .rodata,"a"
.p2align 6
.amdhsa_kernel {KN}
  .amdhsa_next_free_vgpr 512
  .amdhsa_next_free_sgpr 102
  .amdhsa_accum_offset 256
  .amdhsa_group_segment_fixed_size 0
  .amdhsa_kernarg_size 48
  .amdhsa_user_sgpr_count 2
  .amdhsa_user_sgpr_kernarg_segment_ptr 1
  .amdhsa_system_sgpr_workgroup_id_x 1
.end_amdhsa_kernel""")
        return "\n".join(self.o) + "\n"

    def check(self):
        if self.opt.get("nocheck"): return
        e = self.e
        e(f"v_max3_f32 {v(NEGM)}, {v(L0)}, {v(L0+1)}, {v(L0+2)}")
        e(f"v_min3_f32 {v(NEGM+1)}, {v(L0)}, {v(L0+1)}, {v(L0+2)}")
        e(f"v_max3_f32 {v(NEGM)}, {v(NEGM)}, {v(L0+3)}, {v(L0+4)}")
        e(f"v_min3_f32 {v(NEGM+1)}, {v(NEGM+1)}, {v(L0+3)}, {v(L0+4)}")
        e(f"v_max_f32 {v(NEGM)}, {v(NEGM)}, {v(L0+5)}")
        e(f"v_min_f32 {v(NEGM+1)}, {v(NEGM+1)}, {v(L0+5)}")
        e(f"s_mov_b32 {s(S_T1)}, 0x53800000")
        e(f"s_mov_b32 {s(S_T3)}, 0x37800000")
        e(f"v_cmp_ge_f32 vcc, {s(S_T1)}, {v(NEGM)}")
        e(f"v_cmp_le_f32 {s(S_CMP,2)}, {s(S_T3)}, {v(NEGM+1)}")
        e(f"s_and_b64 vcc, vcc, {s(S_CMP,2)}")
        e("s_cmp_eq_u64 vcc, -1")
        e("s_cbranch_scc0 L_fallback")

    def epi_addr(self):
        e = self.e
        WA, RA, GA = V_T2, V_T3, V_OST
        e(f"v_and_b32 {v(NEGM+16)}, 15, {v(V_LANE)}")
        e(f"v_lshrrev_b32 {v(NEGM+17)}, 4, {v(V_LANE)}")
        e(f"v_mul_u32_u24 {v(WA)}, 272, {v(NEGM+16)}")
        e(f"v_lshl_add_u32 {v(WA)}, {v(NEGM+17)}, 3, {v(WA)}")
        e(f"v_add_u32 {v(WA)}, {s(S_PRIV)}, {v(WA)}")
        e(f"v_mul_u32_u24 {v(RA)}, 272, {v(NEGM+17)}")
        e(f"v_lshl_add_u32 {v(RA)}, {v(NEGM+16)}, 4, {v(RA)}")
        e(f"v_add_u32 {v(RA)}, {s(S_PRIV)}, {v(RA)}")
        e(f"s_mul_i32 {s(S_T1)}, {s(S_W)}, {96 * 256}")
        e(f"v_lshlrev_b32 {v(GA)}, 4, {v(V_LANE)}")
        e(f"v_add_u32 {v(GA)}, {s(S_T1)}, {v(GA)}")

    def last_iteration(self):
        e = self.e; opt = self.opt
        WA, RA, GA = V_T2, V_T3, V_OST
        RC = NEGM + 8
        def lred(t):
            L, T = L0 + t, NEGM + t
            return [f"v_mov_b32 {v(T)}, {v(L)}", "s_nop 1", f"v_permlane32_swap_b32 {v(L)}, {v(T)}", "s_nop 0", f"v_add_f32 {v(L)}, {v(L)}, {v(T)}",
                    f"v_mov_b32 {v(T)}, {v(L)}", "s_nop 1", f"v_permlane16_swap_b32 {v(L)}, {v(T)}", "s_nop 0", f"v_add_f32 {v(L)}, {v(L)}, {v(T)}",
                    f"v_rcp_f32 {v(RC+t)}, {v(L)}", "s_nop 0"]
        def norm(t, pk=False):
            x = []
            if pk:
                x += [f"v_mov_b32 {v(V_T0)}, {v(RC+t)}", f"v_mov_b32 {v(V_T1)}, {v(RC+t)}"]
            for dt in range(8):
                o = O(t, dt)
                if pk:
                    x += [f"v_pk_mul_f32 {v(o,2)}, {v(o,2)}, {v(V_T0,2)}", f"v_pk_mul_f32 {v(o+2,2)}, {v(o+2,2)}, {v(V_T0,2)}"]
                else:
                    x += [f"v_mul_f32 {v(o+r)}, {v(o+r)}, {v(RC+t)}" for r in range(4)]
                x += [f"v_cvt_pk_bf16_f32 {v(o)}, {v(o)}, {v(o+1)}", f"v_cvt_pk_bf16_f32 {v(o+1)}, {v(o+2)}, {v(o+3)}",
                      f"ds_write_b64 {v(WA)}, {v(o,2)} offset:{(t & 1) * STG + 32 * dt}"]
            x += [f"ds_read_b128 {v(O(t, 0) + 4 * k, 4)}, {v(RA)} offset:{(t & 1) * STG + k * 4 * 272}" for k in range(4)]
            return x
        def stores(t):
            if opt.get("nostore"): return []
            return [f"buffer_store_dwordx4 {v(O(t, 0) + 4 * k, 4)}, {v(GA)}, {s(S_OSRD,4)}, {s(S_T0)} offen offset:{1024 * k}{self.stfl}" for k in range(4)]
        def pre(t, n=0): return [f"s_waitcnt lgkmcnt({n})", f"s_mov_b32 {s(S_T0)}, {t * 4096}"]
        def weave(main, sts):
            out = []; n = len(main); k = len(sts)
            marks = {(i * n) // k + 1: i for i in range(k)} if k else {}
            for i, x in enumerate(main):
                if i in marks: out.append(sts[marks[i]])
                out.append(x)
            return out
        pk = opt.get("epipk", False)
        self.c("---- last tile")
        for t in range(6):
            sh = {}
            if t == 1: sh[0] = ["s_waitcnt lgkmcnt(0)"]
            ex = []
            if t >= 1: ex += lred(t - 1)
            if t >= 2: ex += norm(t - 2, pk)
            if t >= 3: ex = pre(t - 3) + weave(ex, stores(t - 3))
            self.period(63, t, [], sh, do_qk=(t < 5), extras=ex)
        ex = pre(3) + weave(lred(5) + norm(4, pk), stores(3))
        e("s_nop 1")
        n = len(ex)
        for dt in range(8):
            e(self.pv(63 & 1, 5, dt))
            for x in ex[dt * n // 8:(dt + 1) * n // 8]: e(x)
        self.check()
        self.stamp(12, 3)
        nx = norm(5, pk=True)
        for x in pre(4) + weave(nx[:-4], stores(4)) + nx[-4:]: e(x)
        for x in pre(5) + stores(5): e(x)

    def epilogue(self):
        e = self.e; opt = self.opt
        WA, RA, GA = V_T2, V_T3, V_OST
        PK = [SB[0], NEGM]
        RD = [160 - 160 + 0, 0]
        e(f"s_mul_i32 {s(S_T1)}, {s(S_W)}, {PRIV}")
        e(f"s_add_u32 {s(S_T1)}, {s(S_T1)}, {R * SLOT}")
        e(f"v_and_b32 {v(V_T0)}, 15, {v(V_LANE)}")
        e(f"v_lshrrev_b32 {v(V_T1)}, 4, {v(V_LANE)}")
        e(f"v_mul_u32_u24 {v(WA)}, 272, {v(V_T0)}")
        e(f"v_lshl_add_u32 {v(WA)}, {v(V_T1)}, 3, {v(WA)}")
        e(f"v_add_u32 {v(WA)}, {s(S_T1)}, {v(WA)}")
        e(f"v_mul_u32_u24 {v(RA)}, 272, {v(V_T1)}")
        e(f"v_lshl_add_u32 {v(RA)}, {v(V_T0)}, 4, {v(RA)}")
        e(f"v_add_u32 {v(RA)}, {s(S_T1)}, {v(RA)}")
        e(f"s_mul_i32 {s(S_T1)}, {s(S_W)}, {96 * 256}")
        e(f"v_lshlrev_b32 {v(GA)}, 4, {v(V_LANE)}")
        e(f"v_add_u32 {v(GA)}, {s(S_T1)}, {v(GA)}")
        def pack(t):
            L = L0 + t
            e(f"v_mov_b32 {v(V_T0)}, {v(L)}")
            e(f"v_mov_b32 {v(V_T1)}, {v(L)}")
            for dt in range(8):
                o = O(t, dt)
                e(f"v_pk_mul_f32 {v(o,2)}, {v(o,2)}, {v(V_T0,2)}")
                e(f"v_pk_mul_f32 {v(o+2,2)}, {v(o+2,2)}, {v(V_T0,2)}")
            for dt in range(8):
                o = O(t, dt)
                e(f"v_cvt_pk_bf16_f32 {v(o)}, {v(o)}, {v(o+1)}")
                e(f"v_cvt_pk_bf16_f32 {v(o+1)}, {v(o+2)}, {v(o+3)}")
                e(f"ds_write_b64 {v(WA)}, {v(o,2)} offset:{(t & 1) * STG + 32 * dt}")
        def unload(t):
            for k in range(4):
                e(f"ds_read_b128 {v(O(t, 0) + 4 * k, 4)}, {v(RA)} offset:{(t & 1) * STG + k * 4 * 272}")
        def store(t):
            e(f"s_mov_b32 {s(S_T0)}, {t * 4096}")
            for k in range(4):
                if not opt.get("nostore"):
                    e(f"buffer_store_dwordx4 {v(O(t, 0) + 4 * k, 4)}, {v(GA)}, {s(S_OSRD,4)}, {s(S_T0)} offen offset:{1024 * k}{self.stfl}")
        pack(0); unload(0)
        for t in range(1, 6):
            pack(t)
            e("s_waitcnt lgkmcnt(8)")
            store(t - 1)
            unload(t)
        e("s_waitcnt lgkmcnt(0)")
        store(5)

    def fallback(self):
        e = self.e
        FA, FB, FK, FV = V_T0, V_T1, V_T2, V_T3
        MX = L0
        self.lab("L_fallback")
        e("s_waitcnt vmcnt(0) lgkmcnt(0)")
        e("s_barrier")
        e(f"s_lshl_b32 {s(S_T0)}, {s(S_W)}, 11")
        e(f"v_subrev_u32 {v(FA)}, {s(S_T0)}, {v(V_OFFA)}")
        e(f"v_subrev_u32 {v(FB)}, {s(S_T0)}, {v(V_OFFB)}")
        e(f"s_mul_i32 {s(S_WOFF)}, {s(S_W)}, {SLOT}")
        e(f"v_add_u32 {v(FK)}, {s(S_WOFF)}, {v(V_KADDR)}")
        e(f"v_add_u32 {v(FV)}, {s(S_WOFF)}, {v(V_VADDR)}")
        def load_tile(with_v):
            for q in range(4):
                e(f"s_add_u32 m0, {s(S_WOFF)}, {q * QRT}")
                e(f"s_add_u32 {s(S_TOFF)}, {s(S_T1)}, {q * 2048}")
                for i in range(4 if with_v else 2): e(self.dma(i, FA, FB))
            e("s_waitcnt vmcnt(0)")
            for kt in range(2):
                for ks in range(4): e(self.kread(0, 0, kt, ks, FK))
            if with_v:
                for dt in range(8):
                    for hh in range(2): e(self.vread(0, 0, dt, hh, FV))
            e("s_waitcnt lgkmcnt(0)")
        for t in range(6): e(f"v_mov_b32 {v(MX+t)}, 0xff800000")
        e(f"s_mov_b32 {s(S_T1)}, 0")
        self.lab("L_fb1")
        load_tile(False)
        for t in range(6):
            for kt in range(2):
                for ks in range(4): e(self.qk(0, t, kt, ks))
            e("s_nop 7")
            e("s_nop 1")
            S = SB[t & 1]
            for i in range(0, 8, 2): e(f"v_max3_f32 {v(MX+t)}, {v(MX+t)}, {v(S+i)}, {v(S+i+1)}")
        e(f"s_add_u32 {s(S_T1)}, {s(S_T1)}, 8192")
        e(f"s_cmp_lt_u32 {s(S_T1)}, {NT * 8192}")
        e("s_cbranch_scc1 L_fb1")
        for x in self.lreduce("v_max_f32"):
            e(x); e("s_nop 1")
        for t in range(6):
            for r in range(4): e(f"v_sub_f32 {v(NEGM + 4*t + r)}, 0, {v(MX+t)}")
        for t in range(6): e(f"v_mov_b32 {v(L0+t)}, 0")
        for i in range(192): e(f"v_mov_b32 {v(i)}, 0")
        e(f"s_mov_b32 {s(S_T1)}, 0")
        self.lab("L_fb2")
        load_tile(True)
        for t in range(6):
            for kt in range(2):
                for ks in range(4): e(self.qk(0, t, kt, ks, v(NEGM + 4*t, 4)))
            e("s_nop 7")
            e("s_nop 1")
            S = SB[t & 1]; P = PB[t & 1]
            for i in range(8): e(f"v_exp_f32 {v(S+i)}, {v(S+i)}")
            e("s_nop 0")
            for i in range(8): e(f"v_add_f32 {v(L0+t)}, {v(L0+t)}, {v(S+i)}")
            for i in range(4): e(f"v_cvt_pk_bf16_f32 {v(P+i)}, {v(S+2*i)}, {v(S+2*i+1)}")
            e("s_nop 1")
            for dt in range(8): e(self.pv(0, t, dt))
        e(f"s_add_u32 {s(S_T1)}, {s(S_T1)}, 8192")
        e(f"s_cmp_lt_u32 {s(S_T1)}, {NT * 8192}")
        e("s_cbranch_scc1 L_fb2")
        for x in self.lreduce():
            e(x); e("s_nop 1")
        e("s_nop 7")
        if self.peel:
            for t in range(6): e(f"v_rcp_f32 {v(L0+t)}, {v(L0+t)}")
            self.epilogue()
            e("s_endpgm")
        else:
            e("s_branch L_norm")

if __name__ == "__main__":
    opt = {}
    out = sys.argv[1]
    for x in sys.argv[2:]:
        k, _, val = x.partition("=")
        opt[k] = eval(val) if val else True
    open(out, "w").write(Gen(opt).build())
```

```python
import sys

KN = "standalone__mha_softmax__near_ridge_kernel"
M16 = "v_mfma_f32_16x16x32_bf16"
NT = 64
BLK = 1056
QRT = 4 * BLK
SLOT = 4 * QRT
R = 4
STG = 16 * 272
QBUF = 4 * BLK
PRIV = 3 * QBUF

def O(t, dt): return 32 * t + 4 * dt
SB = [192, 200]
PB = [208, 212]
L0 = 216
V_KADDR, V_VADDR, V_OFFA, V_OFFB = 222, 223, 224, 225
V_LANE, V_OST, V_T0, V_T1, V_T2, V_T3 = 226, 227, 228, 229, 230, 231
NEGM = 232
def AQ(t, ks): return 16 * t + 4 * ks
def AK(p, kt, ks): return 96 + 32 * p + 16 * kt + 4 * ks
def AV(p, dt): return 160 + 32 * p + 4 * dt

S_QSRD, S_KSRD, S_VSRD, S_OSRD = 4, 8, 12, 16
S_W, S_WOFF, S_TOFF, S_CNT, S_T0, S_T1, S_T2, S_T3 = 20, 21, 22, 23, 24, 25, 26, 27
S_WS = 28
S_PRIV = 88
S_CMP = 90
S_RST = 40
S_CST = 72

def v(a, n=1): return f"v{a}" if n == 1 else f"v[{a}:{a+n-1}]"
def a(x, n=1): return f"a{x}" if n == 1 else f"a[{x}:{x+n-1}]"
def s(x, n=1): return f"s{x}" if n == 1 else f"s[{x}:{x+n-1}]"

class Gen:
    def __init__(self, opt):
        self.o = []
        self.opt = opt
        self.LDS = R * SLOT + 4 * PRIV
        self.ldfl = opt.get("ldfl", " nt")
        self.qfl = opt.get("qfl", " nt")
        self.stfl = opt.get("stfl", " sc0 sc1 nt")
        self.inloop = False
        self.D = 3
        self.peel = opt.get('peel', True)
        self.tail2 = opt.get('tail2', True) and self.peel
        self.exitpos = (1 if self.tail2 else 2) if self.peel else 3
    def e(self, line): self.o.append("    " + line)
    def lab(self, name): self.o.append(name + ":")
    def c(self, txt): self.o.append("    ; " + txt)
    def capture(self, fn):
        saved = self.o; self.o = []
        fn()
        lines = [x.strip() for x in self.o]; self.o = saved
        return lines
    def stamp(self, idx, cyc=None):
        if self.opt.get("stamp"):
            self.e(f"s_memrealtime {s(S_RST + 2 * idx, 2)}")
            if cyc is not None: self.e(f"s_memtime {s(S_CST + 2 * cyc, 2)}")

    def dma(self, i, va=V_OFFA, vb=V_OFFB):
        srd = S_KSRD if i < 2 else S_VSRD
        off = f" offset:{i * BLK}" if i else ""
        return f"buffer_load_dwordx4 {v(va if i % 2 == 0 else vb)}, {s(srd,4)}, {s(S_TOFF)} offen{off}{self.ldfl} lds"
    def m0set(self, slot): return f"s_add_u32 m0, {s(S_WOFF)}, {slot * SLOT}"
    def kread(self, p, slot, kt, ks, addr=V_KADDR):
        return f"ds_read_b128 {a(AK(p, kt, ks), 4)}, {v(addr)} offset:{slot * SLOT + kt * 2 * QRT + 256 * ks}"
    def vread(self, p, slot, dt, hh, addr=V_VADDR):
        return f"ds_read_b64_tr_b16 {a(AV(p, dt) + 2 * hh, 2)}, {v(addr)} offset:{slot * SLOT + hh * 2 * QRT + 256 * (dt >> 1) + 32 * (dt & 1)}"
    def qk(self, p, t, kt, ks, cinit="0", sb=None):
        d = v(SB[t & 1 if sb is None else sb] + 4 * kt, 4)
        return f"{M16} {d}, {a(AK(p, kt, ks), 4)}, {a(AQ(t, ks), 4)}, {cinit if ks == 0 else d}"
    def pv(self, p, t, dt, pb=None):
        d = v(O(t, dt), 4)
        return f"{M16} {d}, {a(AV(p, dt), 4)}, {v(PB[t & 1 if pb is None else pb], 4)}, {d}"

    def period(self, j, t, lds, shadow, do_qk=True, do_pv=True, extras=None):
        jq, tq = (j, t + 1) if t < 5 else (j + 1, 0)
        jp, tp = (j, t - 1) if t > 0 else (j - 1, 5)
        self.period_x((jq & 1, tq, tq & 1) if do_qk else None, (t, t & 1), (jp & 1, tp, tp & 1) if do_pv else None, lds, shadow, extras)

    def period_x(self, qkb, sm, pvb, lds, shadow, extras=None):
        Q = [self.qk(qkb[0], qkb[1], kt, ks, sb=qkb[2]) if qkb else None for kt in range(2) for ks in range(4)]
        V = [self.pv(pvb[0], pvb[1], dt, pb=pvb[2]) if pvb else None for dt in range(8)]
        if self.opt.get("order", "88") == "4444": mf = Q[0:4] + V[0:4] + Q[4:8] + V[4:8]
        else: mf = Q + V
        t, sb = sm
        S = SB[sb]; P = PB[sb]; L = L0 + t
        ex = lambda i: f"v_exp_f32 {v(S+i)}, {v(S+i)}"
        ad = lambda i: f"v_add_f32 {v(L)}, {v(L)}, {v(S+i)}"
        cv = lambda i: f"v_cvt_pk_bf16_f32 {v(P+i)}, {v(S+2*i)}, {v(S+2*i+1)}"
        lds = list(lds) + [None] * (4 - len(lds))
        fill = {0: [ex(0)], 1: [ex(1)], 2: [lds[0], ad(0)], 3: [ex(2)], 4: [ad(1), cv(0)], 5: [ex(3)],
                6: [lds[1], ad(2)], 7: [ex(4)], 8: [ad(3), cv(1)], 9: [ex(5)], 10: [lds[2], ad(4)],
                11: [ex(6)], 12: [ad(5), cv(2)], 13: [ex(7)], 14: [lds[3], ad(6)], 15: [ad(7), cv(3)]}
        abl = self.opt.get("abl", "") if self.inloop else ""
        for g in range(16):
            if mf[g]: self.e(mf[g])
            for x in shadow.get(g, []):
                if 'D' in abl and x.startswith("buffer_load"): continue
                if 'B' in abl and x.startswith("s_barrier"): continue
                self.e(x)
            for x in fill[g]:
                if x is None: continue
                if 'e' in abl and x.startswith("v_exp"): continue
                if 'a' in abl and x.startswith("v_add"): continue
                if 'c' in abl and x.startswith("v_cvt"): continue
                if 'l' in abl and x.startswith("ds_read"): continue
                self.e(x)
            if extras:
                n = len(extras)
                for x in extras[g * n // 16:(g + 1) * n // 16]: self.e(x)

    def iteration(self, j):
        self.c(f"---- iteration j%R={j % R}")
        p1 = (j + 1) & 1
        s1 = (j + 1) % R
        K = [self.kread(p1, s1, kt, ks) for kt in range(2) for ks in range(4)]
        V = [self.vread(p1, s1, dt, hh) for dt in range(8) for hh in range(2)]
        sched = [K[0:4], [K[4]] + V[0:3], [K[5]] + V[3:6], [K[6]] + V[6:9], [K[7]] + V[9:12], V[12:16]]
        sl = (j + self.D) % R
        pos = self.opt.get("dmapos", {0: [(1, 'm'), (3, 0), (7, 1), (11, 2)], 1: [(3, 3), (7, 'inc')]})
        for t in range(6):
            sh = {}
            if t == 0: sh[0] = [f"s_waitcnt vmcnt({4 * (self.D - 2)})", "s_barrier"]
            if t == 1: sh[0] = ["s_waitcnt lgkmcnt(4)"]
            if t == 5: sh[0] = ["s_waitcnt lgkmcnt(3)"]
            for (g, what) in pos.get(t, []):
                if what == 'm': ins = self.m0set(sl)
                elif what == 'inc': ins = f"s_add_u32 {s(S_TOFF)}, {s(S_TOFF)}, 8192"
                else: ins = self.dma(what)
                sh.setdefault(g, []).append(ins)
            if t == 5 and j % R == self.exitpos:
                sh.setdefault(3, []).append(f"s_sub_u32 {s(S_CNT)}, {s(S_CNT)}, 1")
                sh.setdefault(5, []).append(f"s_cmp_lg_u32 {s(S_CNT)}, 0")
            self.period(j, t, sched[t], sh)

    def lreduce(self, op="v_add_f32", regs=None):
        regs = regs or [L0 + t for t in range(6)]
        red = []
        for t in range(6): red.append(f"v_mov_b32 {v(NEGM+t)}, {v(regs[t])}")
        for t in range(6): red.append(f"v_permlane32_swap_b32 {v(regs[t])}, {v(NEGM+t)}")
        for t in range(6): red.append(f"{op} {v(regs[t])}, {v(regs[t])}, {v(NEGM+t)}")
        for t in range(6): red.append(f"v_mov_b32 {v(NEGM+t)}, {v(regs[t])}")
        for t in range(6): red.append(f"v_permlane16_swap_b32 {v(regs[t])}, {v(NEGM+t)}")
        for t in range(6): red.append(f"{op} {v(regs[t])}, {v(regs[t])}, {v(NEGM+t)}")
        return red

    def build(self):
        opt = self.opt
        e = self.e
        self.o.append(f"""; MHA forward, B=8 H=32 Sq=384 Sk=2048 D=128, bf16.  One workgroup (4 waves x 96 query rows) per head.
; @launch grid=(256,1,1) block=(256,1,1) lds={self.LDS}
.amdgcn_target "amdgcn-amd-amdhsa--gfx950"
.text
.globl {KN}
.p2align 8
.type {KN},@function
{KN}:""")
        e("s_load_dwordx4 s[32:35], s[0:1], 0")
        e("s_load_dwordx4 s[36:39], s[0:1], 16")
        e("s_cmpk_ge_u32 s2, 0x100")
        e("s_cbranch_scc1 L_end")
        self.stamp(0)
        for _ in range(opt.get("sleep0", 0)): e("s_sleep 32")
        QV = NEGM + 8
        X = QV + 3
        e(f"v_lshrrev_b32 {v(V_T1)}, 6, v0")
        e(f"v_bfe_u32 {v(V_T2)}, v0, 2, 2")
        e(f"v_bfe_u32 {v(V_T0)}, v0, 4, 2")
        e(f"v_readfirstlane_b32 {s(S_W)}, {v(V_T1)}")
        e(f"v_and_b32 {v(V_T3)}, 3, v0")
        e(f"v_lshlrev_b32 {v(X)}, 8, {v(V_T2)}")
        e(f"v_lshl_add_u32 {v(X)}, {v(V_T0)}, 6, {v(X)}")
        e(f"v_lshl_add_u32 {v(X)}, {v(V_T3)}, 4, {v(X)}")
        if opt.get("dmalin"):
            e(f"v_and_b32 {v(X)}, 63, v0"); e(f"v_lshlrev_b32 {v(X)}, 4, {v(X)}")
        e(f"s_lshl_b32 {s(S_T0)}, {s(S_W)}, 11")
        e(f"s_mul_i32 {s(S_WOFF)}, {s(S_W)}, {QRT}")
        e(f"v_add_u32 {v(V_OFFB)}, {s(S_T0)}, {v(X)}")
        e(f"v_add_u32 {v(V_OFFA)}, 32, {v(V_OFFB)}")
        e(f"s_mul_i32 {s(S_T0)}, {s(S_W)}, {96 * 256}")
        e(f"v_add_u32 {v(QV+3)}, {s(S_T0)}, {v(X)}")
        e(f"v_add_u32 {v(QV+2)}, 32, {v(QV+3)}")
        e(f"v_add_u32 {v(QV+1)}, 32, {v(QV+2)}")
        e(f"v_add_u32 {v(QV)}, 32, {v(QV+1)}")
        e(f"s_mul_i32 {s(S_PRIV)}, {s(S_W)}, {PRIV}")
        e(f"s_add_u32 {s(S_PRIV)}, {s(S_PRIV)}, {R * SLOT}")
        if opt.get("remap", False):
            e(f"s_and_b32 {s(S_T0)}, s2, 7")
            e(f"s_lshl_b32 {s(S_T0)}, {s(S_T0)}, 5")
            e(f"s_lshr_b32 {s(S_T1)}, s2, 3")
            e(f"s_add_u32 s2, {s(S_T0)}, {s(S_T1)}")
        e(f"s_mul_i32 {s(S_T0)}, s2, 98304")
        e(f"s_lshl_b32 {s(S_T1)}, s2, 19")
        e(f"s_mov_b32 {s(S_KSRD+3)}, 0x20000")
        e(f"s_mov_b32 {s(S_KSRD+2)}, {524288 + 32}")
        e(f"s_mov_b32 {s(S_QSRD+3)}, {s(S_KSRD+3)}")
        e(f"s_mov_b32 {s(S_QSRD+2)}, {s(S_KSRD+2)}")
        e(f"s_mov_b32 {s(S_VSRD+3)}, {s(S_KSRD+3)}")
        e(f"s_mov_b32 {s(S_VSRD+2)}, {s(S_KSRD+2)}")
        e(f"s_mov_b32 {s(S_TOFF)}, 0")
        e(f"s_mov_b32 m0, {s(S_WOFF)}")
        e("s_waitcnt lgkmcnt(0)")
        if opt.get("fine"): self.stamp(1)
        e(f"s_add_u32 {s(S_KSRD)}, s34, {s(S_T1)}")
        e(f"s_addc_u32 {s(S_KSRD+1)}, s35, 0")
        e(f"s_sub_u32 {s(S_KSRD)}, {s(S_KSRD)}, 32")
        e(f"s_subb_u32 {s(S_KSRD+1)}, {s(S_KSRD+1)}, 0")
        vm = []
        e(self.dma(0)); e(self.dma(1)); vm += ["K0", "K0"]
        if opt.get("fine"): self.stamp(3)
        e(f"s_add_u32 {s(S_QSRD)}, s32, {s(S_T0)}")
        e(f"s_addc_u32 {s(S_QSRD+1)}, s33, 0")
        e(f"s_sub_u32 {s(S_QSRD)}, {s(S_QSRD)}, 96")
        e(f"s_subb_u32 {s(S_QSRD+1)}, {s(S_QSRD+1)}, 0")
        QPLACE = {0: ('p', 0), 1: ('p', QBUF), 2: ('p', 2 * QBUF), 3: ('r', 2 * SLOT), 4: ('r', 3 * SLOT), 5: ('p', 0)}
        def qload(t, pad=None):
            kind, off_ = QPLACE[t]
            base = s(S_PRIV if kind == 'p' else S_WOFF)
            e(f"s_add_u32 m0, {base}, {off_}" if off_ else f"s_mov_b32 m0, {base}")
            if t == 0: e(pad or "s_nop 0")
            else: e(f"s_movk_i32 {s(S_T3)}, {t * 4096}")
            for b in range(4):
                off = f" offset:{b * BLK}" if b else ""
                e(f"buffer_load_dwordx4 {v(QV+b)}, {s(S_QSRD,4)}, {s(S_TOFF if t == 0 else S_T3)} offen{off}{self.qfl} lds")
                vm.append(f"Q{t}")
        qload(0, pad=f"s_add_u32 {s(S_VSRD)}, s36, {s(S_T1)}")
        if opt.get("fine"): self.stamp(4)
        e(f"s_addc_u32 {s(S_VSRD+1)}, s37, 0")
        e(f"s_sub_u32 {s(S_VSRD)}, {s(S_VSRD)}, 2144")
        e(f"s_mov_b32 m0, {s(S_WOFF)}")
        e(f"s_subb_u32 {s(S_VSRD+1)}, {s(S_VSRD+1)}, 0")
        e(self.dma(2)); e(self.dma(3)); vm += ["V0", "V0"]
        if opt.get("fine"): self.stamp(5)
        if opt.get("hd", "2") == "2":
            e(f"s_add_u32 m0, {s(S_WOFF)}, {SLOT}")
            e(f"s_movk_i32 {s(S_TOFF)}, 0x2000")
            for i in range(4): e(self.dma(i))
            vm += ["K1", "K1", "V1", "V1"]
        else:
            qload(1)
        self.stamp(2, 0)
        if opt.get("stamp") and not opt.get("fine"): self.stamp(1)
        e(f"s_mov_b32 {s(S_QSRD+2)}, {98304 + 96}")
        e(f"s_mov_b32 {s(S_VSRD+2)}, {524288 + 2144}")
        e(f"s_mov_b32 {s(S_OSRD+2)}, 98304")
        e(f"s_mov_b32 {s(S_OSRD+3)}, {s(S_KSRD+3)}")
        e(f"s_add_u32 {s(S_OSRD)}, s38, {s(S_T0)}")
        e(f"s_addc_u32 {s(S_OSRD+1)}, s39, 0")
        e(f"v_and_b32 {v(V_LANE)}, 63, v0")
        def dma_half(tile, kv):
            e(f"s_mov_b32 {s(S_TOFF)}, {tile * 8192}")
            e(self.m0set(tile % R))
            e("s_nop 0")
            for i in ((0, 1) if kv == 'K' else (2, 3)): e(self.dma(i))
            vm.extend([f"{kv}{tile}"] * 2)
        def wait_for(lbl):
            last = max(i for i, x in enumerate(vm) if x == lbl)
            e(f"s_waitcnt vmcnt({len(vm) - 1 - last})")
        TMPC = NEGM
        QA = NEGM + 12
        two = opt.get("hd", "2") == "2"
        def qread(t):
            land = (O(5, 0) + (16 if t == 5 else 0)) if two else O(t, 0)
            wait_for(f"Q{t}")
            if not opt.get("fs"): self.stamp(3 + t)
            for ks in range(4):
                kind, off_ = QPLACE[t]
                e(f"ds_read_b128 {v(land + 4 * ks, 4)}, {v(QA if kind == 'p' else QA + 2)} offset:{off_ + 256 * ks}")
        def qcvt(t, after_read=None):
            land = (O(5, 0) + (16 if t == 5 else 0)) if two else O(t, 0)
            if two and t == 5:
                for i in range(16): e(f"v_mov_b32 {v(O(5, 0) + i)}, 0")
            e("s_waitcnt lgkmcnt(0)")
            if after_read: after_read()
            for i in range(16):
                x = land + i
                lo = TMPC + 2 * (i % 4); hi = lo + 1
                e(f"v_lshlrev_b32 {v(lo)}, 16, {v(x)}")
                e(f"v_and_b32 {v(hi)}, {s(S_T2)}, {v(x)}")
                e(f"v_pk_mul_f32 {v(lo,2)}, {v(lo,2)}, {v(V_T0,2)}")
                e(f"v_cvt_pk_bf16_f32 {v(lo)}, {v(lo)}, {v(hi)}")
                e(f"v_accvgpr_write_b32 {a(AQ(t,0)+i)}, {v(lo)}")
                if not two or t == 5: e(f"v_mov_b32 {v(x)}, 0")
        def qconv(t, after_read=None):
            qread(t); qcvt(t, after_read)
        e(f"v_lshrrev_b32 {v(V_KADDR)}, 1, {v(V_T2)}")
        e(f"v_mul_u32_u24 {v(V_KADDR)}, {QRT}, {v(V_KADDR)}")
        e(f"v_and_b32 {v(V_VADDR)}, 1, {v(V_T2)}")
        e(f"v_mul_u32_u24 {v(V_VADDR)}, {BLK}, {v(V_VADDR)}")
        e(f"v_add_u32 {v(V_KADDR)}, {v(V_KADDR)}, {v(V_VADDR)}")
        e(f"v_lshl_add_u32 {v(V_KADDR)}, {v(V_T3)}, 6, {v(V_KADDR)}")
        e(f"v_lshl_add_u32 {v(V_KADDR)}, {v(V_T0)}, 4, {v(V_KADDR)}")
        e(f"v_mul_u32_u24 {v(QA)}, {BLK}, {v(V_T2)}")
        e(f"v_lshl_add_u32 {v(QA)}, {v(V_T3)}, 6, {v(QA)}")
        e(f"v_lshl_add_u32 {v(QA)}, {v(V_T0)}, 4, {v(QA)}")
        e(f"v_add_u32 {v(QA+2)}, {s(S_WOFF)}, {v(QA)}")
        e(f"v_add_u32 {v(QA)}, {s(S_PRIV)}, {v(QA)}")
        e(f"v_lshrrev_b32 {v(V_VADDR)}, 1, {v(V_T0)}")
        e(f"v_mul_u32_u24 {v(V_VADDR)}, {QRT}, {v(V_VADDR)}")
        e(f"v_and_b32 {v(V_T1)}, 1, {v(V_T0)}")
        e(f"v_mul_u32_u24 {v(NEGM+13)}, {BLK}, {v(V_T1)}")
        e(f"v_add_u32 {v(V_VADDR)}, {v(V_VADDR)}, {v(NEGM+13)}")
        e(f"v_lshl_add_u32 {v(V_VADDR)}, {v(V_T2)}, 6, {v(V_VADDR)}")
        e(f"v_lshl_add_u32 {v(V_VADDR)}, {v(V_T3)}, 3, {v(V_VADDR)}")
        e(f"v_add_u32 {v(V_VADDR)}, {2 * BLK}, {v(V_VADDR)}")
        for i in range(6): e(f"v_mov_b32 {v(L0+i)}, 0")
        if opt.get("hd", "2") != "2":
            for i in range(4): e(f"v_mov_b32 {v(PB[1]+i)}, 0")
            for i in range(32): e(f"v_accvgpr_write_b32 {a(AV(1,0)+i)}, 0")
        if opt.get("hd", "2") == "2":
            for i in range(160): e(f"v_mov_b32 {v(i)}, 0")
        else:
            for t in range(6):
                for i in range(16, 32): e(f"v_mov_b32 {v(O(t,0)+i)}, 0")
        self.epi_addr()
        e(f"s_mov_b32 {s(S_T1)}, 0x3e0293ee")
        e(f"v_mov_b32 {v(V_T0)}, {s(S_T1)}")
        e(f"v_mov_b32 {v(V_T1)}, {s(S_T1)}")
        e(f"s_mov_b32 {s(S_T2)}, 0xffff0000")
        hd = opt.get("hd", "2")
        if hd == "2":
            Kf = lambda tile: [self.kread(tile & 1, tile % R, kt, ks) for kt in range(2) for ks in range(4)]
            Vf = lambda tile: [self.vread(tile & 1, tile % R, dt, hh) for dt in range(8) for hh in range(2)]
            def tile_dma(tile): dma_half(tile, 'K'); dma_half(tile, 'V')
            qload(1)
            qconv(0, lambda: qload(2))
            wait_for("V1")
            e("s_barrier")
            for x in Kf(0) + Kf(1): e(x)
            e("s_waitcnt lgkmcnt(8)")
            V0r = Vf(0)
            for kt in range(2):
                for ks in range(4):
                    e(self.qk(0, 0, kt, ks, sb=0))
                    for x in V0r[8 * kt + 2 * ks: 8 * kt + 2 * ks + 2]: e(x)
            e("s_waitcnt lgkmcnt(15)")
            qload(3)
            K2 = Kf(2)
            for n in range(12):
                nq = n + 1
                lds = []; extras = []; sh = {}
                if n % 2 == 0 and n // 2 + 1 <= 5 and n > 0: qread(n // 2 + 1)
                if nq < 12 and nq % 2 == 0:
                    tq = nq >> 1
                    if tq == 1: qread(1)
                    qcvt(tq)
                    e("s_nop 1")
                    if tq == 1: extras = self.capture(lambda: qload(4))
                    if tq == 2: extras = self.capture(lambda: qload(5))
                    if tq == 3: extras = self.capture(lambda: tile_dma(2))
                    if tq == 4: extras = self.capture(lambda: tile_dma(3))
                if n == 0: extras = Vf(1)
                if n == 9:
                    wait_for("K2")
                    e("s_barrier")
                    if not opt.get("fs"): self.stamp(9)
                    lds = [None, None, K2[0], K2[1]]
                if n == 10:
                    lds = K2[2:6]
                    sh = {1: [K2[6]], 3: [K2[7]]}
                if n == 11: e("s_waitcnt lgkmcnt(0)")
                qkb = (nq & 1, nq >> 1, nq & 1) if nq < 12 else (0, 0, 0)
                pvb = ((n - 1) & 1, (n - 1) >> 1, (n - 1) & 1) if n >= 1 else None
                self.period_x(qkb, (n >> 1, n & 1), pvb, lds, sh, extras)
            wait_for("V2")
            e("s_barrier")
            for x in Vf(2): e(x)
            tile_dma(4)
            e(f"s_mov_b32 {s(S_TOFF)}, {5 * 8192}")
            self.stamp(10, 1)
            e(f"s_mov_b32 {s(S_CNT)}, {15 if self.tail2 else 16}")
            e("s_branch L_it2")
        else:
            fs = opt.get("fs")
            def fstamp(i):
                if fs and not (opt.get("fine") and i in (3, 4, 5)): self.stamp(i)
            qload(2)
            fstamp(3)
            if hd == "d":
                qconv(0, lambda: (fstamp(4), qload(3), fstamp(5)))
                fstamp(6)
            else:
                qconv(0, lambda: qload(3))
                qload(4)
            wait_for("V0")
            fstamp(7)
            e("s_barrier")
            fstamp(8)
            for kt in range(2):
                for ks in range(4): e(self.kread(0, 0, kt, ks))
            for dt in range(8):
                for hh in range(2): e(self.vread(0, 0, dt, hh))
            if hd != "d":
                qload(5)
                dma_half(1, 'K'); dma_half(1, 'V')
            e("s_waitcnt lgkmcnt(15)")
            for kt in range(2):
                for ks in range(4): e(self.qk(0, 0, kt, ks))
            fstamp(9)
            K1 = [self.kread(1, 1 % R, kt, ks) for kt in range(2) for ks in range(4)]
            V1 = [self.vread(1, 1 % R, dt, hh) for dt in range(8) for hh in range(2)]
            for t in range(6):
                if t + 1 <= 5:
                    def after(t=t):
                        if hd == "d":
                            if t == 0: qload(4)
                            if t == 1: qload(5)
                            if t == 2: dma_half(1, 'K'); dma_half(1, 'V')
                            if t == 3: dma_half(2, 'K'); dma_half(2, 'V')
                        else:
                            if t == 2: dma_half(2, 'K'); dma_half(2, 'V')
                            if t == 3: dma_half(3, 'K'); dma_half(3, 'V')
                    qconv(t + 1, after)
                    e("s_nop 1")
                if t == 0: e("s_waitcnt lgkmcnt(0)")
                if t == 5:
                    wait_for("K1")
                    e("s_barrier")
                    if not opt.get("fs"): self.stamp(9)
                    for x in K1: e(x)
                    e("s_waitcnt lgkmcnt(0)")
                self.period(0, t, [], {}, do_pv=True)
            wait_for("V1")
            e("s_barrier")
            for x in V1: e(x)
            if hd == "d":
                dma_half(3, 'K'); dma_half(3, 'V')
            e(f"s_mov_b32 {s(S_TOFF)}, {(self.D + 1) * 8192}")
            self.stamp(10, 1)
            e(f"s_mov_b32 {s(S_CNT)}, {NT // R}")
            e("s_branch L_it1")
        e(".p2align 6")
        self.lab("L_loop")
        self.inloop = True
        for j in range(R):
            if j == 1: self.lab("L_it1")
            if j == 2: self.lab("L_it2")
            self.iteration(j)
            if self.peel and j == self.exitpos: e("s_cbranch_scc0 L_last")
        if self.peel: e("s_branch L_loop")
        else: e("s_cbranch_scc1 L_loop")
        self.inloop = False
        if self.peel:
            self.lab("L_last")
            self.stamp(11, 2)
            self.last_iteration()
        else:
            self.stamp(11, 2)
            red = self.lreduce()
            e("s_nop 1")
            for dt in range(8):
                e(self.pv(63 & 1, 5, dt))
                for x in red[2*dt:2*dt+2]: e(x)
            for x in red[16:]: e(x)
            self.check()
            self.lab("L_norm")
            for t in range(6): e(f"v_rcp_f32 {v(L0+t)}, {v(L0+t)}")
            self.stamp(12, 3)
            self.epilogue()
        self.stamp(13, 4)
        if opt.get("stamp") and opt.get("dbg") is None:
            e("s_waitcnt vmcnt(0)")
            self.stamp(14, 5)
            e(f"s_load_dwordx2 {s(S_WS,2)}, s[0:1], 40")
            e("s_waitcnt lgkmcnt(0)")
            e(f"s_mov_b32 {s(S_WS+2)}, 0x20000000")
            e(f"s_mov_b32 {s(S_WS+3)}, 0x20000")
            e(f"v_mov_b32 {v(V_T0)}, 0")
            for i in range(16): e(f"v_writelane_b32 {v(V_T0)}, {s(S_RST + 2*i)}, {i}")
            for i in range(8): e(f"v_writelane_b32 {v(V_T0)}, {s(S_CST + 2*i)}, {16+i}")
            e(f"s_lshl_b32 {s(S_T0)}, s2, 2")
            e(f"s_add_u32 {s(S_T0)}, {s(S_T0)}, {s(S_W)}")
            e(f"s_lshl_b32 {s(S_T0)}, {s(S_T0)}, 8")
            e(f"v_lshlrev_b32 {v(V_T1)}, 2, {v(V_LANE)}")
            e(f"buffer_store_dword {v(V_T0)}, {v(V_T1)}, {s(S_WS,4)}, {s(S_T0)} offen")
        if opt.get("dbg") is not None:
            e("s_waitcnt vmcnt(0)")
            self.stamp(14, 5)
            e(f"s_load_dwordx2 {s(S_WS,2)}, s[0:1], 32")
            e("s_waitcnt lgkmcnt(0)")
            e(f"s_cmp_lg_u32 s2, {opt['dbg']}")
            e("s_cbranch_scc1 L_end")
            e(f"s_cmp_lg_u32 {s(S_W)}, 0")
            e("s_cbranch_scc1 L_end")
            e(f"s_mov_b32 {s(S_WS+2)}, 256")
            e(f"s_mov_b32 {s(S_WS+3)}, 0x20000")
            e(f"v_mov_b32 {v(V_T0)}, 0")
            for i in range(1, 15):
                e(f"s_sub_u32 {s(S_T0)}, {s(S_RST + 2*i)}, {s(S_RST)}")
                e(f"v_writelane_b32 {v(V_T0)}, {s(S_T0)}, {i - 1}")
            e(f"s_sub_u32 {s(S_T0)}, {s(S_CST + 4)}, {s(S_CST + 2)}")
            e(f"v_writelane_b32 {v(V_T0)}, {s(S_T0)}, 14")
            e(f"s_sub_u32 {s(S_T0)}, {s(S_CST + 10)}, {s(S_CST)}")
            e(f"v_writelane_b32 {v(V_T0)}, {s(S_T0)}, 15")
            e(f"v_lshlrev_b32 {v(V_T1)}, 2, {v(V_LANE)}")
            e(f"buffer_store_dword {v(V_T0)}, {v(V_T1)}, {s(S_WS,4)}, 0 offen")
        for _ in range(opt.get("sleep1", 0)): e("s_sleep 32")
        self.lab("L_end")
        e("s_endpgm")
        if not opt.get("nocheck"): self.fallback()
        self.o.append(f""".section .rodata,"a"
.p2align 6
.amdhsa_kernel {KN}
  .amdhsa_next_free_vgpr 512
  .amdhsa_next_free_sgpr 102
  .amdhsa_accum_offset 256
  .amdhsa_group_segment_fixed_size 0
  .amdhsa_kernarg_size 48
  .amdhsa_user_sgpr_count 2
  .amdhsa_user_sgpr_kernarg_segment_ptr 1
  .amdhsa_system_sgpr_workgroup_id_x 1
.end_amdhsa_kernel""")
        return "\n".join(self.o) + "\n"

    def check(self):
        if self.opt.get("nocheck"): return
        e = self.e
        e(f"v_max3_f32 {v(NEGM)}, {v(L0)}, {v(L0+1)}, {v(L0+2)}")
        e(f"v_min3_f32 {v(NEGM+1)}, {v(L0)}, {v(L0+1)}, {v(L0+2)}")
        e(f"v_max3_f32 {v(NEGM)}, {v(NEGM)}, {v(L0+3)}, {v(L0+4)}")
        e(f"v_min3_f32 {v(NEGM+1)}, {v(NEGM+1)}, {v(L0+3)}, {v(L0+4)}")
        e(f"v_max_f32 {v(NEGM)}, {v(NEGM)}, {v(L0+5)}")
        e(f"v_min_f32 {v(NEGM+1)}, {v(NEGM+1)}, {v(L0+5)}")
        e(f"s_mov_b32 {s(S_T1)}, 0x53800000")
        e(f"s_mov_b32 {s(S_T3)}, 0x37800000")
        e(f"v_cmp_ge_f32 vcc, {s(S_T1)}, {v(NEGM)}")
        e(f"v_cmp_le_f32 {s(S_CMP,2)}, {s(S_T3)}, {v(NEGM+1)}")
        e(f"s_and_b64 vcc, vcc, {s(S_CMP,2)}")
        e("s_cmp_eq_u64 vcc, -1")
        e("s_cbranch_scc0 L_fallback")

    def epi_addr(self):
        e = self.e
        WA, RA, GA = V_T2, V_T3, V_OST
        e(f"v_and_b32 {v(NEGM+16)}, 15, {v(V_LANE)}")
        e(f"v_lshrrev_b32 {v(NEGM+17)}, 4, {v(V_LANE)}")
        e(f"v_mul_u32_u24 {v(WA)}, 272, {v(NEGM+16)}")
        e(f"v_lshl_add_u32 {v(WA)}, {v(NEGM+17)}, 3, {v(WA)}")
        e(f"v_add_u32 {v(WA)}, {s(S_PRIV)}, {v(WA)}")
        e(f"v_mul_u32_u24 {v(RA)}, 272, {v(NEGM+17)}")
        e(f"v_lshl_add_u32 {v(RA)}, {v(NEGM+16)}, 4, {v(RA)}")
        e(f"v_add_u32 {v(RA)}, {s(S_PRIV)}, {v(RA)}")
        e(f"s_mul_i32 {s(S_T1)}, {s(S_W)}, {96 * 256}")
        e(f"v_lshlrev_b32 {v(GA)}, 4, {v(V_LANE)}")
        e(f"v_add_u32 {v(GA)}, {s(S_T1)}, {v(GA)}")

    def last_iteration(self):
        e = self.e; opt = self.opt
        WA, RA, GA = V_T2, V_T3, V_OST
        RC = NEGM + 8
        def lred(t):
            L, T = L0 + t, NEGM + t
            return [f"v_mov_b32 {v(T)}, {v(L)}", "s_nop 1", f"v_permlane32_swap_b32 {v(L)}, {v(T)}", "s_nop 0", f"v_add_f32 {v(L)}, {v(L)}, {v(T)}",
                    f"v_mov_b32 {v(T)}, {v(L)}", "s_nop 1", f"v_permlane16_swap_b32 {v(L)}, {v(T)}", "s_nop 0", f"v_add_f32 {v(L)}, {v(L)}, {v(T)}",
                    f"v_rcp_f32 {v(RC+t)}, {v(L)}", "s_nop 0"]
        def norm(t, pk=False):
            x = []
            if pk:
                x += [f"v_mov_b32 {v(V_T0)}, {v(RC+t)}", f"v_mov_b32 {v(V_T1)}, {v(RC+t)}"]
            for dt in range(8):
                o = O(t, dt)
                if pk:
                    x += [f"v_pk_mul_f32 {v(o,2)}, {v(o,2)}, {v(V_T0,2)}", f"v_pk_mul_f32 {v(o+2,2)}, {v(o+2,2)}, {v(V_T0,2)}"]
                else:
                    x += [f"v_mul_f32 {v(o+r)}, {v(o+r)}, {v(RC+t)}" for r in range(4)]
                x += [f"v_cvt_pk_bf16_f32 {v(o)}, {v(o)}, {v(o+1)}", f"v_cvt_pk_bf16_f32 {v(o+1)}, {v(o+2)}, {v(o+3)}",
                      f"ds_write_b64 {v(WA)}, {v(o,2)} offset:{(t & 1) * STG + 32 * dt}"]
            x += [f"ds_read_b128 {v(O(t, 0) + 4 * k, 4)}, {v(RA)} offset:{(t & 1) * STG + k * 4 * 272}" for k in range(4)]
            return x
        def stores(t):
            if opt.get("nostore"): return []
            return [f"buffer_store_dwordx4 {v(O(t, 0) + 4 * k, 4)}, {v(GA)}, {s(S_OSRD,4)}, {s(S_T0)} offen offset:{1024 * k}{self.stfl}" for k in range(4)]
        def pre(t, n=0): return [f"s_waitcnt lgkmcnt({n})", f"s_mov_b32 {s(S_T0)}, {t * 4096}"]
        def weave(main, sts):
            out = []; n = len(main); k = len(sts)
            marks = {(i * n) // k + 1: i for i in range(k)} if k else {}
            for i, x in enumerate(main):
                if i in marks: out.append(sts[marks[i]])
                out.append(x)
            return out
        pk = opt.get("epipk", False)
        def weave2(main, sts):
            if not main: return list(sts)
            return weave(main, sts)
        if self.tail2:
            self.c("---- last two tiles, q-tile major")
            b = [(0, 62), (1, 62), (0, 63), (1, 63), (2, 62), (2, 63), (3, 62), (3, 63), (4, 62), (4, 63), (5, 62), (5, 63)]
            K63 = [self.kread(1, 63 % R, kt, ks) for kt in range(2) for ks in range(4)]
            V63 = [self.vread(1, 63 % R, dt, hh) for dt in range(8) for hh in range(2)]
            exs = {3: lambda: lred(0), 4: lambda: lred(1) + norm(0, pk),
                   5: lambda: pre(0) + weave2(norm(1, pk), stores(0)), 6: lambda: pre(1) + weave2(lred(2), stores(1)),
                   7: lambda: norm(2, pk), 8: lambda: pre(2) + weave2(lred(3), stores(2)),
                   9: lambda: norm(3, pk), 10: lambda: pre(3) + weave2(lred(4), stores(3)), 11: lambda: norm(4, pk)}
            for n in range(12):
                sh = {}; lds = []
                if n == 0:
                    sh[0] = [f"s_waitcnt vmcnt({4 * (self.D - 2)})", "s_barrier"]
                    lds = K63[0:4]
                    for i, g in enumerate((1, 3, 5, 7)): sh[g] = [K63[4 + i]]
                if n == 1:
                    sh[0] = []
                    e("s_waitcnt lgkmcnt(0)")
                if n in (1, 2):
                    o = 8 * (n - 1)
                    lds = V63[o:o + 4]
                    for i, g in enumerate((1, 3, 5, 7)): sh[g] = [V63[o + 4 + i]]
                if n == 3: sh[0] = ["s_waitcnt lgkmcnt(0)"]
                qkb = (b[n + 1][1] & 1, b[n + 1][0], (n + 1) & 1) if n < 11 else None
                pvb = (b[n - 1][1] & 1, b[n - 1][0], (n - 1) & 1) if n >= 1 else (1, 5, 1)
                self.period_x(qkb, (b[n][0], n & 1), pvb, lds, sh, exs[n]() if n in exs else None)
            ex = pre(4) + weave2(lred(5), stores(4))
            e("s_nop 1")
            n = len(ex)
            for dt in range(8):
                e(self.pv(1, 5, dt, pb=1))
                for x in ex[dt * n // 8:(dt + 1) * n // 8]: e(x)
            self.check()
            self.stamp(12, 3)
            for x in norm(5, pk=True): e(x)
            for x in pre(5) + stores(5): e(x)
            return
        self.c("---- last tile")
        for t in range(6):
            sh = {}
            if t == 1: sh[0] = ["s_waitcnt lgkmcnt(0)"]
            ex = []
            if t >= 1: ex += lred(t - 1)
            if t >= 2: ex += norm(t - 2, pk)
            if t >= 3: ex = pre(t - 3) + weave(ex, stores(t - 3))
            self.period(63, t, [], sh, do_qk=(t < 5), extras=ex)
        ex = pre(3) + weave(lred(5) + norm(4, pk), stores(3))
        e("s_nop 1")
        n = len(ex)
        for dt in range(8):
            e(self.pv(63 & 1, 5, dt))
            for x in ex[dt * n // 8:(dt + 1) * n // 8]: e(x)
        self.check()
        self.stamp(12, 3)
        nx = norm(5, pk=True)
        for x in pre(4) + weave(nx[:-4], stores(4)) + nx[-4:]: e(x)
        for x in pre(5) + stores(5): e(x)

    def epilogue(self):
        e = self.e; opt = self.opt
        WA, RA, GA = V_T2, V_T3, V_OST
        PK = [SB[0], NEGM]
        RD = [160 - 160 + 0, 0]
        e(f"s_mul_i32 {s(S_T1)}, {s(S_W)}, {PRIV}")
        e(f"s_add_u32 {s(S_T1)}, {s(S_T1)}, {R * SLOT}")
        e(f"v_and_b32 {v(V_T0)}, 15, {v(V_LANE)}")
        e(f"v_lshrrev_b32 {v(V_T1)}, 4, {v(V_LANE)}")
        e(f"v_mul_u32_u24 {v(WA)}, 272, {v(V_T0)}")
        e(f"v_lshl_add_u32 {v(WA)}, {v(V_T1)}, 3, {v(WA)}")
        e(f"v_add_u32 {v(WA)}, {s(S_T1)}, {v(WA)}")
        e(f"v_mul_u32_u24 {v(RA)}, 272, {v(V_T1)}")
        e(f"v_lshl_add_u32 {v(RA)}, {v(V_T0)}, 4, {v(RA)}")
        e(f"v_add_u32 {v(RA)}, {s(S_T1)}, {v(RA)}")
        e(f"s_mul_i32 {s(S_T1)}, {s(S_W)}, {96 * 256}")
        e(f"v_lshlrev_b32 {v(GA)}, 4, {v(V_LANE)}")
        e(f"v_add_u32 {v(GA)}, {s(S_T1)}, {v(GA)}")
        def pack(t):
            L = L0 + t
            e(f"v_mov_b32 {v(V_T0)}, {v(L)}")
            e(f"v_mov_b32 {v(V_T1)}, {v(L)}")
            for dt in range(8):
                o = O(t, dt)
                e(f"v_pk_mul_f32 {v(o,2)}, {v(o,2)}, {v(V_T0,2)}")
                e(f"v_pk_mul_f32 {v(o+2,2)}, {v(o+2,2)}, {v(V_T0,2)}")
            for dt in range(8):
                o = O(t, dt)
                e(f"v_cvt_pk_bf16_f32 {v(o)}, {v(o)}, {v(o+1)}")
                e(f"v_cvt_pk_bf16_f32 {v(o+1)}, {v(o+2)}, {v(o+3)}")
                e(f"ds_write_b64 {v(WA)}, {v(o,2)} offset:{(t & 1) * STG + 32 * dt}")
        def unload(t):
            for k in range(4):
                e(f"ds_read_b128 {v(O(t, 0) + 4 * k, 4)}, {v(RA)} offset:{(t & 1) * STG + k * 4 * 272}")
        def store(t):
            e(f"s_mov_b32 {s(S_T0)}, {t * 4096}")
            for k in range(4):
                if not opt.get("nostore"):
                    e(f"buffer_store_dwordx4 {v(O(t, 0) + 4 * k, 4)}, {v(GA)}, {s(S_OSRD,4)}, {s(S_T0)} offen offset:{1024 * k}{self.stfl}")
        pack(0); unload(0)
        for t in range(1, 6):
            pack(t)
            e("s_waitcnt lgkmcnt(8)")
            store(t - 1)
            unload(t)
        e("s_waitcnt lgkmcnt(0)")
        store(5)

    def fallback(self):
        e = self.e
        FA, FB, FK, FV = V_T0, V_T1, V_T2, V_T3
        MX = L0
        self.lab("L_fallback")
        e("s_waitcnt vmcnt(0) lgkmcnt(0)")
        e("s_barrier")
        e(f"s_lshl_b32 {s(S_T0)}, {s(S_W)}, 11")
        e(f"v_subrev_u32 {v(FA)}, {s(S_T0)}, {v(V_OFFA)}")
        e(f"v_subrev_u32 {v(FB)}, {s(S_T0)}, {v(V_OFFB)}")
        e(f"s_mul_i32 {s(S_WOFF)}, {s(S_W)}, {SLOT}")
        e(f"v_add_u32 {v(FK)}, {s(S_WOFF)}, {v(V_KADDR)}")
        e(f"v_add_u32 {v(FV)}, {s(S_WOFF)}, {v(V_VADDR)}")
        def load_tile(with_v):
            for q in range(4):
                e(f"s_add_u32 m0, {s(S_WOFF)}, {q * QRT}")
                e(f"s_add_u32 {s(S_TOFF)}, {s(S_T1)}, {q * 2048}")
                for i in range(4 if with_v else 2): e(self.dma(i, FA, FB))
            e("s_waitcnt vmcnt(0)")
            for kt in range(2):
                for ks in range(4): e(self.kread(0, 0, kt, ks, FK))
            if with_v:
                for dt in range(8):
                    for hh in range(2): e(self.vread(0, 0, dt, hh, FV))
            e("s_waitcnt lgkmcnt(0)")
        for t in range(6): e(f"v_mov_b32 {v(MX+t)}, 0xff800000")
        e(f"s_mov_b32 {s(S_T1)}, 0")
        self.lab("L_fb1")
        load_tile(False)
        for t in range(6):
            for kt in range(2):
                for ks in range(4): e(self.qk(0, t, kt, ks))
            e("s_nop 7")
            e("s_nop 1")
            S = SB[t & 1]
            for i in range(0, 8, 2): e(f"v_max3_f32 {v(MX+t)}, {v(MX+t)}, {v(S+i)}, {v(S+i+1)}")
        e(f"s_add_u32 {s(S_T1)}, {s(S_T1)}, 8192")
        e(f"s_cmp_lt_u32 {s(S_T1)}, {NT * 8192}")
        e("s_cbranch_scc1 L_fb1")
        for x in self.lreduce("v_max_f32"):
            e(x); e("s_nop 1")
        for t in range(6):
            for r in range(4): e(f"v_sub_f32 {v(NEGM + 4*t + r)}, 0, {v(MX+t)}")
        for t in range(6): e(f"v_mov_b32 {v(L0+t)}, 0")
        for i in range(192): e(f"v_mov_b32 {v(i)}, 0")
        e(f"s_mov_b32 {s(S_T1)}, 0")
        self.lab("L_fb2")
        load_tile(True)
        for t in range(6):
            for kt in range(2):
                for ks in range(4): e(self.qk(0, t, kt, ks, v(NEGM + 4*t, 4)))
            e("s_nop 7")
            e("s_nop 1")
            S = SB[t & 1]; P = PB[t & 1]
            for i in range(8): e(f"v_exp_f32 {v(S+i)}, {v(S+i)}")
            e("s_nop 0")
            for i in range(8): e(f"v_add_f32 {v(L0+t)}, {v(L0+t)}, {v(S+i)}")
            for i in range(4): e(f"v_cvt_pk_bf16_f32 {v(P+i)}, {v(S+2*i)}, {v(S+2*i+1)}")
            e("s_nop 1")
            for dt in range(8): e(self.pv(0, t, dt))
        e(f"s_add_u32 {s(S_T1)}, {s(S_T1)}, 8192")
        e(f"s_cmp_lt_u32 {s(S_T1)}, {NT * 8192}")
        e("s_cbranch_scc1 L_fb2")
        for x in self.lreduce():
            e(x); e("s_nop 1")
        e("s_nop 7")
        if self.peel:
            for t in range(6): e(f"v_rcp_f32 {v(L0+t)}, {v(L0+t)}")
            self.epilogue()
            e("s_endpgm")
        else:
            e("s_branch L_norm")

if __name__ == "__main__":
    opt = {}
    out = sys.argv[1]
    for x in sys.argv[2:]:
        k, _, val = x.partition("=")
        opt[k] = eval(val) if val else True
    open(out, "w").write(Gen(opt).build())
```

```python
import sys

KN = "standalone__mha_softmax__near_ridge_kernel"
M16 = "v_mfma_f32_16x16x32_bf16"
NT = 64
BLK = 1056
QRT = 4 * BLK
SLOT = 4 * QRT
R = 4
STG = 16 * 272
QBUF = 4 * BLK
PRIV = 3 * QBUF

def O(t, dt): return 32 * t + 4 * dt
SB = [192, 200]
PB = [208, 212]
L0 = 216
V_KADDR, V_VADDR, V_OFFA, V_OFFB = 222, 223, 224, 225
V_LANE, V_OST, V_T0, V_T1, V_T2, V_T3 = 226, 227, 228, 229, 230, 231
NEGM = 232
def AQ(t, ks): return 16 * t + 4 * ks
def AK(p, kt, ks): return 96 + 32 * p + 16 * kt + 4 * ks
def AV(p, dt): return 160 + 32 * p + 4 * dt

S_QSRD, S_KSRD, S_VSRD, S_OSRD = 4, 8, 12, 16
S_W, S_WOFF, S_TOFF, S_CNT, S_T0, S_T1, S_T2, S_T3 = 20, 21, 22, 23, 24, 25, 26, 27
S_WS = 28
S_PRIV = 88
S_CMP = 90
S_RST = 40
S_CST = 72

def v(a, n=1): return f"v{a}" if n == 1 else f"v[{a}:{a+n-1}]"
def a(x, n=1): return f"a{x}" if n == 1 else f"a[{x}:{x+n-1}]"
def s(x, n=1): return f"s{x}" if n == 1 else f"s[{x}:{x+n-1}]"

class Gen:
    def __init__(self, opt):
        self.o = []
        self.opt = opt
        self.LDS = R * SLOT + 4 * PRIV
        self.ldfl = opt.get("ldfl", " nt")
        self.qfl = opt.get("qfl", " nt")
        self.stfl = opt.get("stfl", " sc0 sc1 nt")
        self.inloop = False
        self.D = 3
        self.peel = opt.get('peel', True)
        self.tail2 = opt.get('tail2', True) and self.peel
        self.exitpos = (1 if self.tail2 else 2) if self.peel else 3
    def e(self, line): self.o.append("    " + line)
    def lab(self, name): self.o.append(name + ":")
    def c(self, txt): self.o.append("    ; " + txt)
    def nit(self):
        first = 2 if self.opt.get("hd", "2") == "2" else 1
        last = 63 if not self.peel else (61 if self.tail2 else 62)
        return last - first + 1
    def capture(self, fn):
        saved = self.o; self.o = []
        fn()
        lines = [x.strip() for x in self.o]; self.o = saved
        return lines
    def stamp(self, idx, cyc=None):
        if self.opt.get("stamp"):
            self.e(f"s_memrealtime {s(S_RST + 2 * idx, 2)}")
            if cyc is not None: self.e(f"s_memtime {s(S_CST + 2 * cyc, 2)}")

    def dma(self, i, va=V_OFFA, vb=V_OFFB):
        srd = S_KSRD if i < 2 else S_VSRD
        off = f" offset:{i * BLK}" if i else ""
        return f"buffer_load_dwordx4 {v(va if i % 2 == 0 else vb)}, {s(srd,4)}, {s(S_TOFF)} offen{off}{self.ldfl} lds"
    def m0set(self, slot): return f"s_add_u32 m0, {s(S_WOFF)}, {slot * SLOT}"
    def kread(self, p, slot, kt, ks, addr=V_KADDR):
        return f"ds_read_b128 {a(AK(p, kt, ks), 4)}, {v(addr)} offset:{slot * SLOT + kt * 2 * QRT + 256 * ks}"
    def vread(self, p, slot, dt, hh, addr=V_VADDR):
        return f"ds_read_b64_tr_b16 {a(AV(p, dt) + 2 * hh, 2)}, {v(addr)} offset:{slot * SLOT + hh * 2 * QRT + 256 * (dt >> 1) + 32 * (dt & 1)}"
    def qk(self, p, t, kt, ks, cinit="0", sb=None):
        d = v(SB[t & 1 if sb is None else sb] + 4 * kt, 4)
        return f"{M16} {d}, {a(AK(p, kt, ks), 4)}, {a(AQ(t, ks), 4)}, {cinit if ks == 0 else d}"
    def pv(self, p, t, dt, pb=None):
        d = v(O(t, dt), 4)
        return f"{M16} {d}, {a(AV(p, dt), 4)}, {v(PB[t & 1 if pb is None else pb], 4)}, {d}"

    def period(self, j, t, lds, shadow, do_qk=True, do_pv=True, extras=None, bp=None):
        jq, tq = (j, t + 1) if t < 5 else (j + 1, 0)
        jp, tp = (j, t - 1) if t > 0 else (j - 1, 5)
        self.period_x((jq & 1, tq, tq & 1) if do_qk else None, (t, t & 1), (jp & 1, tp, tp & 1) if do_pv else None, lds, shadow, extras, bp)

    def period_x(self, qkb, sm, pvb, lds, shadow, extras=None, bp=None):
        Q = [self.qk(qkb[0], qkb[1], kt, ks, sb=qkb[2]) if qkb else None for kt in range(2) for ks in range(4)]
        V = [self.pv(pvb[0], pvb[1], dt, pb=pvb[2]) if pvb else None for dt in range(8)]
        if self.opt.get("order", "88") == "4444": mf = Q[0:4] + V[0:4] + Q[4:8] + V[4:8]
        else: mf = Q + V
        t, sb = sm
        S = SB[sb]; P = PB[sb]; L = L0 + t
        ex = lambda i: f"v_exp_f32 {v(S+i)}, {v(S+i)}"
        ad = lambda i: f"v_add_f32 {v(L)}, {v(L)}, {v(S+i)}"
        cv = lambda i: f"v_cvt_pk_bf16_f32 {v(P+i)}, {v(S+2*i)}, {v(S+2*i+1)}"
        lds = list(lds) + [None] * (4 - len(lds))
        fill = {0: [ex(0)], 1: [ex(1)], 2: [lds[0], ad(0)], 3: [ex(2)], 4: [ad(1), cv(0)], 5: [ex(3)],
                6: [lds[1], ad(2)], 7: [ex(4)], 8: [ad(3), cv(1)], 9: [ex(5)], 10: [lds[2], ad(4)],
                11: [ex(6)], 12: [ad(5), cv(2)], 13: [ex(7)], 14: [lds[3], ad(6)], 15: [ad(7), cv(3)]}
        if bp:
            LP = NEGM + 16 + 2 * t
            fill[6] = [lds[1], cv(1)]
            fill[8] = [bp, f"v_pk_add_f32 {v(LP,2)}, {v(LP,2)}, {v(S+2,2)}"]
        abl = self.opt.get("abl", "") if self.inloop else ""
        for g in range(16):
            if mf[g]: self.e(mf[g])
            for x in shadow.get(g, []):
                if 'D' in abl and x.startswith("buffer_load"): continue
                if 'B' in abl and x.startswith("s_barrier"): continue
                self.e(x)
            for x in fill[g]:
                if x is None: continue
                if 'e' in abl and x.startswith("v_exp"): continue
                if 'a' in abl and x.startswith("v_add"): continue
                if 'c' in abl and x.startswith("v_cvt"): continue
                if 'l' in abl and x.startswith("ds_read"): continue
                self.e(x)
            if extras:
                n = len(extras)
                for x in extras[g * n // 16:(g + 1) * n // 16]: self.e(x)

    def iteration(self, j):
        self.c(f"---- iteration j%R={j % R}")
        p1 = (j + 1) & 1
        s1 = (j + 1) % R
        K = [self.kread(p1, s1, kt, ks) for kt in range(2) for ks in range(4)]
        V = [self.vread(p1, s1, dt, hh) for dt in range(8) for hh in range(2)]
        sched = [K[0:4], [K[4]] + V[0:3], [K[5]] + V[3:6], [K[6]] + V[6:9], [K[7]] + V[9:12], V[12:16]]
        sl = (j + self.D) % R
        bpm = self.opt.get("bp", False)
        pos = self.opt.get("dmapos", {0: [(1, 'm')], 3: [(11, 'inc')]} if bpm else {0: [(1, 'm'), (3, 0)], 1: [(3, 1)], 2: [(3, 2)], 3: [(3, 3), (5, 'inc')]})
        for t in range(6):
            sh = {}
            if t == 0: sh[0] = [f"s_waitcnt vmcnt({4 * (self.D - 2)})", "s_barrier"]
            if t == 1: sh[0] = ["s_waitcnt lgkmcnt(4)"]
            if t == 4: sh[15] = ["s_waitcnt lgkmcnt(3)"]
            for (g, what) in pos.get(t, []):
                if what == 'm': ins = self.m0set(sl)
                elif what == 'inc': ins = f"s_add_u32 {s(S_TOFF)}, {s(S_TOFF)}, 8192"
                else: ins = self.dma(what)
                sh.setdefault(g, []).append(ins)
            if t == 5 and j % R == self.exitpos:
                sh.setdefault(3, []).append(f"s_sub_u32 {s(S_CNT)}, {s(S_CNT)}, 1")
                sh.setdefault(5, []).append(f"s_cmp_lg_u32 {s(S_CNT)}, 0")
            self.period(j, t, sched[t], sh, bp=(self.dma(t) if bpm and t < 4 else None))

    def lreduce(self, op="v_add_f32", regs=None):
        regs = regs or [L0 + t for t in range(6)]
        red = []
        for t in range(6): red.append(f"v_mov_b32 {v(NEGM+t)}, {v(regs[t])}")
        for t in range(6): red.append(f"v_permlane32_swap_b32 {v(regs[t])}, {v(NEGM+t)}")
        for t in range(6): red.append(f"{op} {v(regs[t])}, {v(regs[t])}, {v(NEGM+t)}")
        for t in range(6): red.append(f"v_mov_b32 {v(NEGM+t)}, {v(regs[t])}")
        for t in range(6): red.append(f"v_permlane16_swap_b32 {v(regs[t])}, {v(NEGM+t)}")
        for t in range(6): red.append(f"{op} {v(regs[t])}, {v(regs[t])}, {v(NEGM+t)}")
        return red

    def build(self):
        opt = self.opt
        e = self.e
        self.o.append(f"""; MHA forward, B=8 H=32 Sq=384 Sk=2048 D=128, bf16.  One workgroup (4 waves x 96 query rows) per head.
; @launch grid=(256,1,1) block=(256,1,1) lds={self.LDS}
.amdgcn_target "amdgcn-amd-amdhsa--gfx950"
.text
.globl {KN}
.p2align 8
.type {KN},@function
{KN}:""")
        e("s_load_dwordx4 s[32:35], s[0:1], 0")
        e("s_load_dwordx4 s[36:39], s[0:1], 16")
        e("s_cmpk_ge_u32 s2, 0x100")
        e("s_cbranch_scc1 L_end")
        self.stamp(0)
        for _ in range(opt.get("sleep0", 0)): e("s_sleep 32")
        QV = NEGM + 8
        X = QV + 3
        e(f"v_lshrrev_b32 {v(V_T1)}, 6, v0")
        e(f"v_bfe_u32 {v(V_T2)}, v0, 2, 2")
        e(f"v_bfe_u32 {v(V_T0)}, v0, 4, 2")
        e(f"v_readfirstlane_b32 {s(S_W)}, {v(V_T1)}")
        e(f"v_and_b32 {v(V_T3)}, 3, v0")
        e(f"v_lshlrev_b32 {v(X)}, 8, {v(V_T2)}")
        e(f"v_lshl_add_u32 {v(X)}, {v(V_T0)}, 6, {v(X)}")
        e(f"v_lshl_add_u32 {v(X)}, {v(V_T3)}, 4, {v(X)}")
        if opt.get("dmalin"):
            e(f"v_and_b32 {v(X)}, 63, v0"); e(f"v_lshlrev_b32 {v(X)}, 4, {v(X)}")
        e(f"s_lshl_b32 {s(S_T0)}, {s(S_W)}, 11")
        e(f"s_mul_i32 {s(S_WOFF)}, {s(S_W)}, {QRT}")
        e(f"v_add_u32 {v(V_OFFB)}, {s(S_T0)}, {v(X)}")
        e(f"v_add_u32 {v(V_OFFA)}, 32, {v(V_OFFB)}")
        e(f"s_mul_i32 {s(S_T0)}, {s(S_W)}, {96 * 256}")
        e(f"v_add_u32 {v(QV+3)}, {s(S_T0)}, {v(X)}")
        e(f"v_add_u32 {v(QV+2)}, 32, {v(QV+3)}")
        e(f"v_add_u32 {v(QV+1)}, 32, {v(QV+2)}")
        e(f"v_add_u32 {v(QV)}, 32, {v(QV+1)}")
        e(f"s_mul_i32 {s(S_PRIV)}, {s(S_W)}, {PRIV}")
        e(f"s_add_u32 {s(S_PRIV)}, {s(S_PRIV)}, {R * SLOT}")
        if opt.get("remap", False):
            e(f"s_and_b32 {s(S_T0)}, s2, 7")
            e(f"s_lshl_b32 {s(S_T0)}, {s(S_T0)}, 5")
            e(f"s_lshr_b32 {s(S_T1)}, s2, 3")
            e(f"s_add_u32 s2, {s(S_T0)}, {s(S_T1)}")
        e(f"s_mul_i32 {s(S_T0)}, s2, 98304")
        e(f"s_lshl_b32 {s(S_T1)}, s2, 19")
        e(f"s_mov_b32 {s(S_KSRD+3)}, 0x20000")
        e(f"s_mov_b32 {s(S_KSRD+2)}, {524288 + 32}")
        e(f"s_mov_b32 {s(S_QSRD+3)}, {s(S_KSRD+3)}")
        e(f"s_mov_b32 {s(S_QSRD+2)}, {s(S_KSRD+2)}")
        e(f"s_mov_b32 {s(S_VSRD+3)}, {s(S_KSRD+3)}")
        e(f"s_mov_b32 {s(S_VSRD+2)}, {s(S_KSRD+2)}")
        e(f"s_mov_b32 {s(S_TOFF)}, 0")
        e(f"s_mov_b32 m0, {s(S_WOFF)}")
        e("s_waitcnt lgkmcnt(0)")
        if opt.get("fine"): self.stamp(1)
        e(f"s_add_u32 {s(S_KSRD)}, s34, {s(S_T1)}")
        e(f"s_addc_u32 {s(S_KSRD+1)}, s35, 0")
        e(f"s_sub_u32 {s(S_KSRD)}, {s(S_KSRD)}, 32")
        e(f"s_subb_u32 {s(S_KSRD+1)}, {s(S_KSRD+1)}, 0")
        vm = []
        e(self.dma(0)); e(self.dma(1)); vm += ["K0", "K0"]
        if opt.get("fine"): self.stamp(3)
        e(f"s_add_u32 {s(S_QSRD)}, s32, {s(S_T0)}")
        e(f"s_addc_u32 {s(S_QSRD+1)}, s33, 0")
        e(f"s_sub_u32 {s(S_QSRD)}, {s(S_QSRD)}, 96")
        e(f"s_subb_u32 {s(S_QSRD+1)}, {s(S_QSRD+1)}, 0")
        QPLACE = {0: ('p', 0), 1: ('p', QBUF), 2: ('p', 2 * QBUF), 3: ('r', 2 * SLOT), 4: ('r', 3 * SLOT), 5: ('p', 0)}
        def qload(t, pad=None):
            kind, off_ = QPLACE[t]
            base = s(S_PRIV if kind == 'p' else S_WOFF)
            e(f"s_add_u32 m0, {base}, {off_}" if off_ else f"s_mov_b32 m0, {base}")
            if t == 0: e(pad or "s_nop 0")
            else: e(f"s_movk_i32 {s(S_T3)}, {t * 4096}")
            for b in range(4):
                off = f" offset:{b * BLK}" if b else ""
                e(f"buffer_load_dwordx4 {v(QV+b)}, {s(S_QSRD,4)}, {s(S_TOFF if t == 0 else S_T3)} offen{off}{self.qfl} lds")
                vm.append(f"Q{t}")
        qload(0, pad=f"s_add_u32 {s(S_VSRD)}, s36, {s(S_T1)}")
        if opt.get("fine"): self.stamp(4)
        e(f"s_addc_u32 {s(S_VSRD+1)}, s37, 0")
        e(f"s_sub_u32 {s(S_VSRD)}, {s(S_VSRD)}, 2144")
        e(f"s_mov_b32 m0, {s(S_WOFF)}")
        e(f"s_subb_u32 {s(S_VSRD+1)}, {s(S_VSRD+1)}, 0")
        e(self.dma(2)); e(self.dma(3)); vm += ["V0", "V0"]
        if opt.get("fine"): self.stamp(5)
        if opt.get("hd", "2") == "2":
            e(f"s_add_u32 m0, {s(S_WOFF)}, {SLOT}")
            e(f"s_movk_i32 {s(S_TOFF)}, 0x2000")
            for i in range(4): e(self.dma(i))
            vm += ["K1", "K1", "V1", "V1"]
        else:
            qload(1)
        self.stamp(2, 0)
        if opt.get("stamp") and not opt.get("fine"): self.stamp(1)
        e(f"s_mov_b32 {s(S_QSRD+2)}, {98304 + 96}")
        e(f"s_mov_b32 {s(S_VSRD+2)}, {524288 + 2144}")
        e(f"s_mov_b32 {s(S_OSRD+2)}, 98304")
        e(f"s_mov_b32 {s(S_OSRD+3)}, {s(S_KSRD+3)}")
        e(f"s_add_u32 {s(S_OSRD)}, s38, {s(S_T0)}")
        e(f"s_addc_u32 {s(S_OSRD+1)}, s39, 0")
        e(f"v_and_b32 {v(V_LANE)}, 63, v0")
        def dma_half(tile, kv):
            e(f"s_mov_b32 {s(S_TOFF)}, {tile * 8192}")
            e(self.m0set(tile % R))
            e("s_nop 0")
            for i in ((0, 1) if kv == 'K' else (2, 3)): e(self.dma(i))
            vm.extend([f"{kv}{tile}"] * 2)
        def wait_for(lbl):
            last = max(i for i, x in enumerate(vm) if x == lbl)
            e(f"s_waitcnt vmcnt({len(vm) - 1 - last})")
        TMPC = NEGM
        QA = NEGM + 12
        two = opt.get("hd", "2") == "2"
        def qread(t):
            land = (O(5, 0) + (16 if t == 5 else 0)) if two else O(t, 0)
            wait_for(f"Q{t}")
            if not opt.get("fs"): self.stamp(3 + t)
            for ks in range(4):
                kind, off_ = QPLACE[t]
                e(f"ds_read_b128 {v(land + 4 * ks, 4)}, {v(QA if kind == 'p' else QA + 2)} offset:{off_ + 256 * ks}")
        def qcvt(t, after_read=None):
            land = (O(5, 0) + (16 if t == 5 else 0)) if two else O(t, 0)
            if two and t == 5:
                for i in range(16): e(f"v_mov_b32 {v(O(5, 0) + i)}, 0")
            e("s_waitcnt lgkmcnt(0)")
            if after_read: after_read()
            for i in range(16):
                x = land + i
                lo = TMPC + 2 * (i % 4); hi = lo + 1
                e(f"v_lshlrev_b32 {v(lo)}, 16, {v(x)}")
                e(f"v_and_b32 {v(hi)}, {s(S_T2)}, {v(x)}")
                e(f"v_pk_mul_f32 {v(lo,2)}, {v(lo,2)}, {v(V_T0,2)}")
                e(f"v_cvt_pk_bf16_f32 {v(lo)}, {v(lo)}, {v(hi)}")
                e(f"v_accvgpr_write_b32 {a(AQ(t,0)+i)}, {v(lo)}")
                if not two or t == 5: e(f"v_mov_b32 {v(x)}, 0")
        def qconv(t, after_read=None):
            qread(t); qcvt(t, after_read)
        e(f"v_lshrrev_b32 {v(V_KADDR)}, 1, {v(V_T2)}")
        e(f"v_mul_u32_u24 {v(V_KADDR)}, {QRT}, {v(V_KADDR)}")
        e(f"v_and_b32 {v(V_VADDR)}, 1, {v(V_T2)}")
        e(f"v_mul_u32_u24 {v(V_VADDR)}, {BLK}, {v(V_VADDR)}")
        e(f"v_add_u32 {v(V_KADDR)}, {v(V_KADDR)}, {v(V_VADDR)}")
        e(f"v_lshl_add_u32 {v(V_KADDR)}, {v(V_T3)}, 6, {v(V_KADDR)}")
        e(f"v_lshl_add_u32 {v(V_KADDR)}, {v(V_T0)}, 4, {v(V_KADDR)}")
        e(f"v_mul_u32_u24 {v(QA)}, {BLK}, {v(V_T2)}")
        e(f"v_lshl_add_u32 {v(QA)}, {v(V_T3)}, 6, {v(QA)}")
        e(f"v_lshl_add_u32 {v(QA)}, {v(V_T0)}, 4, {v(QA)}")
        e(f"v_add_u32 {v(QA+2)}, {s(S_WOFF)}, {v(QA)}")
        e(f"v_add_u32 {v(QA)}, {s(S_PRIV)}, {v(QA)}")
        e(f"v_lshrrev_b32 {v(V_VADDR)}, 1, {v(V_T0)}")
        e(f"v_mul_u32_u24 {v(V_VADDR)}, {QRT}, {v(V_VADDR)}")
        e(f"v_and_b32 {v(V_T1)}, 1, {v(V_T0)}")
        e(f"v_mul_u32_u24 {v(NEGM+13)}, {BLK}, {v(V_T1)}")
        e(f"v_add_u32 {v(V_VADDR)}, {v(V_VADDR)}, {v(NEGM+13)}")
        e(f"v_lshl_add_u32 {v(V_VADDR)}, {v(V_T2)}, 6, {v(V_VADDR)}")
        e(f"v_lshl_add_u32 {v(V_VADDR)}, {v(V_T3)}, 3, {v(V_VADDR)}")
        e(f"v_add_u32 {v(V_VADDR)}, {2 * BLK}, {v(V_VADDR)}")
        for i in range(6): e(f"v_mov_b32 {v(L0+i)}, 0")
        if opt.get("hd", "2") != "2":
            for i in range(4): e(f"v_mov_b32 {v(PB[1]+i)}, 0")
            for i in range(32): e(f"v_accvgpr_write_b32 {a(AV(1,0)+i)}, 0")
        if opt.get("hd", "2") == "2":
            for i in range(160): e(f"v_mov_b32 {v(i)}, 0")
        else:
            for t in range(6):
                for i in range(16, 32): e(f"v_mov_b32 {v(O(t,0)+i)}, 0")
        self.epi_addr()
        if opt.get("bp", False):
            for i in range(8): e(f"v_mov_b32 {v(NEGM+16+i)}, 0")
        e(f"s_mov_b32 {s(S_T1)}, 0x3e0293ee")
        e(f"v_mov_b32 {v(V_T0)}, {s(S_T1)}")
        e(f"v_mov_b32 {v(V_T1)}, {s(S_T1)}")
        e(f"s_mov_b32 {s(S_T2)}, 0xffff0000")
        hd = opt.get("hd", "2")
        if hd == "2":
            Kf = lambda tile: [self.kread(tile & 1, tile % R, kt, ks) for kt in range(2) for ks in range(4)]
            Vf = lambda tile: [self.vread(tile & 1, tile % R, dt, hh) for dt in range(8) for hh in range(2)]
            def tile_dma(tile): dma_half(tile, 'K'); dma_half(tile, 'V')
            qload(1)
            qconv(0, lambda: qload(2))
            wait_for("V1")
            e("s_barrier")
            for x in Kf(0) + Kf(1): e(x)
            e("s_waitcnt lgkmcnt(8)")
            V0r = Vf(0)
            for kt in range(2):
                for ks in range(4):
                    e(self.qk(0, 0, kt, ks, sb=0))
                    for x in V0r[8 * kt + 2 * ks: 8 * kt + 2 * ks + 2]: e(x)
            e("s_waitcnt lgkmcnt(15)")
            qload(3)
            K2 = Kf(2)
            for n in range(12):
                nq = n + 1
                lds = []; extras = []; sh = {}
                if n % 2 == 0 and n // 2 + 1 <= 5 and n > 0: qread(n // 2 + 1)
                if nq < 12 and nq % 2 == 0:
                    tq = nq >> 1
                    if tq == 1: qread(1)
                    qcvt(tq)
                    e("s_nop 1")
                    if tq == 1: extras = self.capture(lambda: qload(4))
                    if tq == 2: extras = self.capture(lambda: qload(5))
                    if tq == 3: extras = self.capture(lambda: tile_dma(2))
                    if tq == 4: extras = self.capture(lambda: tile_dma(3))
                if n == 0: extras = Vf(1)
                if n == 9:
                    wait_for("K2")
                    e("s_barrier")
                    if not opt.get("fs"): self.stamp(9)
                    lds = [None, None, K2[0], K2[1]]
                if n == 10:
                    lds = K2[2:6]
                    sh = {1: [K2[6]], 3: [K2[7]]}
                    extras = self.capture(lambda: tile_dma(4))
                if n == 11:
                    wait_for("V2")
                    e("s_waitcnt lgkmcnt(0)")
                    e("s_barrier")
                    V2 = Vf(2)
                    for dt in range(7): sh[9 + dt] = V2[2 * dt: 2 * dt + 2]
                qkb = (nq & 1, nq >> 1, nq & 1) if nq < 12 else (0, 0, 0)
                pvb = ((n - 1) & 1, (n - 1) >> 1, (n - 1) & 1) if n >= 1 else None
                self.period_x(qkb, (n >> 1, n & 1), pvb, lds, sh, extras)
            for x in Vf(2)[14:16]: e(x)
            e(f"s_mov_b32 {s(S_TOFF)}, {5 * 8192}")
            self.stamp(10, 1)
            e(f"s_mov_b32 {s(S_CNT)}, {15 if self.tail2 else 16}")
            e("s_branch L_it2")
        else:
            fs = opt.get("fs")
            def fstamp(i):
                if fs and not (opt.get("fine") and i in (3, 4, 5)): self.stamp(i)
            qload(2)
            fstamp(3)
            if hd == "d":
                qconv(0, lambda: (fstamp(4), qload(3), fstamp(5)))
                fstamp(6)
            else:
                qconv(0, lambda: qload(3))
                qload(4)
            wait_for("V0")
            fstamp(7)
            e("s_barrier")
            fstamp(8)
            for kt in range(2):
                for ks in range(4): e(self.kread(0, 0, kt, ks))
            for dt in range(8):
                for hh in range(2): e(self.vread(0, 0, dt, hh))
            if hd != "d":
                qload(5)
                dma_half(1, 'K'); dma_half(1, 'V')
            e("s_waitcnt lgkmcnt(15)")
            for kt in range(2):
                for ks in range(4): e(self.qk(0, 0, kt, ks))
            fstamp(9)
            K1 = [self.kread(1, 1 % R, kt, ks) for kt in range(2) for ks in range(4)]
            V1 = [self.vread(1, 1 % R, dt, hh) for dt in range(8) for hh in range(2)]
            for t in range(6):
                if t + 1 <= 5:
                    def after(t=t):
                        if hd == "d":
                            if t == 0: qload(4)
                            if t == 1: qload(5)
                            if t == 2: dma_half(1, 'K'); dma_half(1, 'V')
                            if t == 3: dma_half(2, 'K'); dma_half(2, 'V')
                        else:
                            if t == 2: dma_half(2, 'K'); dma_half(2, 'V')
                            if t == 3: dma_half(3, 'K'); dma_half(3, 'V')
                    qconv(t + 1, after)
                    e("s_nop 1")
                if t == 0: e("s_waitcnt lgkmcnt(0)")
                if t == 5:
                    wait_for("K1")
                    e("s_barrier")
                    if not opt.get("fs"): self.stamp(9)
                    for x in K1: e(x)
                    e("s_waitcnt lgkmcnt(0)")
                self.period(0, t, [], {}, do_pv=True)
            wait_for("V1")
            e("s_barrier")
            for x in V1: e(x)
            if hd == "d":
                dma_half(3, 'K'); dma_half(3, 'V')
            e(f"s_mov_b32 {s(S_TOFF)}, {(self.D + 1) * 8192}")
            self.stamp(10, 1)
            e(f"s_mov_b32 {s(S_CNT)}, {NT // R}")
            e("s_branch L_it1")
        e(".p2align 6")
        self.lab("L_loop")
        self.inloop = True
        for j in range(R):
            if j == 1: self.lab("L_it1")
            if j == 2: self.lab("L_it2")
            self.iteration(j)
            if self.peel and j == self.exitpos: e("s_cbranch_scc0 L_last")
        if self.peel: e("s_branch L_loop")
        else: e("s_cbranch_scc1 L_loop")
        self.inloop = False
        if self.peel:
            self.lab("L_last")
            self.stamp(11, 2)
            self.last_iteration()
        else:
            self.stamp(11, 2)
            red = self.lreduce()
            e("s_nop 1")
            for dt in range(8):
                e(self.pv(63 & 1, 5, dt))
                for x in red[2*dt:2*dt+2]: e(x)
            for x in red[16:]: e(x)
            self.check()
            self.lab("L_norm")
            for t in range(6): e(f"v_rcp_f32 {v(L0+t)}, {v(L0+t)}")
            self.stamp(12, 3)
            self.epilogue()
        self.stamp(13, 4)
        if opt.get("stamp") and opt.get("dbg") is None:
            e("s_waitcnt vmcnt(0)")
            self.stamp(14, 5)
            e(f"s_load_dwordx2 {s(S_WS,2)}, s[0:1], 40")
            e("s_waitcnt lgkmcnt(0)")
            e(f"s_mov_b32 {s(S_WS+2)}, 0x20000000")
            e(f"s_mov_b32 {s(S_WS+3)}, 0x20000")
            e(f"v_mov_b32 {v(V_T0)}, 0")
            for i in range(16): e(f"v_writelane_b32 {v(V_T0)}, {s(S_RST + 2*i)}, {i}")
            for i in range(8): e(f"v_writelane_b32 {v(V_T0)}, {s(S_CST + 2*i)}, {16+i}")
            e(f"s_lshl_b32 {s(S_T0)}, s2, 2")
            e(f"s_add_u32 {s(S_T0)}, {s(S_T0)}, {s(S_W)}")
            e(f"s_lshl_b32 {s(S_T0)}, {s(S_T0)}, 8")
            e(f"v_lshlrev_b32 {v(V_T1)}, 2, {v(V_LANE)}")
            e(f"buffer_store_dword {v(V_T0)}, {v(V_T1)}, {s(S_WS,4)}, {s(S_T0)} offen")
        if opt.get("dbg") is not None:
            e("s_waitcnt vmcnt(0)")
            self.stamp(14, 5)
            e(f"s_load_dwordx2 {s(S_WS,2)}, s[0:1], 32")
            e("s_waitcnt lgkmcnt(0)")
            e(f"s_cmp_lg_u32 s2, {opt['dbg']}")
            e("s_cbranch_scc1 L_end")
            e(f"s_cmp_lg_u32 {s(S_W)}, 0")
            e("s_cbranch_scc1 L_end")
            e(f"s_mov_b32 {s(S_WS+2)}, 256")
            e(f"s_mov_b32 {s(S_WS+3)}, 0x20000")
            e(f"v_mov_b32 {v(V_T0)}, 0")
            for i in range(1, 15):
                e(f"s_sub_u32 {s(S_T0)}, {s(S_RST + 2*i)}, {s(S_RST)}")
                e(f"v_writelane_b32 {v(V_T0)}, {s(S_T0)}, {i - 1}")
            e(f"s_sub_u32 {s(S_T0)}, {s(S_CST + 4)}, {s(S_CST + 2)}")
            e(f"v_writelane_b32 {v(V_T0)}, {s(S_T0)}, 14")
            e(f"s_sub_u32 {s(S_T0)}, {s(S_CST + 10)}, {s(S_CST)}")
            e(f"v_writelane_b32 {v(V_T0)}, {s(S_T0)}, 15")
            e(f"v_lshlrev_b32 {v(V_T1)}, 2, {v(V_LANE)}")
            e(f"buffer_store_dword {v(V_T0)}, {v(V_T1)}, {s(S_WS,4)}, 0 offen")
        for _ in range(opt.get("sleep1", 0)): e("s_sleep 32")
        self.lab("L_end")
        e("s_endpgm")
        if not opt.get("nocheck"): self.fallback()
        self.o.append(f""".section .rodata,"a"
.p2align 6
.amdhsa_kernel {KN}
  .amdhsa_next_free_vgpr 512
  .amdhsa_next_free_sgpr 102
  .amdhsa_accum_offset 256
  .amdhsa_group_segment_fixed_size 0
  .amdhsa_kernarg_size 48
  .amdhsa_user_sgpr_count 2
  .amdhsa_user_sgpr_kernarg_segment_ptr 1
  .amdhsa_system_sgpr_workgroup_id_x 1
.end_amdhsa_kernel""")
        return "\n".join(self.o) + "\n"

    def check(self):
        if self.opt.get("nocheck"): return
        e = self.e
        e(f"v_max3_f32 {v(NEGM)}, {v(L0)}, {v(L0+1)}, {v(L0+2)}")
        e(f"v_min3_f32 {v(NEGM+1)}, {v(L0)}, {v(L0+1)}, {v(L0+2)}")
        e(f"v_max3_f32 {v(NEGM)}, {v(NEGM)}, {v(L0+3)}, {v(L0+4)}")
        e(f"v_min3_f32 {v(NEGM+1)}, {v(NEGM+1)}, {v(L0+3)}, {v(L0+4)}")
        e(f"v_max_f32 {v(NEGM)}, {v(NEGM)}, {v(L0+5)}")
        e(f"v_min_f32 {v(NEGM+1)}, {v(NEGM+1)}, {v(L0+5)}")
        e(f"s_mov_b32 {s(S_T1)}, 0x53800000")
        e(f"s_mov_b32 {s(S_T3)}, 0x37800000")
        e(f"v_cmp_ge_f32 vcc, {s(S_T1)}, {v(NEGM)}")
        e(f"v_cmp_le_f32 {s(S_CMP,2)}, {s(S_T3)}, {v(NEGM+1)}")
        e(f"s_and_b64 vcc, vcc, {s(S_CMP,2)}")
        e("s_cmp_eq_u64 vcc, -1")
        e("s_cbranch_scc0 L_fallback")

    def epi_addr(self):
        e = self.e
        WA, RA, GA = V_T2, V_T3, V_OST
        e(f"v_and_b32 {v(NEGM+16)}, 15, {v(V_LANE)}")
        e(f"v_lshrrev_b32 {v(NEGM+17)}, 4, {v(V_LANE)}")
        e(f"v_mul_u32_u24 {v(WA)}, 272, {v(NEGM+16)}")
        e(f"v_lshl_add_u32 {v(WA)}, {v(NEGM+17)}, 3, {v(WA)}")
        e(f"v_add_u32 {v(WA)}, {s(S_PRIV)}, {v(WA)}")
        e(f"v_mul_u32_u24 {v(RA)}, 272, {v(NEGM+17)}")
        e(f"v_lshl_add_u32 {v(RA)}, {v(NEGM+16)}, 4, {v(RA)}")
        e(f"v_add_u32 {v(RA)}, {s(S_PRIV)}, {v(RA)}")
        e(f"s_mul_i32 {s(S_T1)}, {s(S_W)}, {96 * 256}")
        e(f"v_lshlrev_b32 {v(GA)}, 4, {v(V_LANE)}")
        e(f"v_add_u32 {v(GA)}, {s(S_T1)}, {v(GA)}")

    def last_iteration(self):
        e = self.e; opt = self.opt
        WA, RA, GA = V_T2, V_T3, V_OST
        RC = NEGM + 8
        def lred(t):
            L, T = L0 + t, NEGM + t
            fold = [f"v_add_f32 {v(L)}, {v(L)}, {v(NEGM+16+2*t)}", f"v_add_f32 {v(L)}, {v(L)}, {v(NEGM+17+2*t)}"] if opt.get("bp", False) and t < 4 else []
            return fold + [f"v_mov_b32 {v(T)}, {v(L)}", "s_nop 1", f"v_permlane32_swap_b32 {v(L)}, {v(T)}", "s_nop 0", f"v_add_f32 {v(L)}, {v(L)}, {v(T)}",
                    f"v_mov_b32 {v(T)}, {v(L)}", "s_nop 1", f"v_permlane16_swap_b32 {v(L)}, {v(T)}", "s_nop 0", f"v_add_f32 {v(L)}, {v(L)}, {v(T)}",
                    f"v_rcp_f32 {v(RC+t)}, {v(L)}", "s_nop 0"]
        def norm(t, pk=False):
            x = []
            if pk:
                x += [f"v_mov_b32 {v(V_T0)}, {v(RC+t)}", f"v_mov_b32 {v(V_T1)}, {v(RC+t)}"]
            for dt in range(8):
                o = O(t, dt)
                if pk:
                    x += [f"v_pk_mul_f32 {v(o,2)}, {v(o,2)}, {v(V_T0,2)}", f"v_pk_mul_f32 {v(o+2,2)}, {v(o+2,2)}, {v(V_T0,2)}"]
                else:
                    x += [f"v_mul_f32 {v(o+r)}, {v(o+r)}, {v(RC+t)}" for r in range(4)]
                x += [f"v_cvt_pk_bf16_f32 {v(o)}, {v(o)}, {v(o+1)}", f"v_cvt_pk_bf16_f32 {v(o+1)}, {v(o+2)}, {v(o+3)}",
                      f"ds_write_b64 {v(WA)}, {v(o,2)} offset:{(t & 1) * STG + 32 * dt}"]
            x += [f"ds_read_b128 {v(O(t, 0) + 4 * k, 4)}, {v(RA)} offset:{(t & 1) * STG + k * 4 * 272}" for k in range(4)]
            return x
        def stores(t):
            if opt.get("nostore"): return []
            return [f"buffer_store_dwordx4 {v(O(t, 0) + 4 * k, 4)}, {v(GA)}, {s(S_OSRD,4)}, {s(S_T0)} offen offset:{1024 * k}{self.stfl}" for k in range(4)]
        def pre(t, n=0): return [f"s_waitcnt lgkmcnt({n})", f"s_mov_b32 {s(S_T0)}, {t * 4096}"]
        def weave(main, sts):
            out = []; n = len(main); k = len(sts)
            marks = {(i * n) // k + 1: i for i in range(k)} if k else {}
            for i, x in enumerate(main):
                if i in marks: out.append(sts[marks[i]])
                out.append(x)
            return out
        pk = opt.get("epipk", False)
        def weave2(main, sts):
            if not main: return list(sts)
            return weave(main, sts)
        if self.tail2:
            self.c("---- last two tiles, q-tile major")
            b = [(0, 62), (1, 62), (0, 63), (1, 63), (2, 62), (2, 63), (3, 62), (3, 63), (4, 62), (4, 63), (5, 62), (5, 63)]
            K63 = [self.kread(1, 63 % R, kt, ks) for kt in range(2) for ks in range(4)]
            V63 = [self.vread(1, 63 % R, dt, hh) for dt in range(8) for hh in range(2)]
            exs = {3: lambda: lred(0), 4: lambda: lred(1) + norm(0, pk),
                   5: lambda: pre(0) + weave2(norm(1, pk), stores(0)), 6: lambda: pre(1) + weave2(lred(2), stores(1)),
                   7: lambda: norm(2, pk), 8: lambda: pre(2) + weave2(lred(3), stores(2)),
                   9: lambda: norm(3, pk), 10: lambda: pre(3) + weave2(lred(4), stores(3)), 11: lambda: norm(4, pk)}
            for n in range(12):
                sh = {}; lds = []
                if n == 0:
                    sh[0] = [f"s_waitcnt vmcnt({4 * (self.D - 2)})", "s_barrier"]
                    lds = K63[0:4]
                    for i, g in enumerate((1, 3, 5, 7)): sh[g] = [K63[4 + i]]
                if n == 1:
                    sh[0] = []
                    e("s_waitcnt lgkmcnt(0)")
                if n in (1, 2):
                    o = 8 * (n - 1)
                    lds = V63[o:o + 4]
                    for i, g in enumerate((1, 3, 5, 7)): sh[g] = [V63[o + 4 + i]]
                if n == 3: sh[0] = ["s_waitcnt lgkmcnt(0)"]
                qkb = (b[n + 1][1] & 1, b[n + 1][0], (n + 1) & 1) if n < 11 else None
                pvb = (b[n - 1][1] & 1, b[n - 1][0], (n - 1) & 1) if n >= 1 else (1, 5, 1)
                self.period_x(qkb, (b[n][0], n & 1), pvb, lds, sh, exs[n]() if n in exs else None)
            ex = pre(4) + weave2(lred(5), stores(4))
            e("s_nop 1")
            n = len(ex)
            for dt in range(8):
                e(self.pv(1, 5, dt, pb=1))
                for x in ex[dt * n // 8:(dt + 1) * n // 8]: e(x)
            self.check()
            self.stamp(12, 3)
            for x in norm(5, pk=True): e(x)
            for x in pre(5) + stores(5): e(x)
            return
        self.c("---- last tile")
        for t in range(6):
            sh = {}
            if t == 1: sh[0] = ["s_waitcnt lgkmcnt(0)"]
            ex = []
            if t >= 1: ex += lred(t - 1)
            if t >= 2: ex += norm(t - 2, pk)
            if t >= 3: ex = pre(t - 3) + weave(ex, stores(t - 3))
            self.period(63, t, [], sh, do_qk=(t < 5), extras=ex)
        ex = pre(3) + weave(lred(5) + norm(4, pk), stores(3))
        e("s_nop 1")
        n = len(ex)
        for dt in range(8):
            e(self.pv(63 & 1, 5, dt))
            for x in ex[dt * n // 8:(dt + 1) * n // 8]: e(x)
        self.check()
        self.stamp(12, 3)
        nx = norm(5, pk=True)
        for x in pre(4) + weave(nx[:-4], stores(4)) + nx[-4:]: e(x)
        for x in pre(5) + stores(5): e(x)

    def epilogue(self):
        e = self.e; opt = self.opt
        WA, RA, GA = V_T2, V_T3, V_OST
        PK = [SB[0], NEGM]
        RD = [160 - 160 + 0, 0]
        e(f"s_mul_i32 {s(S_T1)}, {s(S_W)}, {PRIV}")
        e(f"s_add_u32 {s(S_T1)}, {s(S_T1)}, {R * SLOT}")
        e(f"v_and_b32 {v(V_T0)}, 15, {v(V_LANE)}")
        e(f"v_lshrrev_b32 {v(V_T1)}, 4, {v(V_LANE)}")
        e(f"v_mul_u32_u24 {v(WA)}, 272, {v(V_T0)}")
        e(f"v_lshl_add_u32 {v(WA)}, {v(V_T1)}, 3, {v(WA)}")
        e(f"v_add_u32 {v(WA)}, {s(S_T1)}, {v(WA)}")
        e(f"v_mul_u32_u24 {v(RA)}, 272, {v(V_T1)}")
        e(f"v_lshl_add_u32 {v(RA)}, {v(V_T0)}, 4, {v(RA)}")
        e(f"v_add_u32 {v(RA)}, {s(S_T1)}, {v(RA)}")
        e(f"s_mul_i32 {s(S_T1)}, {s(S_W)}, {96 * 256}")
        e(f"v_lshlrev_b32 {v(GA)}, 4, {v(V_LANE)}")
        e(f"v_add_u32 {v(GA)}, {s(S_T1)}, {v(GA)}")
        def pack(t):
            L = L0 + t
            e(f"v_mov_b32 {v(V_T0)}, {v(L)}")
            e(f"v_mov_b32 {v(V_T1)}, {v(L)}")
            for dt in range(8):
                o = O(t, dt)
                e(f"v_pk_mul_f32 {v(o,2)}, {v(o,2)}, {v(V_T0,2)}")
                e(f"v_pk_mul_f32 {v(o+2,2)}, {v(o+2,2)}, {v(V_T0,2)}")
            for dt in range(8):
                o = O(t, dt)
                e(f"v_cvt_pk_bf16_f32 {v(o)}, {v(o)}, {v(o+1)}")
                e(f"v_cvt_pk_bf16_f32 {v(o+1)}, {v(o+2)}, {v(o+3)}")
                e(f"ds_write_b64 {v(WA)}, {v(o,2)} offset:{(t & 1) * STG + 32 * dt}")
        def unload(t):
            for k in range(4):
                e(f"ds_read_b128 {v(O(t, 0) + 4 * k, 4)}, {v(RA)} offset:{(t & 1) * STG + k * 4 * 272}")
        def store(t):
            e(f"s_mov_b32 {s(S_T0)}, {t * 4096}")
            for k in range(4):
                if not opt.get("nostore"):
                    e(f"buffer_store_dwordx4 {v(O(t, 0) + 4 * k, 4)}, {v(GA)}, {s(S_OSRD,4)}, {s(S_T0)} offen offset:{1024 * k}{self.stfl}")
        pack(0); unload(0)
        for t in range(1, 6):
            pack(t)
            e("s_waitcnt lgkmcnt(8)")
            store(t - 1)
            unload(t)
        e("s_waitcnt lgkmcnt(0)")
        store(5)

    def fallback(self):
        e = self.e
        FA, FB, FK, FV = V_T0, V_T1, V_T2, V_T3
        MX = L0
        self.lab("L_fallback")
        e("s_waitcnt vmcnt(0) lgkmcnt(0)")
        e("s_barrier")
        e(f"s_lshl_b32 {s(S_T0)}, {s(S_W)}, 11")
        e(f"v_subrev_u32 {v(FA)}, {s(S_T0)}, {v(V_OFFA)}")
        e(f"v_subrev_u32 {v(FB)}, {s(S_T0)}, {v(V_OFFB)}")
        e(f"s_mul_i32 {s(S_WOFF)}, {s(S_W)}, {SLOT}")
        e(f"v_add_u32 {v(FK)}, {s(S_WOFF)}, {v(V_KADDR)}")
        e(f"v_add_u32 {v(FV)}, {s(S_WOFF)}, {v(V_VADDR)}")
        def load_tile(with_v):
            for q in range(4):
                e(f"s_add_u32 m0, {s(S_WOFF)}, {q * QRT}")
                e(f"s_add_u32 {s(S_TOFF)}, {s(S_T1)}, {q * 2048}")
                for i in range(4 if with_v else 2): e(self.dma(i, FA, FB))
            e("s_waitcnt vmcnt(0)")
            for kt in range(2):
                for ks in range(4): e(self.kread(0, 0, kt, ks, FK))
            if with_v:
                for dt in range(8):
                    for hh in range(2): e(self.vread(0, 0, dt, hh, FV))
            e("s_waitcnt lgkmcnt(0)")
        for t in range(6): e(f"v_mov_b32 {v(MX+t)}, 0xff800000")
        e(f"s_mov_b32 {s(S_T1)}, 0")
        self.lab("L_fb1")
        load_tile(False)
        for t in range(6):
            for kt in range(2):
                for ks in range(4): e(self.qk(0, t, kt, ks))
            e("s_nop 7")
            e("s_nop 1")
            S = SB[t & 1]
            for i in range(0, 8, 2): e(f"v_max3_f32 {v(MX+t)}, {v(MX+t)}, {v(S+i)}, {v(S+i+1)}")
        e(f"s_add_u32 {s(S_T1)}, {s(S_T1)}, 8192")
        e(f"s_cmp_lt_u32 {s(S_T1)}, {NT * 8192}")
        e("s_cbranch_scc1 L_fb1")
        for x in self.lreduce("v_max_f32"):
            e(x); e("s_nop 1")
        for t in range(6):
            for r in range(4): e(f"v_sub_f32 {v(NEGM + 4*t + r)}, 0, {v(MX+t)}")
        for t in range(6): e(f"v_mov_b32 {v(L0+t)}, 0")
        for i in range(192): e(f"v_mov_b32 {v(i)}, 0")
        e(f"s_mov_b32 {s(S_T1)}, 0")
        self.lab("L_fb2")
        load_tile(True)
        for t in range(6):
            for kt in range(2):
                for ks in range(4): e(self.qk(0, t, kt, ks, v(NEGM + 4*t, 4)))
            e("s_nop 7")
            e("s_nop 1")
            S = SB[t & 1]; P = PB[t & 1]
            for i in range(8): e(f"v_exp_f32 {v(S+i)}, {v(S+i)}")
            e("s_nop 0")
            for i in range(8): e(f"v_add_f32 {v(L0+t)}, {v(L0+t)}, {v(S+i)}")
            for i in range(4): e(f"v_cvt_pk_bf16_f32 {v(P+i)}, {v(S+2*i)}, {v(S+2*i+1)}")
            e("s_nop 1")
            for dt in range(8): e(self.pv(0, t, dt))
        e(f"s_add_u32 {s(S_T1)}, {s(S_T1)}, 8192")
        e(f"s_cmp_lt_u32 {s(S_T1)}, {NT * 8192}")
        e("s_cbranch_scc1 L_fb2")
        for x in self.lreduce():
            e(x); e("s_nop 1")
        e("s_nop 7")
        if self.peel:
            for t in range(6): e(f"v_rcp_f32 {v(L0+t)}, {v(L0+t)}")
            self.epilogue()
            e("s_endpgm")
        else:
            e("s_branch L_norm")

if __name__ == "__main__":
    opt = {}
    out = sys.argv[1]
    for x in sys.argv[2:]:
        k, _, val = x.partition("=")
        opt[k] = eval(val) if val else True
    open(out, "w").write(Gen(opt).build())
```

```python
import sys

KN = "standalone__mha_softmax__near_ridge_kernel"
M16 = "v_mfma_f32_16x16x32_bf16"
NT = 64
BLK = 1056
QRT = 4 * BLK
SLOT = 4 * QRT
R = 4
STG = 16 * 272
QBUF = 4 * BLK
PRIV = 3 * QBUF

def O(t, dt): return 32 * t + 4 * dt
SB = [192, 200]
PB = [208, 212]
L0 = 216
V_KADDR, V_VADDR, V_OFFA, V_OFFB = 222, 223, 224, 225
V_LANE, V_OST, V_T0, V_T1, V_T2, V_T3 = 226, 227, 228, 229, 230, 231
NEGM = 232
def AQ(t, ks): return 16 * t + 4 * ks
def AK(p, kt, ks): return 96 + 32 * p + 16 * kt + 4 * ks
def AV(p, dt): return 160 + 32 * p + 4 * dt

S_QSRD, S_KSRD, S_VSRD, S_OSRD = 4, 8, 12, 16
S_W, S_WOFF, S_TOFF, S_CNT, S_T0, S_T1, S_T2, S_T3 = 20, 21, 22, 23, 24, 25, 26, 27
S_WS = 28
S_PRIV = 88
S_CMP = 90
S_RST = 40
S_CST = 72

def v(a, n=1): return f"v{a}" if n == 1 else f"v[{a}:{a+n-1}]"
def a(x, n=1): return f"a{x}" if n == 1 else f"a[{x}:{x+n-1}]"
def s(x, n=1): return f"s{x}" if n == 1 else f"s[{x}:{x+n-1}]"

class Gen:
    def __init__(self, opt):
        self.o = []
        self.opt = opt
        self.LDS = R * SLOT + 4 * PRIV
        self.ldfl = opt.get("ldfl", " nt")
        self.qfl = opt.get("qfl", " nt")
        self.stfl = opt.get("stfl", " sc0 sc1 nt")
        self.inloop = False
        self.D = 3
        self.peel = opt.get('peel', True)
        self.tail2 = opt.get('tail2', True) and self.peel
        self.exitpos = (1 if self.tail2 else 2) if self.peel else 3
    def e(self, line): self.o.append("    " + line)
    def lab(self, name): self.o.append(name + ":")
    def c(self, txt): self.o.append("    ; " + txt)
    def nit(self):
        first = 2 if self.opt.get("hd", "2") == "2" else 1
        last = 63 if not self.peel else (61 if self.tail2 else 62)
        return last - first + 1
    def capture(self, fn):
        saved = self.o; self.o = []
        fn()
        lines = [x.strip() for x in self.o]; self.o = saved
        return lines
    def stamp(self, idx, cyc=None):
        if self.opt.get("stamp"):
            self.e(f"s_memrealtime {s(S_RST + 2 * idx, 2)}")
            if cyc is not None: self.e(f"s_memtime {s(S_CST + 2 * cyc, 2)}")

    def dma(self, i, va=V_OFFA, vb=V_OFFB):
        srd = S_KSRD if i < 2 else S_VSRD
        off = f" offset:{i * BLK}" if i else ""
        return f"buffer_load_dwordx4 {v(va if i % 2 == 0 else vb)}, {s(srd,4)}, {s(S_TOFF)} offen{off}{self.ldfl} lds"
    def m0set(self, slot): return f"s_add_u32 m0, {s(S_WOFF)}, {slot * SLOT}"
    def kread(self, p, slot, kt, ks, addr=V_KADDR):
        return f"ds_read_b128 {a(AK(p, kt, ks), 4)}, {v(addr)} offset:{slot * SLOT + kt * 2 * QRT + 256 * ks}"
    def vread(self, p, slot, dt, hh, addr=V_VADDR):
        return f"ds_read_b64_tr_b16 {a(AV(p, dt) + 2 * hh, 2)}, {v(addr)} offset:{slot * SLOT + hh * 2 * QRT + 256 * (dt >> 1) + 32 * (dt & 1)}"
    def qk(self, p, t, kt, ks, cinit="0", sb=None):
        d = v(SB[t & 1 if sb is None else sb] + 4 * kt, 4)
        first = ks == 0
        if self.opt.get("rev", True) and kt == 1: ks = 3 - ks
        return f"{M16} {d}, {a(AK(p, kt, ks), 4)}, {a(AQ(t, ks), 4)}, {cinit if first else d}"
    def pv(self, p, t, dt, pb=None):
        d = v(O(t, dt), 4)
        return f"{M16} {d}, {a(AV(p, dt), 4)}, {v(PB[t & 1 if pb is None else pb], 4)}, {d}"

    def period(self, j, t, lds, shadow, do_qk=True, do_pv=True, extras=None, bp=None):
        jq, tq = (j, t + 1) if t < 5 else (j + 1, 0)
        jp, tp = (j, t - 1) if t > 0 else (j - 1, 5)
        self.period_x((jq & 1, tq, tq & 1) if do_qk else None, (t, t & 1), (jp & 1, tp, tp & 1) if do_pv else None, lds, shadow, extras, bp)

    def period_x(self, qkb, sm, pvb, lds, shadow, extras=None, bp=None):
        Q = [self.qk(qkb[0], qkb[1], kt, ks, sb=qkb[2]) if qkb else None for kt in range(2) for ks in range(4)]
        V = [self.pv(pvb[0], pvb[1], dt, pb=pvb[2]) if pvb else None for dt in range(8)]
        if self.opt.get("order", "88") == "4444": mf = Q[0:4] + V[0:4] + Q[4:8] + V[4:8]
        else: mf = Q + V
        t, sb = sm
        S = SB[sb]; P = PB[sb]; L = L0 + t
        e64 = self.opt.get("e64", "")
        ex = lambda i: f"v_exp_f32{'_e64' if 'e' in e64 else ''} {v(S+i)}, {v(S+i)}"
        ad = lambda i: f"v_add_f32{'_e64' if 'a' in e64 else ''} {v(L)}, {v(L)}, {v(S+i)}"
        cv = lambda i: f"v_cvt_pk_bf16_f32 {v(P+i)}, {v(S+2*i)}, {v(S+2*i+1)}"
        lds = list(lds) + [None] * (4 - len(lds))
        fill = {0: [ex(0)], 1: [ex(1)], 2: [lds[0], ad(0)], 3: [ex(2)], 4: [ad(1), cv(0)], 5: [ex(3)],
                6: [lds[1], ad(2)], 7: [ex(4)], 8: [ad(3), cv(1)], 9: [ex(5)], 10: [lds[2], ad(4)],
                11: [ex(6)], 12: [ad(5), cv(2)], 13: [ex(7)], 14: [lds[3], ad(6)], 15: [ad(7), cv(3)]}
        if bp:
            LP = NEGM + 16 + 2 * t
            fill[6] = [lds[1], cv(1)]
            fill[8] = [bp, f"v_pk_add_f32 {v(LP,2)}, {v(LP,2)}, {v(S+2,2)}"]
        abl = self.opt.get("abl", "") if self.inloop else ""
        for g in range(16):
            if mf[g]: self.e(mf[g])
            for x in shadow.get(g, []):
                if 'D' in abl and x.startswith("buffer_load"): continue
                if 'B' in abl and x.startswith("s_barrier"): continue
                self.e(x)
            for x in fill[g]:
                if x is None: continue
                if 'e' in abl and x.startswith("v_exp"): continue
                if 'a' in abl and x.startswith("v_add"): continue
                if 'c' in abl and x.startswith("v_cvt"): continue
                if 'l' in abl and x.startswith("ds_read"): continue
                self.e(x)
            if extras:
                n = len(extras)
                for x in extras[g * n // 16:(g + 1) * n // 16]: self.e(x)

    def iteration(self, j):
        self.c(f"---- iteration j%R={j % R}")
        p1 = (j + 1) & 1
        s1 = (j + 1) % R
        K = [self.kread(p1, s1, kt, ks) for kt in range(2) for ks in range(4)]
        V = [self.vread(p1, s1, dt, hh) for dt in range(8) for hh in range(2)]
        sched = [K[0:4], [K[4]] + V[0:3], [K[5]] + V[3:6], [K[6]] + V[6:9], [K[7]] + V[9:12], V[12:16]]
        sl = (j + self.D) % R
        bpm = self.opt.get("bp", False)
        pos = self.opt.get("dmapos", {0: [(1, 'm')], 3: [(11, 'inc')]} if bpm else {0: [(1, 'm'), (3, 0)], 1: [(3, 1)], 2: [(3, 2)], 3: [(3, 3), (5, 'inc')]})
        for t in range(6):
            sh = {}
            if t == 0:
                sh[0] = [f"s_waitcnt vmcnt({4 * (self.D - 2)})", "s_barrier"]
                if self.opt.get("xb2") and j % 2 == 0: sh[0] = []
            if t == 1: sh[0] = ["s_waitcnt lgkmcnt(4)"]
            if t == 4: sh[15] = ["s_waitcnt lgkmcnt(3)"]
            for (g, what) in pos.get(t, []):
                if what == 'm': ins = self.m0set(sl)
                elif what == 'inc': ins = f"s_add_u32 {s(S_TOFF)}, {s(S_TOFF)}, 8192"
                else: ins = self.dma(what)
                sh.setdefault(g, []).append(ins)
            if t == 5 and j % R == self.exitpos:
                sh.setdefault(3, []).append(f"s_sub_u32 {s(S_CNT)}, {s(S_CNT)}, 1")
                sh.setdefault(5, []).append(f"s_cmp_lg_u32 {s(S_CNT)}, 0")
            self.period(j, t, sched[t], sh, bp=(self.dma(t) if bpm and t < 4 else None))

    def lreduce(self, op="v_add_f32", regs=None):
        regs = regs or [L0 + t for t in range(6)]
        red = []
        for t in range(6): red.append(f"v_mov_b32 {v(NEGM+t)}, {v(regs[t])}")
        for t in range(6): red.append(f"v_permlane32_swap_b32 {v(regs[t])}, {v(NEGM+t)}")
        for t in range(6): red.append(f"{op} {v(regs[t])}, {v(regs[t])}, {v(NEGM+t)}")
        for t in range(6): red.append(f"v_mov_b32 {v(NEGM+t)}, {v(regs[t])}")
        for t in range(6): red.append(f"v_permlane16_swap_b32 {v(regs[t])}, {v(NEGM+t)}")
        for t in range(6): red.append(f"{op} {v(regs[t])}, {v(regs[t])}, {v(NEGM+t)}")
        return red

    def build(self):
        opt = self.opt
        e = self.e
        self.o.append(f"""; MHA forward, B=8 H=32 Sq=384 Sk=2048 D=128, bf16.  One workgroup (4 waves x 96 query rows) per head.
; @launch grid=(256,1,1) block=(256,1,1) lds={self.LDS}
.amdgcn_target "amdgcn-amd-amdhsa--gfx950"
.text
.globl {KN}
.p2align 8
.type {KN},@function
{KN}:""")
        e("s_load_dwordx4 s[32:35], s[0:1], 0")
        e("s_load_dwordx4 s[36:39], s[0:1], 16")
        e("s_cmpk_ge_u32 s2, 0x100")
        e("s_cbranch_scc1 L_end")
        self.stamp(0)
        for _ in range(opt.get("sleep0", 0)): e("s_sleep 32")
        QV = NEGM + 8
        X = QV + 3
        e(f"v_lshrrev_b32 {v(V_T1)}, 6, v0")
        e(f"v_bfe_u32 {v(V_T2)}, v0, 2, 2")
        e(f"v_bfe_u32 {v(V_T0)}, v0, 4, 2")
        e(f"v_readfirstlane_b32 {s(S_W)}, {v(V_T1)}")
        e(f"v_and_b32 {v(V_T3)}, 3, v0")
        e(f"v_lshlrev_b32 {v(X)}, 8, {v(V_T2)}")
        e(f"v_lshl_add_u32 {v(X)}, {v(V_T0)}, 6, {v(X)}")
        e(f"v_lshl_add_u32 {v(X)}, {v(V_T3)}, 4, {v(X)}")
        if opt.get("dmalin"):
            e(f"v_and_b32 {v(X)}, 63, v0"); e(f"v_lshlrev_b32 {v(X)}, 4, {v(X)}")
        e(f"s_lshl_b32 {s(S_T0)}, {s(S_W)}, 11")
        e(f"s_mul_i32 {s(S_WOFF)}, {s(S_W)}, {QRT}")
        e(f"v_add_u32 {v(V_OFFB)}, {s(S_T0)}, {v(X)}")
        e(f"v_add_u32 {v(V_OFFA)}, 32, {v(V_OFFB)}")
        e(f"s_mul_i32 {s(S_T0)}, {s(S_W)}, {96 * 256}")
        e(f"v_add_u32 {v(QV+3)}, {s(S_T0)}, {v(X)}")
        e(f"v_add_u32 {v(QV+2)}, 32, {v(QV+3)}")
        e(f"v_add_u32 {v(QV+1)}, 32, {v(QV+2)}")
        e(f"v_add_u32 {v(QV)}, 32, {v(QV+1)}")
        e(f"s_mul_i32 {s(S_PRIV)}, {s(S_W)}, {PRIV}")
        e(f"s_add_u32 {s(S_PRIV)}, {s(S_PRIV)}, {R * SLOT}")
        if opt.get("remap", False):
            e(f"s_and_b32 {s(S_T0)}, s2, 7")
            e(f"s_lshl_b32 {s(S_T0)}, {s(S_T0)}, 5")
            e(f"s_lshr_b32 {s(S_T1)}, s2, 3")
            e(f"s_add_u32 s2, {s(S_T0)}, {s(S_T1)}")
        e(f"s_mul_i32 {s(S_T0)}, s2, 98304")
        e(f"s_lshl_b32 {s(S_T1)}, s2, 19")
        e(f"s_mov_b32 {s(S_KSRD+3)}, 0x20000")
        e(f"s_mov_b32 {s(S_KSRD+2)}, {524288 + 32}")
        e(f"s_mov_b32 {s(S_QSRD+3)}, {s(S_KSRD+3)}")
        e(f"s_mov_b32 {s(S_QSRD+2)}, {s(S_KSRD+2)}")
        e(f"s_mov_b32 {s(S_VSRD+3)}, {s(S_KSRD+3)}")
        e(f"s_mov_b32 {s(S_VSRD+2)}, {s(S_KSRD+2)}")
        e(f"s_mov_b32 {s(S_TOFF)}, 0")
        e(f"s_mov_b32 m0, {s(S_WOFF)}")
        e("s_waitcnt lgkmcnt(0)")
        if opt.get("fine"): self.stamp(1)
        e(f"s_add_u32 {s(S_KSRD)}, s34, {s(S_T1)}")
        e(f"s_addc_u32 {s(S_KSRD+1)}, s35, 0")
        e(f"s_sub_u32 {s(S_KSRD)}, {s(S_KSRD)}, 32")
        e(f"s_subb_u32 {s(S_KSRD+1)}, {s(S_KSRD+1)}, 0")
        vm = []
        e(self.dma(0)); e(self.dma(1)); vm += ["K0", "K0"]
        if opt.get("fine"): self.stamp(3)
        e(f"s_add_u32 {s(S_QSRD)}, s32, {s(S_T0)}")
        e(f"s_addc_u32 {s(S_QSRD+1)}, s33, 0")
        e(f"s_sub_u32 {s(S_QSRD)}, {s(S_QSRD)}, 96")
        e(f"s_subb_u32 {s(S_QSRD+1)}, {s(S_QSRD+1)}, 0")
        QPLACE = {0: ('p', 0), 1: ('p', QBUF), 2: ('p', 2 * QBUF), 3: ('r', 2 * SLOT), 4: ('r', 3 * SLOT), 5: ('p', 0)}
        def qload(t, pad=None):
            kind, off_ = QPLACE[t]
            base = s(S_PRIV if kind == 'p' else S_WOFF)
            e(f"s_add_u32 m0, {base}, {off_}" if off_ else f"s_mov_b32 m0, {base}")
            if t == 0: e(pad or "s_nop 0")
            else: e(f"s_movk_i32 {s(S_T3)}, {t * 4096}")
            for b in range(4):
                off = f" offset:{b * BLK}" if b else ""
                e(f"buffer_load_dwordx4 {v(QV+b)}, {s(S_QSRD,4)}, {s(S_TOFF if t == 0 else S_T3)} offen{off}{self.qfl} lds")
                vm.append(f"Q{t}")
        qload(0, pad=f"s_add_u32 {s(S_VSRD)}, s36, {s(S_T1)}")
        if opt.get("fine"): self.stamp(4)
        e(f"s_addc_u32 {s(S_VSRD+1)}, s37, 0")
        e(f"s_sub_u32 {s(S_VSRD)}, {s(S_VSRD)}, 2144")
        e(f"s_mov_b32 m0, {s(S_WOFF)}")
        e(f"s_subb_u32 {s(S_VSRD+1)}, {s(S_VSRD+1)}, 0")
        e(self.dma(2)); e(self.dma(3)); vm += ["V0", "V0"]
        if opt.get("fine"): self.stamp(5)
        if opt.get("hd", "2") == "2":
            e(f"s_add_u32 m0, {s(S_WOFF)}, {SLOT}")
            e(f"s_movk_i32 {s(S_TOFF)}, 0x2000")
            for i in range(4): e(self.dma(i))
            vm += ["K1", "K1", "V1", "V1"]
        else:
            qload(1)
        self.stamp(2, 0)
        if opt.get("stamp") and not opt.get("fine"): self.stamp(1)
        e(f"s_mov_b32 {s(S_QSRD+2)}, {98304 + 96}")
        e(f"s_mov_b32 {s(S_VSRD+2)}, {524288 + 2144}")
        e(f"s_mov_b32 {s(S_OSRD+2)}, 98304")
        e(f"s_mov_b32 {s(S_OSRD+3)}, {s(S_KSRD+3)}")
        e(f"s_add_u32 {s(S_OSRD)}, s38, {s(S_T0)}")
        e(f"s_addc_u32 {s(S_OSRD+1)}, s39, 0")
        e(f"v_and_b32 {v(V_LANE)}, 63, v0")
        def dma_half(tile, kv):
            e(f"s_mov_b32 {s(S_TOFF)}, {tile * 8192}")
            e(self.m0set(tile % R))
            e("s_nop 0")
            for i in ((0, 1) if kv == 'K' else (2, 3)): e(self.dma(i))
            vm.extend([f"{kv}{tile}"] * 2)
        def wait_for(lbl):
            last = max(i for i, x in enumerate(vm) if x == lbl)
            e(f"s_waitcnt vmcnt({len(vm) - 1 - last})")
        TMPC = NEGM
        QA = NEGM + 12
        two = opt.get("hd", "2") == "2"
        def qread(t):
            land = (O(5, 0) + (16 if t == 5 else 0)) if two else O(t, 0)
            wait_for(f"Q{t}")
            if not opt.get("fs"): self.stamp(3 + t)
            for ks in range(4):
                kind, off_ = QPLACE[t]
                e(f"ds_read_b128 {v(land + 4 * ks, 4)}, {v(QA if kind == 'p' else QA + 2)} offset:{off_ + 256 * ks}")
        def qcvt(t, after_read=None):
            land = (O(5, 0) + (16 if t == 5 else 0)) if two else O(t, 0)
            if two and t == 5:
                for i in range(16): e(f"v_mov_b32 {v(O(5, 0) + i)}, 0")
            e("s_waitcnt lgkmcnt(0)")
            if after_read: after_read()
            for i in range(16):
                x = land + i
                lo = TMPC + 2 * (i % 4); hi = lo + 1
                e(f"v_lshlrev_b32 {v(lo)}, 16, {v(x)}")
                e(f"v_and_b32 {v(hi)}, {s(S_T2)}, {v(x)}")
                e(f"v_pk_mul_f32 {v(lo,2)}, {v(lo,2)}, {v(V_T0,2)}")
                e(f"v_cvt_pk_bf16_f32 {v(lo)}, {v(lo)}, {v(hi)}")
                e(f"v_accvgpr_write_b32 {a(AQ(t,0)+i)}, {v(lo)}")
                if not two or t == 5: e(f"v_mov_b32 {v(x)}, 0")
        def qconv(t, after_read=None):
            qread(t); qcvt(t, after_read)
        e(f"v_lshrrev_b32 {v(V_KADDR)}, 1, {v(V_T2)}")
        e(f"v_mul_u32_u24 {v(V_KADDR)}, {QRT}, {v(V_KADDR)}")
        e(f"v_and_b32 {v(V_VADDR)}, 1, {v(V_T2)}")
        e(f"v_mul_u32_u24 {v(V_VADDR)}, {BLK}, {v(V_VADDR)}")
        e(f"v_add_u32 {v(V_KADDR)}, {v(V_KADDR)}, {v(V_VADDR)}")
        e(f"v_lshl_add_u32 {v(V_KADDR)}, {v(V_T3)}, 6, {v(V_KADDR)}")
        e(f"v_lshl_add_u32 {v(V_KADDR)}, {v(V_T0)}, 4, {v(V_KADDR)}")
        e(f"v_mul_u32_u24 {v(QA)}, {BLK}, {v(V_T2)}")
        e(f"v_lshl_add_u32 {v(QA)}, {v(V_T3)}, 6, {v(QA)}")
        e(f"v_lshl_add_u32 {v(QA)}, {v(V_T0)}, 4, {v(QA)}")
        e(f"v_add_u32 {v(QA+2)}, {s(S_WOFF)}, {v(QA)}")
        e(f"v_add_u32 {v(QA)}, {s(S_PRIV)}, {v(QA)}")
        e(f"v_lshrrev_b32 {v(V_VADDR)}, 1, {v(V_T0)}")
        e(f"v_mul_u32_u24 {v(V_VADDR)}, {QRT}, {v(V_VADDR)}")
        e(f"v_and_b32 {v(V_T1)}, 1, {v(V_T0)}")
        e(f"v_mul_u32_u24 {v(NEGM+13)}, {BLK}, {v(V_T1)}")
        e(f"v_add_u32 {v(V_VADDR)}, {v(V_VADDR)}, {v(NEGM+13)}")
        e(f"v_lshl_add_u32 {v(V_VADDR)}, {v(V_T2)}, 6, {v(V_VADDR)}")
        e(f"v_lshl_add_u32 {v(V_VADDR)}, {v(V_T3)}, 3, {v(V_VADDR)}")
        e(f"v_add_u32 {v(V_VADDR)}, {2 * BLK}, {v(V_VADDR)}")
        for i in range(6): e(f"v_mov_b32 {v(L0+i)}, 0")
        if opt.get("hd", "2") != "2":
            for i in range(4): e(f"v_mov_b32 {v(PB[1]+i)}, 0")
            for i in range(32): e(f"v_accvgpr_write_b32 {a(AV(1,0)+i)}, 0")
        if opt.get("hd", "2") == "2":
            for i in range(160): e(f"v_mov_b32 {v(i)}, 0")
        else:
            for t in range(6):
                for i in range(16, 32): e(f"v_mov_b32 {v(O(t,0)+i)}, 0")
        self.epi_addr()
        if opt.get("bp", False):
            for i in range(8): e(f"v_mov_b32 {v(NEGM+16+i)}, 0")
        e(f"s_mov_b32 {s(S_T1)}, 0x3e0293ee")
        e(f"v_mov_b32 {v(V_T0)}, {s(S_T1)}")
        e(f"v_mov_b32 {v(V_T1)}, {s(S_T1)}")
        e(f"s_mov_b32 {s(S_T2)}, 0xffff0000")
        hd = opt.get("hd", "2")
        if hd == "2":
            Kf = lambda tile: [self.kread(tile & 1, tile % R, kt, ks) for kt in range(2) for ks in range(4)]
            Vf = lambda tile: [self.vread(tile & 1, tile % R, dt, hh) for dt in range(8) for hh in range(2)]
            def tile_dma(tile): dma_half(tile, 'K'); dma_half(tile, 'V')
            qload(1)
            qconv(0, lambda: qload(2))
            wait_for("V1")
            e("s_barrier")
            for x in Kf(0) + Kf(1): e(x)
            e("s_waitcnt lgkmcnt(8)")
            V0r = Vf(0)
            for kt in range(2):
                for ks in range(4):
                    e(self.qk(0, 0, kt, ks, sb=0))
                    for x in V0r[8 * kt + 2 * ks: 8 * kt + 2 * ks + 2]: e(x)
            e("s_waitcnt lgkmcnt(15)")
            qload(3)
            K2 = Kf(2)
            for n in range(12):
                nq = n + 1
                lds = []; extras = []; sh = {}
                if n % 2 == 0 and n // 2 + 1 <= 5 and n > 0: qread(n // 2 + 1)
                if nq < 12 and nq % 2 == 0:
                    tq = nq >> 1
                    if tq == 1: qread(1)
                    qcvt(tq)
                    e("s_nop 1")
                    if tq == 1: extras = self.capture(lambda: qload(4))
                    if tq == 2: extras = self.capture(lambda: qload(5))
                    if tq == 3: extras = self.capture(lambda: tile_dma(2))
                    if tq == 4: extras = self.capture(lambda: tile_dma(3))
                if n == 0: extras = Vf(1)
                if n == 9:
                    wait_for("K2")
                    e("s_barrier")
                    if not opt.get("fs"): self.stamp(9)
                    lds = [None, None, K2[0], K2[1]]
                if n == 10:
                    lds = K2[2:6]
                    sh = {1: [K2[6]], 3: [K2[7]]}
                    extras = self.capture(lambda: tile_dma(4))
                if n == 11:
                    wait_for("V2")
                    e("s_waitcnt lgkmcnt(0)")
                    e("s_barrier")
                    V2 = Vf(2)
                    for dt in range(7): sh[9 + dt] = V2[2 * dt: 2 * dt + 2]
                qkb = (nq & 1, nq >> 1, nq & 1) if nq < 12 else (0, 0, 0)
                pvb = ((n - 1) & 1, (n - 1) >> 1, (n - 1) & 1) if n >= 1 else None
                self.period_x(qkb, (n >> 1, n & 1), pvb, lds, sh, extras)
            for x in Vf(2)[14:16]: e(x)
            e(f"s_mov_b32 {s(S_TOFF)}, {5 * 8192}")
            self.stamp(10, 1)
            e(f"s_mov_b32 {s(S_CNT)}, {30 if opt.get('xu2') else (15 if self.tail2 else 16)}")
            e("s_branch L_it2")
        else:
            fs = opt.get("fs")
            def fstamp(i):
                if fs and not (opt.get("fine") and i in (3, 4, 5)): self.stamp(i)
            qload(2)
            fstamp(3)
            if hd == "d":
                qconv(0, lambda: (fstamp(4), qload(3), fstamp(5)))
                fstamp(6)
            else:
                qconv(0, lambda: qload(3))
                qload(4)
            wait_for("V0")
            fstamp(7)
            e("s_barrier")
            fstamp(8)
            for kt in range(2):
                for ks in range(4): e(self.kread(0, 0, kt, ks))
            for dt in range(8):
                for hh in range(2): e(self.vread(0, 0, dt, hh))
            if hd != "d":
                qload(5)
                dma_half(1, 'K'); dma_half(1, 'V')
            e("s_waitcnt lgkmcnt(15)")
            for kt in range(2):
                for ks in range(4): e(self.qk(0, 0, kt, ks))
            fstamp(9)
            K1 = [self.kread(1, 1 % R, kt, ks) for kt in range(2) for ks in range(4)]
            V1 = [self.vread(1, 1 % R, dt, hh) for dt in range(8) for hh in range(2)]
            for t in range(6):
                if t + 1 <= 5:
                    def after(t=t):
                        if hd == "d":
                            if t == 0: qload(4)
                            if t == 1: qload(5)
                            if t == 2: dma_half(1, 'K'); dma_half(1, 'V')
                            if t == 3: dma_half(2, 'K'); dma_half(2, 'V')
                        else:
                            if t == 2: dma_half(2, 'K'); dma_half(2, 'V')
                            if t == 3: dma_half(3, 'K'); dma_half(3, 'V')
                    qconv(t + 1, after)
                    e("s_nop 1")
                if t == 0: e("s_waitcnt lgkmcnt(0)")
                if t == 5:
                    wait_for("K1")
                    e("s_barrier")
                    if not opt.get("fs"): self.stamp(9)
                    for x in K1: e(x)
                    e("s_waitcnt lgkmcnt(0)")
                self.period(0, t, [], {}, do_pv=True)
            wait_for("V1")
            e("s_barrier")
            for x in V1: e(x)
            if hd == "d":
                dma_half(3, 'K'); dma_half(3, 'V')
            e(f"s_mov_b32 {s(S_TOFF)}, {(self.D + 1) * 8192}")
            self.stamp(10, 1)
            e(f"s_mov_b32 {s(S_CNT)}, {NT // R}")
            e("s_branch L_it1")
        e(".p2align 6")
        self.lab("L_loop")
        self.inloop = True
        if opt.get("xu2"):
            self.lab("L_it1")
            self.iteration(1)
            e("s_cbranch_scc0 L_last")
            self.lab("L_it2")
            self.iteration(2)
            e(f"v_add_u32 {v(V_KADDR)}, 0, {v(V_KADDR)}")
            e(f"v_add_u32 {v(V_VADDR)}, 0, {v(V_VADDR)}")
        for j in (range(R) if not opt.get("xu2") else []):
            if j == 1: self.lab("L_it1")
            if j == 2: self.lab("L_it2")
            self.iteration(j)
            if self.peel and j == self.exitpos: e("s_cbranch_scc0 L_last")
        if self.peel: e("s_branch L_loop")
        else: e("s_cbranch_scc1 L_loop")
        self.inloop = False
        if self.peel:
            self.lab("L_last")
            self.stamp(11, 2)
            self.last_iteration()
        else:
            self.stamp(11, 2)
            red = self.lreduce()
            e("s_nop 1")
            for dt in range(8):
                e(self.pv(63 & 1, 5, dt))
                for x in red[2*dt:2*dt+2]: e(x)
            for x in red[16:]: e(x)
            self.check()
            self.lab("L_norm")
            for t in range(6): e(f"v_rcp_f32 {v(L0+t)}, {v(L0+t)}")
            self.stamp(12, 3)
            self.epilogue()
        self.stamp(13, 4)
        if opt.get("stamp") and opt.get("dbg") is None:
            e("s_waitcnt vmcnt(0)")
            self.stamp(14, 5)
            e(f"s_load_dwordx2 {s(S_WS,2)}, s[0:1], 40")
            e("s_waitcnt lgkmcnt(0)")
            e(f"s_mov_b32 {s(S_WS+2)}, 0x20000000")
            e(f"s_mov_b32 {s(S_WS+3)}, 0x20000")
            e(f"v_mov_b32 {v(V_T0)}, 0")
            for i in range(16): e(f"v_writelane_b32 {v(V_T0)}, {s(S_RST + 2*i)}, {i}")
            for i in range(8): e(f"v_writelane_b32 {v(V_T0)}, {s(S_CST + 2*i)}, {16+i}")
            e(f"s_lshl_b32 {s(S_T0)}, s2, 2")
            e(f"s_add_u32 {s(S_T0)}, {s(S_T0)}, {s(S_W)}")
            e(f"s_lshl_b32 {s(S_T0)}, {s(S_T0)}, 8")
            e(f"v_lshlrev_b32 {v(V_T1)}, 2, {v(V_LANE)}")
            e(f"buffer_store_dword {v(V_T0)}, {v(V_T1)}, {s(S_WS,4)}, {s(S_T0)} offen")
        if opt.get("dbg") is not None:
            e("s_waitcnt vmcnt(0)")
            self.stamp(14, 5)
            e(f"s_load_dwordx2 {s(S_WS,2)}, s[0:1], 32")
            e("s_waitcnt lgkmcnt(0)")
            e(f"s_cmp_lg_u32 s2, {opt['dbg']}")
            e("s_cbranch_scc1 L_end")
            e(f"s_cmp_lg_u32 {s(S_W)}, 0")
            e("s_cbranch_scc1 L_end")
            e(f"s_mov_b32 {s(S_WS+2)}, 256")
            e(f"s_mov_b32 {s(S_WS+3)}, 0x20000")
            e(f"v_mov_b32 {v(V_T0)}, 0")
            for i in range(1, 15):
                e(f"s_sub_u32 {s(S_T0)}, {s(S_RST + 2*i)}, {s(S_RST)}")
                e(f"v_writelane_b32 {v(V_T0)}, {s(S_T0)}, {i - 1}")
            e(f"s_sub_u32 {s(S_T0)}, {s(S_CST + 4)}, {s(S_CST + 2)}")
            e(f"v_writelane_b32 {v(V_T0)}, {s(S_T0)}, 14")
            e(f"s_sub_u32 {s(S_T0)}, {s(S_CST + 10)}, {s(S_CST)}")
            e(f"v_writelane_b32 {v(V_T0)}, {s(S_T0)}, 15")
            e(f"v_lshlrev_b32 {v(V_T1)}, 2, {v(V_LANE)}")
            e(f"buffer_store_dword {v(V_T0)}, {v(V_T1)}, {s(S_WS,4)}, 0 offen")
        for _ in range(opt.get("sleep1", 0)): e("s_sleep 32")
        self.lab("L_end")
        e("s_endpgm")
        if not opt.get("nocheck"): self.fallback()
        self.o.append(f""".section .rodata,"a"
.p2align 6
.amdhsa_kernel {KN}
  .amdhsa_next_free_vgpr 512
  .amdhsa_next_free_sgpr 102
  .amdhsa_accum_offset 256
  .amdhsa_group_segment_fixed_size 0
  .amdhsa_kernarg_size 48
  .amdhsa_user_sgpr_count 2
  .amdhsa_user_sgpr_kernarg_segment_ptr 1
  .amdhsa_system_sgpr_workgroup_id_x 1
.end_amdhsa_kernel""")
        return "\n".join(self.o) + "\n"

    def check(self):
        if self.opt.get("nocheck"): return
        e = self.e
        e(f"v_max3_f32 {v(NEGM)}, {v(L0)}, {v(L0+1)}, {v(L0+2)}")
        e(f"v_min3_f32 {v(NEGM+1)}, {v(L0)}, {v(L0+1)}, {v(L0+2)}")
        e(f"v_max3_f32 {v(NEGM)}, {v(NEGM)}, {v(L0+3)}, {v(L0+4)}")
        e(f"v_min3_f32 {v(NEGM+1)}, {v(NEGM+1)}, {v(L0+3)}, {v(L0+4)}")
        e(f"v_max_f32 {v(NEGM)}, {v(NEGM)}, {v(L0+5)}")
        e(f"v_min_f32 {v(NEGM+1)}, {v(NEGM+1)}, {v(L0+5)}")
        e(f"s_mov_b32 {s(S_T1)}, 0x53800000")
        e(f"s_mov_b32 {s(S_T3)}, 0x37800000")
        e(f"v_cmp_ge_f32 vcc, {s(S_T1)}, {v(NEGM)}")
        e(f"v_cmp_le_f32 {s(S_CMP,2)}, {s(S_T3)}, {v(NEGM+1)}")
        e(f"s_and_b64 vcc, vcc, {s(S_CMP,2)}")
        e("s_cmp_eq_u64 vcc, -1")
        e("s_cbranch_scc0 L_fallback")

    def epi_addr(self):
        e = self.e
        WA, RA, GA = V_T2, V_T3, V_OST
        e(f"v_and_b32 {v(NEGM+16)}, 15, {v(V_LANE)}")
        e(f"v_lshrrev_b32 {v(NEGM+17)}, 4, {v(V_LANE)}")
        e(f"v_mul_u32_u24 {v(WA)}, 272, {v(NEGM+16)}")
        e(f"v_lshl_add_u32 {v(WA)}, {v(NEGM+17)}, 3, {v(WA)}")
        e(f"v_add_u32 {v(WA)}, {s(S_PRIV)}, {v(WA)}")
        e(f"v_mul_u32_u24 {v(RA)}, 272, {v(NEGM+17)}")
        e(f"v_lshl_add_u32 {v(RA)}, {v(NEGM+16)}, 4, {v(RA)}")
        e(f"v_add_u32 {v(RA)}, {s(S_PRIV)}, {v(RA)}")
        e(f"s_mul_i32 {s(S_T1)}, {s(S_W)}, {96 * 256}")
        e(f"v_lshlrev_b32 {v(GA)}, 4, {v(V_LANE)}")
        e(f"v_add_u32 {v(GA)}, {s(S_T1)}, {v(GA)}")

    def last_iteration(self):
        e = self.e; opt = self.opt
        WA, RA, GA = V_T2, V_T3, V_OST
        RC = NEGM + 8
        def lred(t):
            L, T = L0 + t, NEGM + t
            fold = [f"v_add_f32 {v(L)}, {v(L)}, {v(NEGM+16+2*t)}", f"v_add_f32 {v(L)}, {v(L)}, {v(NEGM+17+2*t)}"] if opt.get("bp", False) and t < 4 else []
            return fold + [f"v_mov_b32 {v(T)}, {v(L)}", "s_nop 1", f"v_permlane32_swap_b32 {v(L)}, {v(T)}", "s_nop 0", f"v_add_f32 {v(L)}, {v(L)}, {v(T)}",
                    f"v_mov_b32 {v(T)}, {v(L)}", "s_nop 1", f"v_permlane16_swap_b32 {v(L)}, {v(T)}", "s_nop 0", f"v_add_f32 {v(L)}, {v(L)}, {v(T)}",
                    f"v_rcp_f32 {v(RC+t)}, {v(L)}", "s_nop 0"]
        def norm(t, pk=False):
            x = []
            if pk:
                x += [f"v_mov_b32 {v(V_T0)}, {v(RC+t)}", f"v_mov_b32 {v(V_T1)}, {v(RC+t)}"]
            for dt in range(8):
                o = O(t, dt)
                if pk:
                    x += [f"v_pk_mul_f32 {v(o,2)}, {v(o,2)}, {v(V_T0,2)}", f"v_pk_mul_f32 {v(o+2,2)}, {v(o+2,2)}, {v(V_T0,2)}"]
                else:
                    x += [f"v_mul_f32 {v(o+r)}, {v(o+r)}, {v(RC+t)}" for r in range(4)]
                x += [f"v_cvt_pk_bf16_f32 {v(o)}, {v(o)}, {v(o+1)}", f"v_cvt_pk_bf16_f32 {v(o+1)}, {v(o+2)}, {v(o+3)}",
                      f"ds_write_b64 {v(WA)}, {v(o,2)} offset:{(t & 1) * STG + 32 * dt}"]
            x += [f"ds_read_b128 {v(O(t, 0) + 4 * k, 4)}, {v(RA)} offset:{(t & 1) * STG + k * 4 * 272}" for k in range(4)]
            return x
        def stores(t):
            if opt.get("nostore"): return []
            return [f"buffer_store_dwordx4 {v(O(t, 0) + 4 * k, 4)}, {v(GA)}, {s(S_OSRD,4)}, {s(S_T0)} offen offset:{1024 * k}{self.stfl}" for k in range(4)]
        def pre(t, n=0): return [f"s_waitcnt lgkmcnt({n})", f"s_mov_b32 {s(S_T0)}, {t * 4096}"]
        def weave(main, sts):
            out = []; n = len(main); k = len(sts)
            marks = {(i * n) // k + 1: i for i in range(k)} if k else {}
            for i, x in enumerate(main):
                if i in marks: out.append(sts[marks[i]])
                out.append(x)
            return out
        pk = opt.get("epipk", False)
        def weave2(main, sts):
            if not main: return list(sts)
            return weave(main, sts)
        if self.tail2:
            self.c("---- last two tiles, q-tile major")
            b = [(0, 62), (1, 62), (0, 63), (1, 63), (2, 62), (2, 63), (3, 62), (3, 63), (4, 62), (4, 63), (5, 62), (5, 63)]
            K63 = [self.kread(1, 63 % R, kt, ks) for kt in range(2) for ks in range(4)]
            V63 = [self.vread(1, 63 % R, dt, hh) for dt in range(8) for hh in range(2)]
            exs = {3: lambda: lred(0), 4: lambda: lred(1) + norm(0, pk),
                   5: lambda: pre(0) + weave2(norm(1, pk), stores(0)), 6: lambda: pre(1) + weave2(lred(2), stores(1)),
                   7: lambda: norm(2, pk), 8: lambda: pre(2) + weave2(lred(3), stores(2)),
                   9: lambda: norm(3, pk), 10: lambda: pre(3) + weave2(lred(4), stores(3)), 11: lambda: norm(4, pk)}
            for n in range(12):
                sh = {}; lds = []
                if n == 0:
                    sh[0] = [f"s_waitcnt vmcnt({4 * (self.D - 2)})", "s_barrier"]
                    lds = K63[0:4]
                    for i, g in enumerate((1, 3, 5, 7)): sh[g] = [K63[4 + i]]
                if n == 1:
                    sh[0] = []
                    e("s_waitcnt lgkmcnt(0)")
                if n in (1, 2):
                    o = 8 * (n - 1)
                    lds = V63[o:o + 4]
                    for i, g in enumerate((1, 3, 5, 7)): sh[g] = [V63[o + 4 + i]]
                if n == 3: sh[0] = ["s_waitcnt lgkmcnt(0)"]
                qkb = (b[n + 1][1] & 1, b[n + 1][0], (n + 1) & 1) if n < 11 else None
                pvb = (b[n - 1][1] & 1, b[n - 1][0], (n - 1) & 1) if n >= 1 else (1, 5, 1)
                self.period_x(qkb, (b[n][0], n & 1), pvb, lds, sh, exs[n]() if n in exs else None)
            ex = pre(4) + weave2(lred(5), stores(4))
            e("s_nop 1")
            n = len(ex)
            for dt in range(8):
                e(self.pv(1, 5, dt, pb=1))
                for x in ex[dt * n // 8:(dt + 1) * n // 8]: e(x)
            self.stamp(12, 3)
            for x in norm(5, pk=True): e(x)
            for x in pre(5) + stores(5): e(x)
            self.check()
            return
        self.c("---- last tile")
        for t in range(6):
            sh = {}
            if t == 1: sh[0] = ["s_waitcnt lgkmcnt(0)"]
            ex = []
            if t >= 1: ex += lred(t - 1)
            if t >= 2: ex += norm(t - 2, pk)
            if t >= 3: ex = pre(t - 3) + weave(ex, stores(t - 3))
            self.period(63, t, [], sh, do_qk=(t < 5), extras=ex)
        ex = pre(3) + weave(lred(5) + norm(4, pk), stores(3))
        e("s_nop 1")
        n = len(ex)
        for dt in range(8):
            e(self.pv(63 & 1, 5, dt))
            for x in ex[dt * n // 8:(dt + 1) * n // 8]: e(x)
        self.check()
        self.stamp(12, 3)
        nx = norm(5, pk=True)
        for x in pre(4) + weave(nx[:-4], stores(4)) + nx[-4:]: e(x)
        for x in pre(5) + stores(5): e(x)

    def epilogue(self):
        e = self.e; opt = self.opt
        WA, RA, GA = V_T2, V_T3, V_OST
        PK = [SB[0], NEGM]
        RD = [160 - 160 + 0, 0]
        e(f"s_mul_i32 {s(S_T1)}, {s(S_W)}, {PRIV}")
        e(f"s_add_u32 {s(S_T1)}, {s(S_T1)}, {R * SLOT}")
        e(f"v_and_b32 {v(V_T0)}, 15, {v(V_LANE)}")
        e(f"v_lshrrev_b32 {v(V_T1)}, 4, {v(V_LANE)}")
        e(f"v_mul_u32_u24 {v(WA)}, 272, {v(V_T0)}")
        e(f"v_lshl_add_u32 {v(WA)}, {v(V_T1)}, 3, {v(WA)}")
        e(f"v_add_u32 {v(WA)}, {s(S_T1)}, {v(WA)}")
        e(f"v_mul_u32_u24 {v(RA)}, 272, {v(V_T1)}")
        e(f"v_lshl_add_u32 {v(RA)}, {v(V_T0)}, 4, {v(RA)}")
        e(f"v_add_u32 {v(RA)}, {s(S_T1)}, {v(RA)}")
        e(f"s_mul_i32 {s(S_T1)}, {s(S_W)}, {96 * 256}")
        e(f"v_lshlrev_b32 {v(GA)}, 4, {v(V_LANE)}")
        e(f"v_add_u32 {v(GA)}, {s(S_T1)}, {v(GA)}")
        def pack(t):
            L = L0 + t
            e(f"v_mov_b32 {v(V_T0)}, {v(L)}")
            e(f"v_mov_b32 {v(V_T1)}, {v(L)}")
            for dt in range(8):
                o = O(t, dt)
                e(f"v_pk_mul_f32 {v(o,2)}, {v(o,2)}, {v(V_T0,2)}")
                e(f"v_pk_mul_f32 {v(o+2,2)}, {v(o+2,2)}, {v(V_T0,2)}")
            for dt in range(8):
                o = O(t, dt)
                e(f"v_cvt_pk_bf16_f32 {v(o)}, {v(o)}, {v(o+1)}")
                e(f"v_cvt_pk_bf16_f32 {v(o+1)}, {v(o+2)}, {v(o+3)}")
                e(f"ds_write_b64 {v(WA)}, {v(o,2)} offset:{(t & 1) * STG + 32 * dt}")
        def unload(t):
            for k in range(4):
                e(f"ds_read_b128 {v(O(t, 0) + 4 * k, 4)}, {v(RA)} offset:{(t & 1) * STG + k * 4 * 272}")
        def store(t):
            e(f"s_mov_b32 {s(S_T0)}, {t * 4096}")
            for k in range(4):
                if not opt.get("nostore"):
                    e(f"buffer_store_dwordx4 {v(O(t, 0) + 4 * k, 4)}, {v(GA)}, {s(S_OSRD,4)}, {s(S_T0)} offen offset:{1024 * k}{self.stfl}")
        pack(0); unload(0)
        for t in range(1, 6):
            pack(t)
            e("s_waitcnt lgkmcnt(8)")
            store(t - 1)
            unload(t)
        e("s_waitcnt lgkmcnt(0)")
        store(5)

    def fallback(self):
        e = self.e
        FA, FB, FK, FV = V_T0, V_T1, V_T2, V_T3
        MX = L0
        self.lab("L_fallback")
        e("s_waitcnt vmcnt(0) lgkmcnt(0)")
        e("s_barrier")
        e(f"s_lshl_b32 {s(S_T0)}, {s(S_W)}, 11")
        e(f"v_subrev_u32 {v(FA)}, {s(S_T0)}, {v(V_OFFA)}")
        e(f"v_subrev_u32 {v(FB)}, {s(S_T0)}, {v(V_OFFB)}")
        e(f"s_mul_i32 {s(S_WOFF)}, {s(S_W)}, {SLOT}")
        e(f"v_add_u32 {v(FK)}, {s(S_WOFF)}, {v(V_KADDR)}")
        e(f"v_add_u32 {v(FV)}, {s(S_WOFF)}, {v(V_VADDR)}")
        def load_tile(with_v):
            for q in range(4):
                e(f"s_add_u32 m0, {s(S_WOFF)}, {q * QRT}")
                e(f"s_add_u32 {s(S_TOFF)}, {s(S_T1)}, {q * 2048}")
                for i in range(4 if with_v else 2): e(self.dma(i, FA, FB))
            e("s_waitcnt vmcnt(0)")
            for kt in range(2):
                for ks in range(4): e(self.kread(0, 0, kt, ks, FK))
            if with_v:
                for dt in range(8):
                    for hh in range(2): e(self.vread(0, 0, dt, hh, FV))
            e("s_waitcnt lgkmcnt(0)")
        for t in range(6): e(f"v_mov_b32 {v(MX+t)}, 0xff800000")
        e(f"s_mov_b32 {s(S_T1)}, 0")
        self.lab("L_fb1")
        load_tile(False)
        for t in range(6):
            for kt in range(2):
                for ks in range(4): e(self.qk(0, t, kt, ks))
            e("s_nop 7")
            e("s_nop 1")
            S = SB[t & 1]
            for i in range(0, 8, 2): e(f"v_max3_f32 {v(MX+t)}, {v(MX+t)}, {v(S+i)}, {v(S+i+1)}")
        e(f"s_add_u32 {s(S_T1)}, {s(S_T1)}, 8192")
        e(f"s_cmp_lt_u32 {s(S_T1)}, {NT * 8192}")
        e("s_cbranch_scc1 L_fb1")
        for x in self.lreduce("v_max_f32"):
            e(x); e("s_nop 1")
        for t in range(6):
            for r in range(4): e(f"v_sub_f32 {v(NEGM + 4*t + r)}, 0, {v(MX+t)}")
        for t in range(6): e(f"v_mov_b32 {v(L0+t)}, 0")
        for i in range(192): e(f"v_mov_b32 {v(i)}, 0")
        e(f"s_mov_b32 {s(S_T1)}, 0")
        self.lab("L_fb2")
        load_tile(True)
        for t in range(6):
            for kt in range(2):
                for ks in range(4): e(self.qk(0, t, kt, ks, v(NEGM + 4*t, 4)))
            e("s_nop 7")
            e("s_nop 1")
            S = SB[t & 1]; P = PB[t & 1]
            for i in range(8): e(f"v_exp_f32 {v(S+i)}, {v(S+i)}")
            e("s_nop 0")
            for i in range(8): e(f"v_add_f32 {v(L0+t)}, {v(L0+t)}, {v(S+i)}")
            for i in range(4): e(f"v_cvt_pk_bf16_f32 {v(P+i)}, {v(S+2*i)}, {v(S+2*i+1)}")
            e("s_nop 1")
            for dt in range(8): e(self.pv(0, t, dt))
        e(f"s_add_u32 {s(S_T1)}, {s(S_T1)}, 8192")
        e(f"s_cmp_lt_u32 {s(S_T1)}, {NT * 8192}")
        e("s_cbranch_scc1 L_fb2")
        for x in self.lreduce():
            e(x); e("s_nop 1")
        e("s_nop 7")
        if self.peel:
            for t in range(6): e(f"v_rcp_f32 {v(L0+t)}, {v(L0+t)}")
            self.epilogue()
            e("s_endpgm")
        else:
            e("s_branch L_norm")

if __name__ == "__main__":
    opt = {}
    out = sys.argv[1]
    for x in sys.argv[2:]:
        k, _, val = x.partition("=")
        opt[k] = eval(val) if val else True
    open(out, "w").write(Gen(opt).build())
```

```python
import sys

KN = "standalone__mha_softmax__near_ridge_kernel"
M16 = "v_mfma_f32_16x16x32_bf16"
NT = 64
BLK = 1056
QRT = 4 * BLK
SLOT = 4 * QRT
R = 4
STG = 16 * 272
QBUF = 4 * BLK
PRIV = 2 * STG

def O(t, dt): return 32 * t + 4 * dt
SB = [192, 200]
PB = [208, 212]
L0 = 216
V_KADDR, V_VADDR, V_OFFA, V_OFFB = 222, 223, 224, 225
V_LANE, V_OST, V_T0, V_T1, V_T2, V_T3 = 226, 227, 228, 229, 230, 231
NEGM = 232
def AQ(t, ks): return 16 * t + 4 * ks
def AK(p, kt, ks): return 96 + 32 * p + 16 * kt + 4 * ks
def AV(p, dt): return 160 + 32 * p + 4 * dt

S_QSRD, S_KSRD, S_VSRD, S_OSRD = 4, 8, 12, 16
S_W, S_WOFF, S_TOFF, S_CNT, S_T0, S_T1, S_T2, S_T3 = 20, 21, 22, 23, 24, 25, 26, 27
S_WS = 28
S_PRIV = 88
S_CMP = 90
S_RST = 40
S_CST = 72

def v(a, n=1): return f"v{a}" if n == 1 else f"v[{a}:{a+n-1}]"
def a(x, n=1): return f"a{x}" if n == 1 else f"a[{x}:{x+n-1}]"
def s(x, n=1): return f"s{x}" if n == 1 else f"s[{x}:{x+n-1}]"

class Gen:
    def __init__(self, opt):
        self.o = []
        self.opt = opt
        self.LDS = R * SLOT + 4 * PRIV
        self.ldfl = opt.get("ldfl", " nt")
        self.qfl = opt.get("qfl", " nt")
        self.stfl = opt.get("stfl", " sc0 sc1 nt")
        self.inloop = False
        self.D = 3
        self.peel = opt.get('peel', True)
        self.tail2 = opt.get('tail2', True) and self.peel
        self.exitpos = (1 if self.tail2 else 2) if self.peel else 3
    def e(self, line): self.o.append("    " + line)
    def lab(self, name): self.o.append(name + ":")
    def c(self, txt): self.o.append("    ; " + txt)
    def nit(self):
        first = 2 if self.opt.get("hd", "2") == "2" else 1
        last = 63 if not self.peel else (61 if self.tail2 else 62)
        return last - first + 1
    def capture(self, fn):
        saved = self.o; self.o = []
        fn()
        lines = [x.strip() for x in self.o]; self.o = saved
        return lines
    def stamp(self, idx, cyc=None):
        if self.opt.get("stamp"):
            self.e(f"s_memrealtime {s(S_RST + 2 * idx, 2)}")
            if cyc is not None: self.e(f"s_memtime {s(S_CST + 2 * cyc, 2)}")

    def dma(self, i, va=V_OFFA, vb=V_OFFB):
        srd = S_KSRD if i < 2 else S_VSRD
        off = f" offset:{i * BLK}" if i else ""
        return f"buffer_load_dwordx4 {v(va if i % 2 == 0 else vb)}, {s(srd,4)}, {s(S_TOFF)} offen{off}{self.ldfl} lds"
    def m0set(self, slot): return f"s_add_u32 m0, {s(S_WOFF)}, {slot * SLOT}"
    def kread(self, p, slot, kt, ks, addr=V_KADDR):
        return f"ds_read_b128 {a(AK(p, kt, ks), 4)}, {v(addr)} offset:{slot * SLOT + kt * 2 * QRT + 256 * ks}"
    def vread(self, p, slot, dt, hh, addr=V_VADDR):
        return f"ds_read_b64_tr_b16 {a(AV(p, dt) + 2 * hh, 2)}, {v(addr)} offset:{slot * SLOT + hh * 2 * QRT + 256 * (dt >> 1) + 32 * (dt & 1)}"
    def qk(self, p, t, kt, ks, cinit="0", sb=None):
        d = v(SB[t & 1 if sb is None else sb] + 4 * kt, 4)
        first = ks == 0
        if self.opt.get("rev", True) and kt == 1: ks = 3 - ks
        return f"{M16} {d}, {a(AK(p, kt, ks), 4)}, {a(AQ(t, ks), 4)}, {cinit if first else d}"
    def pv(self, p, t, dt, pb=None):
        d = v(O(t, dt), 4)
        return f"{M16} {d}, {a(AV(p, dt), 4)}, {v(PB[t & 1 if pb is None else pb], 4)}, {d}"

    def period(self, j, t, lds, shadow, do_qk=True, do_pv=True, extras=None, bp=None):
        jq, tq = (j, t + 1) if t < 5 else (j + 1, 0)
        jp, tp = (j, t - 1) if t > 0 else (j - 1, 5)
        self.period_x((jq & 1, tq, tq & 1) if do_qk else None, (t, t & 1), (jp & 1, tp, tp & 1) if do_pv else None, lds, shadow, extras, bp)

    def period_x(self, qkb, sm, pvb, lds, shadow, extras=None, bp=None):
        Q = [self.qk(qkb[0], qkb[1], kt, ks, sb=qkb[2]) if qkb else None for kt in range(2) for ks in range(4)]
        V = [self.pv(pvb[0], pvb[1], dt, pb=pvb[2]) if pvb else None for dt in range(8)]
        if self.opt.get("order", "88") == "4444": mf = Q[0:4] + V[0:4] + Q[4:8] + V[4:8]
        else: mf = Q + V
        t, sb = sm
        S = SB[sb]; P = PB[sb]; L = L0 + t
        e64 = self.opt.get("e64", "")
        ex = lambda i: f"v_exp_f32{'_e64' if 'e' in e64 else ''} {v(S+i)}, {v(S+i)}"
        ad = lambda i: f"v_add_f32{'_e64' if 'a' in e64 else ''} {v(L)}, {v(L)}, {v(S+i)}"
        cv = lambda i: f"v_cvt_pk_bf16_f32 {v(P+i)}, {v(S+2*i)}, {v(S+2*i+1)}"
        lds = list(lds) + [None] * (4 - len(lds))
        fill = {0: [ex(0)], 1: [ex(1)], 2: [lds[0], ad(0)], 3: [ex(2)], 4: [ad(1), cv(0)], 5: [ex(3)],
                6: [lds[1], ad(2)], 7: [ex(4)], 8: [ad(3), cv(1)], 9: [ex(5)], 10: [lds[2], ad(4)],
                11: [ex(6)], 12: [ad(5), cv(2)], 13: [ex(7)], 14: [lds[3], ad(6)], 15: [ad(7), cv(3)]}
        if bp:
            LP = NEGM + 16 + 2 * t
            fill[6] = [lds[1], cv(1)]
            fill[8] = [bp, f"v_pk_add_f32 {v(LP,2)}, {v(LP,2)}, {v(S+2,2)}"]
        abl = self.opt.get("abl", "") if self.inloop else ""
        for g in range(16):
            if mf[g]: self.e(mf[g])
            for x in shadow.get(g, []):
                if 'D' in abl and x.startswith("buffer_load"): continue
                if 'B' in abl and x.startswith("s_barrier"): continue
                self.e(x)
            for x in fill[g]:
                if x is None: continue
                if 'e' in abl and x.startswith("v_exp"): continue
                if 'a' in abl and x.startswith("v_add"): continue
                if 'c' in abl and x.startswith("v_cvt"): continue
                if 'l' in abl and x.startswith("ds_read"): continue
                self.e(x)
            if extras:
                n = len(extras)
                for x in extras[g * n // 16:(g + 1) * n // 16]: self.e(x)

    def iteration(self, j):
        self.c(f"---- iteration j%R={j % R}")
        p1 = (j + 1) & 1
        s1 = (j + 1) % R
        K = [self.kread(p1, s1, kt, ks) for kt in range(2) for ks in range(4)]
        V = [self.vread(p1, s1, dt, hh) for dt in range(8) for hh in range(2)]
        sched = [K[0:4], [K[4]] + V[0:3], [K[5]] + V[3:6], [K[6]] + V[6:9], [K[7]] + V[9:12], V[12:16]]
        sl = (j + self.D) % R
        bpm = self.opt.get("bp", False)
        pos = self.opt.get("dmapos", {0: [(1, 'm')], 3: [(11, 'inc')]} if bpm else {0: [(1, 'm'), (3, 0)], 1: [(3, 1)], 2: [(3, 2)], 3: [(3, 3), (5, 'inc')]})
        for t in range(6):
            sh = {}
            if t == 0:
                sh[0] = [f"s_waitcnt vmcnt({self.opt.get('xvm', 4 * (self.D - 2))})", "s_barrier"]
                if self.opt.get("xb2") and j % 2 == 0: sh[0] = []
            if t == 1: sh[0] = ["s_waitcnt lgkmcnt(4)"]
            if t == 4: sh[15] = ["s_waitcnt lgkmcnt(3)"]
            for (g, what) in pos.get(t, []):
                if what == 'm': ins = self.m0set(sl)
                elif what == 'inc': ins = f"s_add_u32 {s(S_TOFF)}, {s(S_TOFF)}, 8192"
                else: ins = self.dma(what)
                sh.setdefault(g, []).append(ins)
            if t == 5 and j % R == self.exitpos:
                sh.setdefault(3, []).append(f"s_sub_u32 {s(S_CNT)}, {s(S_CNT)}, 1")
                sh.setdefault(5, []).append(f"s_cmp_lg_u32 {s(S_CNT)}, 0")
            self.period(j, t, sched[t], sh, bp=(self.dma(t) if bpm and t < 4 else None))

    def lreduce(self, op="v_add_f32", regs=None):
        regs = regs or [L0 + t for t in range(6)]
        red = []
        for t in range(6): red.append(f"v_mov_b32 {v(NEGM+t)}, {v(regs[t])}")
        for t in range(6): red.append(f"v_permlane32_swap_b32 {v(regs[t])}, {v(NEGM+t)}")
        for t in range(6): red.append(f"{op} {v(regs[t])}, {v(regs[t])}, {v(NEGM+t)}")
        for t in range(6): red.append(f"v_mov_b32 {v(NEGM+t)}, {v(regs[t])}")
        for t in range(6): red.append(f"v_permlane16_swap_b32 {v(regs[t])}, {v(NEGM+t)}")
        for t in range(6): red.append(f"{op} {v(regs[t])}, {v(regs[t])}, {v(NEGM+t)}")
        return red

    def build(self):
        opt = self.opt
        e = self.e
        self.o.append(f"""; MHA forward (softmax(Q K^T / sqrt(D)) V), B=8 H=32 Sq=384 Sk=2048 D=128, bf16 in / bf16 out.
; @launch grid=(256,1,1) block=(256,1,1) lds={self.LDS}
;
.amdgcn_target "amdgcn-amd-amdhsa--gfx950"
.text
.globl {KN}
.p2align 8
.type {KN},@function
{KN}:""")
        e("s_load_dwordx4 s[32:35], s[0:1], 0")
        e("s_load_dwordx4 s[36:39], s[0:1], 16")
        e("s_cmpk_ge_u32 s2, 0x100")
        e("s_cbranch_scc1 L_end")
        self.stamp(0)
        for _ in range(opt.get("sleep0", 0)): e("s_sleep 32")
        QV = NEGM + 8
        X = QV + 3
        e(f"v_lshrrev_b32 {v(V_T1)}, 6, v0")
        e(f"v_bfe_u32 {v(V_T2)}, v0, 2, 2")
        e(f"v_bfe_u32 {v(V_T0)}, v0, 4, 2")
        e(f"v_readfirstlane_b32 {s(S_W)}, {v(V_T1)}")
        e(f"v_and_b32 {v(V_T3)}, 3, v0")
        e(f"v_lshlrev_b32 {v(X)}, 8, {v(V_T2)}")
        e(f"v_lshl_add_u32 {v(X)}, {v(V_T0)}, 6, {v(X)}")
        e(f"v_lshl_add_u32 {v(X)}, {v(V_T3)}, 4, {v(X)}")
        if opt.get("dmalin"):
            e(f"v_and_b32 {v(X)}, 63, v0"); e(f"v_lshlrev_b32 {v(X)}, 4, {v(X)}")
        e(f"s_lshl_b32 {s(S_T0)}, {s(S_W)}, {10 if opt.get('xdma') else 11}")
        e(f"s_mul_i32 {s(S_WOFF)}, {s(S_W)}, {QRT}")
        e(f"v_add_u32 {v(V_OFFB)}, {s(S_T0)}, {v(X)}")
        e(f"v_add_u32 {v(V_OFFA)}, 32, {v(V_OFFB)}")
        if opt.get('xdma'): e(f"v_add_u32 {v(V_OFFB)}, 3072, {v(V_OFFB)}")
        e(f"s_mul_i32 {s(S_T0)}, {s(S_W)}, {96 * 256}")
        e(f"v_add_u32 {v(QV+3)}, {s(S_T0)}, {v(X)}")
        e(f"v_add_u32 {v(QV+2)}, 32, {v(QV+3)}")
        e(f"v_add_u32 {v(QV+1)}, 32, {v(QV+2)}")
        e(f"v_add_u32 {v(QV)}, 32, {v(QV+1)}")
        e(f"s_mul_i32 {s(S_PRIV)}, {s(S_W)}, {PRIV}")
        e(f"s_add_u32 {s(S_PRIV)}, {s(S_PRIV)}, {R * SLOT}")
        if opt.get("remap", False):
            e(f"s_and_b32 {s(S_T0)}, s2, 7")
            e(f"s_lshl_b32 {s(S_T0)}, {s(S_T0)}, 5")
            e(f"s_lshr_b32 {s(S_T1)}, s2, 3")
            e(f"s_add_u32 s2, {s(S_T0)}, {s(S_T1)}")
        e(f"s_mul_i32 {s(S_T0)}, s2, 98304")
        e(f"s_lshl_b32 {s(S_T1)}, s2, 19")
        e(f"s_mov_b32 {s(S_KSRD+3)}, 0x20000")
        e(f"s_mov_b32 {s(S_KSRD+2)}, {524288 + 32}")
        e(f"s_mov_b32 {s(S_QSRD+3)}, {s(S_KSRD+3)}")
        e(f"s_mov_b32 {s(S_QSRD+2)}, {s(S_KSRD+2)}")
        e(f"s_mov_b32 {s(S_VSRD+3)}, {s(S_KSRD+3)}")
        e(f"s_mov_b32 {s(S_VSRD+2)}, {s(S_KSRD+2)}")
        e(f"s_mov_b32 {s(S_TOFF)}, 0")
        e(f"s_mov_b32 m0, {s(S_WOFF)}")
        e("s_waitcnt lgkmcnt(0)")
        if opt.get("fine"): self.stamp(1)
        e(f"s_add_u32 {s(S_KSRD)}, s34, {s(S_T1)}")
        e(f"s_addc_u32 {s(S_KSRD+1)}, s35, 0")
        e(f"s_sub_u32 {s(S_KSRD)}, {s(S_KSRD)}, 32")
        e(f"s_subb_u32 {s(S_KSRD+1)}, {s(S_KSRD+1)}, 0")
        vm = []
        e(self.dma(0)); e(self.dma(1)); vm += ["K0", "K0"]
        if opt.get("fine"): self.stamp(3)
        e(f"s_add_u32 {s(S_QSRD)}, s32, {s(S_T0)}")
        e(f"s_addc_u32 {s(S_QSRD+1)}, s33, 0")
        e(f"s_sub_u32 {s(S_QSRD)}, {s(S_QSRD)}, 96")
        e(f"s_subb_u32 {s(S_QSRD+1)}, {s(S_QSRD+1)}, 0")
        QPLACE = {0: ('p', 0), 1: ('p', STG), 2: ('r', 2 * SLOT), 3: ('r', 3 * SLOT), 4: ('p', 0), 5: ('p', STG)}
        def qload(t, pad=None):
            kind, off_ = QPLACE[t]
            base = s(S_PRIV if kind == 'p' else S_WOFF)
            e(f"s_add_u32 m0, {base}, {off_}" if off_ else f"s_mov_b32 m0, {base}")
            if t == 0: e(pad or "s_nop 0")
            else: e(f"s_movk_i32 {s(S_T3)}, {t * 4096}")
            for b in range(4):
                off = f" offset:{b * BLK}" if b else ""
                e(f"buffer_load_dwordx4 {v(QV+b)}, {s(S_QSRD,4)}, {s(S_TOFF if t == 0 else S_T3)} offen{off}{self.qfl} lds")
                vm.append(f"Q{t}")
        qload(0, pad=f"s_add_u32 {s(S_VSRD)}, s36, {s(S_T1)}")
        if opt.get("fine"): self.stamp(4)
        e(f"s_addc_u32 {s(S_VSRD+1)}, s37, 0")
        e(f"s_sub_u32 {s(S_VSRD)}, {s(S_VSRD)}, 2144")
        e(f"s_mov_b32 m0, {s(S_WOFF)}")
        e(f"s_subb_u32 {s(S_VSRD+1)}, {s(S_VSRD+1)}, 0")
        e(self.dma(2)); e(self.dma(3)); vm += ["V0", "V0"]
        if opt.get("fine"): self.stamp(5)
        if opt.get("hd", "2") == "2":
            e(f"s_add_u32 m0, {s(S_WOFF)}, {SLOT}")
            e(f"s_movk_i32 {s(S_TOFF)}, 0x2000")
            for i in range(4): e(self.dma(i))
            vm += ["K1", "K1", "V1", "V1"]
        else:
            qload(1)
        self.stamp(2, 0)
        if opt.get("stamp") and not opt.get("fine"): self.stamp(1)
        e(f"s_mov_b32 {s(S_QSRD+2)}, {98304 + 96}")
        e(f"s_mov_b32 {s(S_VSRD+2)}, {524288 + 2144}")
        e(f"s_mov_b32 {s(S_OSRD+2)}, 98304")
        e(f"s_mov_b32 {s(S_OSRD+3)}, {s(S_KSRD+3)}")
        e(f"s_add_u32 {s(S_OSRD)}, s38, {s(S_T0)}")
        e(f"s_addc_u32 {s(S_OSRD+1)}, s39, 0")
        e(f"v_and_b32 {v(V_LANE)}, 63, v0")
        def dma_half(tile, kv):
            e(f"s_mov_b32 {s(S_TOFF)}, {tile * 8192}")
            e(self.m0set(tile % R))
            e("s_nop 0")
            for i in ((0, 1) if kv == 'K' else (2, 3)): e(self.dma(i))
            vm.extend([f"{kv}{tile}"] * 2)
        def wait_for(lbl):
            last = max(i for i, x in enumerate(vm) if x == lbl)
            e(f"s_waitcnt vmcnt({len(vm) - 1 - last})")
        TMPC = NEGM
        QA = NEGM + 12
        two = opt.get("hd", "2") == "2"
        def qread(t):
            land = (O(5, 0) + (16 if t == 5 else 0)) if two else O(t, 0)
            wait_for(f"Q{t}")
            if not opt.get("fs"): self.stamp(3 + t)
            for ks in range(4):
                kind, off_ = QPLACE[t]
                e(f"ds_read_b128 {v(land + 4 * ks, 4)}, {v(QA if kind == 'p' else QA + 2)} offset:{off_ + 256 * ks}")
        def qcvt(t, after_read=None):
            land = (O(5, 0) + (16 if t == 5 else 0)) if two else O(t, 0)
            if two and t == 5:
                for i in range(16): e(f"v_mov_b32 {v(O(5, 0) + i)}, 0")
            e("s_waitcnt lgkmcnt(0)")
            if after_read: after_read()
            for i in range(16):
                x = land + i
                lo = TMPC + 2 * (i % 4); hi = lo + 1
                e(f"v_lshlrev_b32 {v(lo)}, 16, {v(x)}")
                e(f"v_and_b32 {v(hi)}, {s(S_T2)}, {v(x)}")
                e(f"v_pk_mul_f32 {v(lo,2)}, {v(lo,2)}, {v(V_T0,2)}")
                e(f"v_cvt_pk_bf16_f32 {v(lo)}, {v(lo)}, {v(hi)}")
                e(f"v_accvgpr_write_b32 {a(AQ(t,0)+i)}, {v(lo)}")
                if not two or t == 5: e(f"v_mov_b32 {v(x)}, 0")
        def qconv(t, after_read=None):
            qread(t); qcvt(t, after_read)
        e(f"v_lshrrev_b32 {v(V_KADDR)}, 1, {v(V_T2)}")
        e(f"v_mul_u32_u24 {v(V_KADDR)}, {QRT}, {v(V_KADDR)}")
        e(f"v_and_b32 {v(V_VADDR)}, 1, {v(V_T2)}")
        e(f"v_mul_u32_u24 {v(V_VADDR)}, {BLK}, {v(V_VADDR)}")
        e(f"v_add_u32 {v(V_KADDR)}, {v(V_KADDR)}, {v(V_VADDR)}")
        e(f"v_lshl_add_u32 {v(V_KADDR)}, {v(V_T3)}, 6, {v(V_KADDR)}")
        e(f"v_lshl_add_u32 {v(V_KADDR)}, {v(V_T0)}, 4, {v(V_KADDR)}")
        e(f"v_mul_u32_u24 {v(QA)}, {BLK}, {v(V_T2)}")
        e(f"v_lshl_add_u32 {v(QA)}, {v(V_T3)}, 6, {v(QA)}")
        e(f"v_lshl_add_u32 {v(QA)}, {v(V_T0)}, 4, {v(QA)}")
        e(f"v_add_u32 {v(QA+2)}, {s(S_WOFF)}, {v(QA)}")
        e(f"v_add_u32 {v(QA)}, {s(S_PRIV)}, {v(QA)}")
        e(f"v_lshrrev_b32 {v(V_VADDR)}, 1, {v(V_T0)}")
        e(f"v_mul_u32_u24 {v(V_VADDR)}, {QRT}, {v(V_VADDR)}")
        e(f"v_and_b32 {v(V_T1)}, 1, {v(V_T0)}")
        e(f"v_mul_u32_u24 {v(NEGM+13)}, {BLK}, {v(V_T1)}")
        e(f"v_add_u32 {v(V_VADDR)}, {v(V_VADDR)}, {v(NEGM+13)}")
        e(f"v_lshl_add_u32 {v(V_VADDR)}, {v(V_T2)}, 6, {v(V_VADDR)}")
        e(f"v_lshl_add_u32 {v(V_VADDR)}, {v(V_T3)}, 3, {v(V_VADDR)}")
        e(f"v_add_u32 {v(V_VADDR)}, {2 * BLK}, {v(V_VADDR)}")
        for i in range(6): e(f"v_mov_b32 {v(L0+i)}, 0")
        if opt.get("hd", "2") != "2":
            for i in range(4): e(f"v_mov_b32 {v(PB[1]+i)}, 0")
            for i in range(32): e(f"v_accvgpr_write_b32 {a(AV(1,0)+i)}, 0")
        if opt.get("hd", "2") == "2":
            for i in range(160): e(f"v_mov_b32 {v(i)}, 0")
        else:
            for t in range(6):
                for i in range(16, 32): e(f"v_mov_b32 {v(O(t,0)+i)}, 0")
        self.epi_addr()
        if opt.get("bp", False):
            for i in range(8): e(f"v_mov_b32 {v(NEGM+16+i)}, 0")
        e(f"s_mov_b32 {s(S_T1)}, 0x3e0293ee")
        e(f"v_mov_b32 {v(V_T0)}, {s(S_T1)}")
        e(f"v_mov_b32 {v(V_T1)}, {s(S_T1)}")
        e(f"s_mov_b32 {s(S_T2)}, 0xffff0000")
        hd = opt.get("hd", "2")
        if hd == "2":
            Kf = lambda tile: [self.kread(tile & 1, tile % R, kt, ks) for kt in range(2) for ks in range(4)]
            Vf = lambda tile: [self.vread(tile & 1, tile % R, dt, hh) for dt in range(8) for hh in range(2)]
            def tile_dma(tile): dma_half(tile, 'K'); dma_half(tile, 'V')
            qload(1)
            qconv(0, lambda: qload(2))
            wait_for("V1")
            e("s_barrier")
            for x in Kf(0) + Kf(1): e(x)
            e("s_waitcnt lgkmcnt(8)")
            V0r = Vf(0)
            for kt in range(2):
                for ks in range(4):
                    e(self.qk(0, 0, kt, ks, sb=0))
                    for x in V0r[8 * kt + 2 * ks: 8 * kt + 2 * ks + 2]: e(x)
            e("s_waitcnt lgkmcnt(15)")
            qload(3)
            K2 = Kf(2)
            for n in range(12):
                nq = n + 1
                lds = []; extras = []; sh = {}
                if n % 2 == 0 and n // 2 + 1 <= 5 and n > 0: qread(n // 2 + 1)
                if nq < 12 and nq % 2 == 0:
                    tq = nq >> 1
                    if tq == 1: qread(1)
                    qcvt(tq)
                    e("s_nop 1")
                    if tq == 1: extras = self.capture(lambda: qload(4))
                    if tq == 2: extras = self.capture(lambda: qload(5))
                    if tq == 3: extras = self.capture(lambda: tile_dma(2))
                    if tq == 4: extras = self.capture(lambda: tile_dma(3))
                if n == 0: extras = Vf(1)
                if n == 9:
                    wait_for("K2")
                    e("s_barrier")
                    if not opt.get("fs"): self.stamp(9)
                    lds = [None, None, K2[0], K2[1]]
                if n == 10:
                    lds = K2[2:6]
                    sh = {1: [K2[6]], 3: [K2[7]]}
                    extras = self.capture(lambda: tile_dma(4))
                if n == 11:
                    wait_for("V2")
                    e("s_waitcnt lgkmcnt(0)")
                    e("s_barrier")
                    V2 = Vf(2)
                    for dt in range(7): sh[9 + dt] = V2[2 * dt: 2 * dt + 2]
                qkb = (nq & 1, nq >> 1, nq & 1) if nq < 12 else (0, 0, 0)
                pvb = ((n - 1) & 1, (n - 1) >> 1, (n - 1) & 1) if n >= 1 else None
                self.period_x(qkb, (n >> 1, n & 1), pvb, lds, sh, extras)
            for x in Vf(2)[14:16]: e(x)
            e(f"s_mov_b32 {s(S_TOFF)}, {5 * 8192}")
            self.stamp(10, 1)
            e(f"s_mov_b32 {s(S_CNT)}, {30 if opt.get('xu2') else (15 if self.tail2 else 16)}")
            e("s_branch L_it2")
        else:
            fs = opt.get("fs")
            def fstamp(i):
                if fs and not (opt.get("fine") and i in (3, 4, 5)): self.stamp(i)
            qload(2)
            fstamp(3)
            if hd == "d":
                qconv(0, lambda: (fstamp(4), qload(3), fstamp(5)))
                fstamp(6)
            else:
                qconv(0, lambda: qload(3))
                qload(4)
            wait_for("V0")
            fstamp(7)
            e("s_barrier")
            fstamp(8)
            for kt in range(2):
                for ks in range(4): e(self.kread(0, 0, kt, ks))
            for dt in range(8):
                for hh in range(2): e(self.vread(0, 0, dt, hh))
            if hd != "d":
                qload(5)
                dma_half(1, 'K'); dma_half(1, 'V')
            e("s_waitcnt lgkmcnt(15)")
            for kt in range(2):
                for ks in range(4): e(self.qk(0, 0, kt, ks))
            fstamp(9)
            K1 = [self.kread(1, 1 % R, kt, ks) for kt in range(2) for ks in range(4)]
            V1 = [self.vread(1, 1 % R, dt, hh) for dt in range(8) for hh in range(2)]
            for t in range(6):
                if t + 1 <= 5:
                    def after(t=t):
                        if hd == "d":
                            if t == 0: qload(4)
                            if t == 1: qload(5)
                            if t == 2: dma_half(1, 'K'); dma_half(1, 'V')
                            if t == 3: dma_half(2, 'K'); dma_half(2, 'V')
                        else:
                            if t == 2: dma_half(2, 'K'); dma_half(2, 'V')
                            if t == 3: dma_half(3, 'K'); dma_half(3, 'V')
                    qconv(t + 1, after)
                    e("s_nop 1")
                if t == 0: e("s_waitcnt lgkmcnt(0)")
                if t == 5:
                    wait_for("K1")
                    e("s_barrier")
                    if not opt.get("fs"): self.stamp(9)
                    for x in K1: e(x)
                    e("s_waitcnt lgkmcnt(0)")
                self.period(0, t, [], {}, do_pv=True)
            wait_for("V1")
            e("s_barrier")
            for x in V1: e(x)
            if hd == "d":
                dma_half(3, 'K'); dma_half(3, 'V')
            e(f"s_mov_b32 {s(S_TOFF)}, {(self.D + 1) * 8192}")
            self.stamp(10, 1)
            e(f"s_mov_b32 {s(S_CNT)}, {NT // R}")
            e("s_branch L_it1")
        e(".p2align 6")
        self.lab("L_loop")
        self.inloop = True
        if opt.get("xu2"):
            self.lab("L_it1")
            self.iteration(1)
            e("s_cbranch_scc0 L_last")
            self.lab("L_it2")
            self.iteration(2)
            e(f"v_add_u32 {v(V_KADDR)}, 0, {v(V_KADDR)}")
            e(f"v_add_u32 {v(V_VADDR)}, 0, {v(V_VADDR)}")
        for j in (range(R) if not opt.get("xu2") else []):
            if j == 1: self.lab("L_it1")
            if j == 2: self.lab("L_it2")
            self.iteration(j)
            if self.peel and j == self.exitpos: e("s_cbranch_scc0 L_last")
        if self.peel: e("s_branch L_loop")
        else: e("s_cbranch_scc1 L_loop")
        self.inloop = False
        if self.peel:
            self.lab("L_last")
            self.stamp(11, 2)
            self.last_iteration()
        else:
            self.stamp(11, 2)
            red = self.lreduce()
            e("s_nop 1")
            for dt in range(8):
                e(self.pv(63 & 1, 5, dt))
                for x in red[2*dt:2*dt+2]: e(x)
            for x in red[16:]: e(x)
            self.check()
            self.lab("L_norm")
            for t in range(6): e(f"v_rcp_f32 {v(L0+t)}, {v(L0+t)}")
            self.stamp(12, 3)
            self.epilogue()
        self.stamp(13, 4)
        if opt.get("stamp") and opt.get("dbg") is None:
            e("s_waitcnt vmcnt(0)")
            self.stamp(14, 5)
            e(f"s_load_dwordx2 {s(S_WS,2)}, s[0:1], 40")
            e("s_waitcnt lgkmcnt(0)")
            e(f"s_mov_b32 {s(S_WS+2)}, 0x20000000")
            e(f"s_mov_b32 {s(S_WS+3)}, 0x20000")
            e(f"v_mov_b32 {v(V_T0)}, 0")
            for i in range(16): e(f"v_writelane_b32 {v(V_T0)}, {s(S_RST + 2*i)}, {i}")
            for i in range(8): e(f"v_writelane_b32 {v(V_T0)}, {s(S_CST + 2*i)}, {16+i}")
            e(f"s_lshl_b32 {s(S_T0)}, s2, 2")
            e(f"s_add_u32 {s(S_T0)}, {s(S_T0)}, {s(S_W)}")
            e(f"s_lshl_b32 {s(S_T0)}, {s(S_T0)}, 8")
            e(f"v_lshlrev_b32 {v(V_T1)}, 2, {v(V_LANE)}")
            e(f"buffer_store_dword {v(V_T0)}, {v(V_T1)}, {s(S_WS,4)}, {s(S_T0)} offen")
        if opt.get("dbg") is not None:
            e("s_waitcnt vmcnt(0)")
            self.stamp(14, 5)
            e(f"s_load_dwordx2 {s(S_WS,2)}, s[0:1], 32")
            e("s_waitcnt lgkmcnt(0)")
            e(f"s_cmp_lg_u32 s2, {opt['dbg']}")
            e("s_cbranch_scc1 L_end")
            e(f"s_cmp_lg_u32 {s(S_W)}, 0")
            e("s_cbranch_scc1 L_end")
            e(f"s_mov_b32 {s(S_WS+2)}, 256")
            e(f"s_mov_b32 {s(S_WS+3)}, 0x20000")
            e(f"v_mov_b32 {v(V_T0)}, 0")
            for i in range(1, 15):
                e(f"s_sub_u32 {s(S_T0)}, {s(S_RST + 2*i)}, {s(S_RST)}")
                e(f"v_writelane_b32 {v(V_T0)}, {s(S_T0)}, {i - 1}")
            e(f"s_sub_u32 {s(S_T0)}, {s(S_CST + 4)}, {s(S_CST + 2)}")
            e(f"v_writelane_b32 {v(V_T0)}, {s(S_T0)}, 14")
            e(f"s_sub_u32 {s(S_T0)}, {s(S_CST + 10)}, {s(S_CST)}")
            e(f"v_writelane_b32 {v(V_T0)}, {s(S_T0)}, 15")
            e(f"v_lshlrev_b32 {v(V_T1)}, 2, {v(V_LANE)}")
            e(f"buffer_store_dword {v(V_T0)}, {v(V_T1)}, {s(S_WS,4)}, 0 offen")
        for _ in range(opt.get("sleep1", 0)): e("s_sleep 32")
        self.lab("L_end")
        e("s_endpgm")
        if not opt.get("nocheck"): self.fallback()
        self.o.append(f""".section .rodata,"a"
.p2align 6
.amdhsa_kernel {KN}
  .amdhsa_next_free_vgpr 512
  .amdhsa_next_free_sgpr 102
  .amdhsa_accum_offset 256
  .amdhsa_group_segment_fixed_size 0
  .amdhsa_kernarg_size 48
  .amdhsa_user_sgpr_count 2
  .amdhsa_user_sgpr_kernarg_segment_ptr 1
  .amdhsa_system_sgpr_workgroup_id_x 1
.end_amdhsa_kernel""")
        return "\n".join(self.o) + "\n"

    def check(self):
        if self.opt.get("nocheck"): return
        e = self.e
        e(f"v_max3_f32 {v(NEGM)}, {v(L0)}, {v(L0+1)}, {v(L0+2)}")
        e(f"v_min3_f32 {v(NEGM+1)}, {v(L0)}, {v(L0+1)}, {v(L0+2)}")
        e(f"v_max3_f32 {v(NEGM)}, {v(NEGM)}, {v(L0+3)}, {v(L0+4)}")
        e(f"v_min3_f32 {v(NEGM+1)}, {v(NEGM+1)}, {v(L0+3)}, {v(L0+4)}")
        e(f"v_max_f32 {v(NEGM)}, {v(NEGM)}, {v(L0+5)}")
        e(f"v_min_f32 {v(NEGM+1)}, {v(NEGM+1)}, {v(L0+5)}")
        e(f"s_mov_b32 {s(S_T1)}, 0x53800000")
        e(f"s_mov_b32 {s(S_T3)}, 0x37800000")
        e(f"v_cmp_ge_f32 vcc, {s(S_T1)}, {v(NEGM)}")
        e(f"v_cmp_le_f32 {s(S_CMP,2)}, {s(S_T3)}, {v(NEGM+1)}")
        e(f"s_and_b64 vcc, vcc, {s(S_CMP,2)}")
        e("s_cmp_eq_u64 vcc, -1")
        e("s_cbranch_scc0 L_fallback")

    def epi_addr(self):
        e = self.e
        WA, RA, GA = V_T2, V_T3, V_OST
        e(f"v_and_b32 {v(NEGM+16)}, 15, {v(V_LANE)}")
        e(f"v_lshrrev_b32 {v(NEGM+17)}, 4, {v(V_LANE)}")
        e(f"v_mul_u32_u24 {v(WA)}, 272, {v(NEGM+16)}")
        e(f"v_lshl_add_u32 {v(WA)}, {v(NEGM+17)}, 3, {v(WA)}")
        e(f"v_add_u32 {v(WA)}, {s(S_PRIV)}, {v(WA)}")
        e(f"v_mul_u32_u24 {v(RA)}, 272, {v(NEGM+17)}")
        e(f"v_lshl_add_u32 {v(RA)}, {v(NEGM+16)}, 4, {v(RA)}")
        e(f"v_add_u32 {v(RA)}, {s(S_PRIV)}, {v(RA)}")
        e(f"s_mul_i32 {s(S_T1)}, {s(S_W)}, {96 * 256}")
        e(f"v_lshlrev_b32 {v(GA)}, 4, {v(V_LANE)}")
        e(f"v_add_u32 {v(GA)}, {s(S_T1)}, {v(GA)}")

    def last_iteration(self):
        e = self.e; opt = self.opt
        WA, RA, GA = V_T2, V_T3, V_OST
        RC = NEGM + 8
        def lred(t):
            L, T = L0 + t, NEGM + t
            fold = [f"v_add_f32 {v(L)}, {v(L)}, {v(NEGM+16+2*t)}", f"v_add_f32 {v(L)}, {v(L)}, {v(NEGM+17+2*t)}"] if opt.get("bp", False) and t < 4 else []
            return fold + [f"v_mov_b32 {v(T)}, {v(L)}", "s_nop 1", f"v_permlane32_swap_b32 {v(L)}, {v(T)}", "s_nop 0", f"v_add_f32 {v(L)}, {v(L)}, {v(T)}",
                    f"v_mov_b32 {v(T)}, {v(L)}", "s_nop 1", f"v_permlane16_swap_b32 {v(L)}, {v(T)}", "s_nop 0", f"v_add_f32 {v(L)}, {v(L)}, {v(T)}",
                    f"v_rcp_f32 {v(RC+t)}, {v(L)}", "s_nop 0"]
        def norm(t, pk=False):
            x = []
            if pk:
                x += [f"v_mov_b32 {v(V_T0)}, {v(RC+t)}", f"v_mov_b32 {v(V_T1)}, {v(RC+t)}"]
            for dt in range(8):
                o = O(t, dt)
                if pk:
                    x += [f"v_pk_mul_f32 {v(o,2)}, {v(o,2)}, {v(V_T0,2)}", f"v_pk_mul_f32 {v(o+2,2)}, {v(o+2,2)}, {v(V_T0,2)}"]
                else:
                    x += [f"v_mul_f32 {v(o+r)}, {v(o+r)}, {v(RC+t)}" for r in range(4)]
                x += [f"v_cvt_pk_bf16_f32 {v(o)}, {v(o)}, {v(o+1)}", f"v_cvt_pk_bf16_f32 {v(o+1)}, {v(o+2)}, {v(o+3)}",
                      f"ds_write_b64 {v(WA)}, {v(o,2)} offset:{(t & 1) * STG + 32 * dt}"]
            x += [f"ds_read_b128 {v(O(t, 0) + 4 * k, 4)}, {v(RA)} offset:{(t & 1) * STG + k * 4 * 272}" for k in range(4)]
            return x
        def stores(t):
            if opt.get("nostore"): return []
            return [f"buffer_store_dwordx4 {v(O(t, 0) + 4 * k, 4)}, {v(GA)}, {s(S_OSRD,4)}, {s(S_T0)} offen offset:{1024 * k}{self.stfl}" for k in range(4)]
        def pre(t, n=0): return [f"s_waitcnt lgkmcnt({n})", f"s_mov_b32 {s(S_T0)}, {t * 4096}"]
        def weave(main, sts):
            out = []; n = len(main); k = len(sts)
            marks = {(i * n) // k + 1: i for i in range(k)} if k else {}
            for i, x in enumerate(main):
                if i in marks: out.append(sts[marks[i]])
                out.append(x)
            return out
        pk = opt.get("epipk", False)
        def weave2(main, sts):
            if not main: return list(sts)
            return weave(main, sts)
        if self.tail2:
            self.c("---- last two tiles, q-tile major")
            b = [(0, 62), (1, 62), (0, 63), (1, 63), (2, 62), (2, 63), (3, 62), (3, 63), (4, 62), (4, 63), (5, 62), (5, 63)]
            K63 = [self.kread(1, 63 % R, kt, ks) for kt in range(2) for ks in range(4)]
            V63 = [self.vread(1, 63 % R, dt, hh) for dt in range(8) for hh in range(2)]
            exs = {3: lambda: lred(0), 4: lambda: lred(1) + norm(0, pk),
                   5: lambda: pre(0) + weave2(norm(1, pk), stores(0)), 6: lambda: pre(1) + weave2(lred(2), stores(1)),
                   7: lambda: norm(2, pk), 8: lambda: pre(2) + weave2(lred(3), stores(2)),
                   9: lambda: norm(3, pk), 10: lambda: pre(3) + weave2(lred(4), stores(3)), 11: lambda: norm(4, pk)}
            for n in range(12):
                sh = {}; lds = []
                if n == 0:
                    sh[0] = [f"s_waitcnt vmcnt({4 * (self.D - 2)})", "s_barrier"]
                    lds = K63[0:4]
                    for i, g in enumerate((1, 3, 5, 7)): sh[g] = [K63[4 + i]]
                if n == 1:
                    sh[0] = []
                    e("s_waitcnt lgkmcnt(0)")
                if n in (1, 2):
                    o = 8 * (n - 1)
                    lds = V63[o:o + 4]
                    for i, g in enumerate((1, 3, 5, 7)): sh[g] = [V63[o + 4 + i]]
                if n == 3: sh[0] = ["s_waitcnt lgkmcnt(0)"]
                qkb = (b[n + 1][1] & 1, b[n + 1][0], (n + 1) & 1) if n < 11 else None
                pvb = (b[n - 1][1] & 1, b[n - 1][0], (n - 1) & 1) if n >= 1 else (1, 5, 1)
                self.period_x(qkb, (b[n][0], n & 1), pvb, lds, sh, exs[n]() if n in exs else None)
            ex = pre(4) + weave2(lred(5), stores(4))
            e("s_nop 1")
            n = len(ex)
            for dt in range(8):
                e(self.pv(1, 5, dt, pb=1))
                for x in ex[dt * n // 8:(dt + 1) * n // 8]: e(x)
            self.stamp(12, 3)
            for x in norm(5, pk=True): e(x)
            for x in pre(5) + stores(5): e(x)
            self.check()
            return
        self.c("---- last tile")
        for t in range(6):
            sh = {}
            if t == 1: sh[0] = ["s_waitcnt lgkmcnt(0)"]
            ex = []
            if t >= 1: ex += lred(t - 1)
            if t >= 2: ex += norm(t - 2, pk)
            if t >= 3: ex = pre(t - 3) + weave(ex, stores(t - 3))
            self.period(63, t, [], sh, do_qk=(t < 5), extras=ex)
        ex = pre(3) + weave(lred(5) + norm(4, pk), stores(3))
        e("s_nop 1")
        n = len(ex)
        for dt in range(8):
            e(self.pv(63 & 1, 5, dt))
            for x in ex[dt * n // 8:(dt + 1) * n // 8]: e(x)
        self.check()
        self.stamp(12, 3)
        nx = norm(5, pk=True)
        for x in pre(4) + weave(nx[:-4], stores(4)) + nx[-4:]: e(x)
        for x in pre(5) + stores(5): e(x)

    def epilogue(self):
        e = self.e; opt = self.opt
        WA, RA, GA = V_T2, V_T3, V_OST
        PK = [SB[0], NEGM]
        RD = [160 - 160 + 0, 0]
        e(f"s_mul_i32 {s(S_T1)}, {s(S_W)}, {PRIV}")
        e(f"s_add_u32 {s(S_T1)}, {s(S_T1)}, {R * SLOT}")
        e(f"v_and_b32 {v(V_T0)}, 15, {v(V_LANE)}")
        e(f"v_lshrrev_b32 {v(V_T1)}, 4, {v(V_LANE)}")
        e(f"v_mul_u32_u24 {v(WA)}, 272, {v(V_T0)}")
        e(f"v_lshl_add_u32 {v(WA)}, {v(V_T1)}, 3, {v(WA)}")
        e(f"v_add_u32 {v(WA)}, {s(S_T1)}, {v(WA)}")
        e(f"v_mul_u32_u24 {v(RA)}, 272, {v(V_T1)}")
        e(f"v_lshl_add_u32 {v(RA)}, {v(V_T0)}, 4, {v(RA)}")
        e(f"v_add_u32 {v(RA)}, {s(S_T1)}, {v(RA)}")
        e(f"s_mul_i32 {s(S_T1)}, {s(S_W)}, {96 * 256}")
        e(f"v_lshlrev_b32 {v(GA)}, 4, {v(V_LANE)}")
        e(f"v_add_u32 {v(GA)}, {s(S_T1)}, {v(GA)}")
        def pack(t):
            L = L0 + t
            e(f"v_mov_b32 {v(V_T0)}, {v(L)}")
            e(f"v_mov_b32 {v(V_T1)}, {v(L)}")
            for dt in range(8):
                o = O(t, dt)
                e(f"v_pk_mul_f32 {v(o,2)}, {v(o,2)}, {v(V_T0,2)}")
                e(f"v_pk_mul_f32 {v(o+2,2)}, {v(o+2,2)}, {v(V_T0,2)}")
            for dt in range(8):
                o = O(t, dt)
                e(f"v_cvt_pk_bf16_f32 {v(o)}, {v(o)}, {v(o+1)}")
                e(f"v_cvt_pk_bf16_f32 {v(o+1)}, {v(o+2)}, {v(o+3)}")
                e(f"ds_write_b64 {v(WA)}, {v(o,2)} offset:{(t & 1) * STG + 32 * dt}")
        def unload(t):
            for k in range(4):
                e(f"ds_read_b128 {v(O(t, 0) + 4 * k, 4)}, {v(RA)} offset:{(t & 1) * STG + k * 4 * 272}")
        def store(t):
            e(f"s_mov_b32 {s(S_T0)}, {t * 4096}")
            for k in range(4):
                if not opt.get("nostore"):
                    e(f"buffer_store_dwordx4 {v(O(t, 0) + 4 * k, 4)}, {v(GA)}, {s(S_OSRD,4)}, {s(S_T0)} offen offset:{1024 * k}{self.stfl}")
        pack(0); unload(0)
        for t in range(1, 6):
            pack(t)
            e("s_waitcnt lgkmcnt(8)")
            store(t - 1)
            unload(t)
        e("s_waitcnt lgkmcnt(0)")
        store(5)

    def fallback(self):
        e = self.e
        FA, FB, FK, FV = V_T0, V_T1, V_T2, V_T3
        MX = L0
        self.lab("L_fallback")
        e("s_waitcnt vmcnt(0) lgkmcnt(0)")
        e("s_barrier")
        e(f"s_lshl_b32 {s(S_T0)}, {s(S_W)}, 11")
        e(f"v_subrev_u32 {v(FA)}, {s(S_T0)}, {v(V_OFFA)}")
        e(f"v_subrev_u32 {v(FB)}, {s(S_T0)}, {v(V_OFFB)}")
        e(f"s_mul_i32 {s(S_WOFF)}, {s(S_W)}, {SLOT}")
        e(f"v_add_u32 {v(FK)}, {s(S_WOFF)}, {v(V_KADDR)}")
        e(f"v_add_u32 {v(FV)}, {s(S_WOFF)}, {v(V_VADDR)}")
        def load_tile(with_v):
            for q in range(4):
                e(f"s_add_u32 m0, {s(S_WOFF)}, {q * QRT}")
                e(f"s_add_u32 {s(S_TOFF)}, {s(S_T1)}, {q * 2048}")
                for i in range(4 if with_v else 2): e(self.dma(i, FA, FB))
            e("s_waitcnt vmcnt(0)")
            for kt in range(2):
                for ks in range(4): e(self.kread(0, 0, kt, ks, FK))
            if with_v:
                for dt in range(8):
                    for hh in range(2): e(self.vread(0, 0, dt, hh, FV))
            e("s_waitcnt lgkmcnt(0)")
        for t in range(6): e(f"v_mov_b32 {v(MX+t)}, 0xff800000")
        e(f"s_mov_b32 {s(S_T1)}, 0")
        self.lab("L_fb1")
        load_tile(False)
        for t in range(6):
            for kt in range(2):
                for ks in range(4): e(self.qk(0, t, kt, ks))
            e("s_nop 7")
            e("s_nop 1")
            S = SB[t & 1]
            for i in range(0, 8, 2): e(f"v_max3_f32 {v(MX+t)}, {v(MX+t)}, {v(S+i)}, {v(S+i+1)}")
        e(f"s_add_u32 {s(S_T1)}, {s(S_T1)}, 8192")
        e(f"s_cmp_lt_u32 {s(S_T1)}, {NT * 8192}")
        e("s_cbranch_scc1 L_fb1")
        for x in self.lreduce("v_max_f32"):
            e(x); e("s_nop 1")
        for t in range(6):
            for r in range(4): e(f"v_sub_f32 {v(NEGM + 4*t + r)}, 0, {v(MX+t)}")
        for t in range(6): e(f"v_mov_b32 {v(L0+t)}, 0")
        for i in range(192): e(f"v_mov_b32 {v(i)}, 0")
        e(f"s_mov_b32 {s(S_T1)}, 0")
        self.lab("L_fb2")
        load_tile(True)
        for t in range(6):
            for kt in range(2):
                for ks in range(4): e(self.qk(0, t, kt, ks, v(NEGM + 4*t, 4)))
            e("s_nop 7")
            e("s_nop 1")
            S = SB[t & 1]; P = PB[t & 1]
            for i in range(8): e(f"v_exp_f32 {v(S+i)}, {v(S+i)}")
            e("s_nop 0")
            for i in range(8): e(f"v_add_f32 {v(L0+t)}, {v(L0+t)}, {v(S+i)}")
            for i in range(4): e(f"v_cvt_pk_bf16_f32 {v(P+i)}, {v(S+2*i)}, {v(S+2*i+1)}")
            e("s_nop 1")
            for dt in range(8): e(self.pv(0, t, dt))
        e(f"s_add_u32 {s(S_T1)}, {s(S_T1)}, 8192")
        e(f"s_cmp_lt_u32 {s(S_T1)}, {NT * 8192}")
        e("s_cbranch_scc1 L_fb2")
        for x in self.lreduce():
            e(x); e("s_nop 1")
        e("s_nop 7")
        if self.peel:
            for t in range(6): e(f"v_rcp_f32 {v(L0+t)}, {v(L0+t)}")
            self.epilogue()
            e("s_endpgm")
        else:
            e("s_branch L_norm")

if __name__ == "__main__":
    opt = {}
    out = sys.argv[1]
    for x in sys.argv[2:]:
        k, _, val = x.partition("=")
        opt[k] = eval(val) if val else True
    open(out, "w").write(Gen(opt).build())
```

```python
import sys

KN = "standalone__mha_softmax__near_ridge_kernel"
M16 = "v_mfma_f32_16x16x32_bf16"
NT = 64
BLK = 1056
QRT = 4 * BLK
SLOT = 4 * QRT
R = 4
STG = 16 * 272
QBUF = 4 * BLK
PRIV = 2 * STG

def O(t, dt): return 32 * t + 4 * dt
SB = [192, 200]
PB = [208, 212]
L0 = 216
V_KADDR, V_VADDR, V_OFFA, V_OFFB = 222, 223, 224, 225
V_LANE, V_OST, V_T0, V_T1, V_T2, V_T3 = 226, 227, 228, 229, 230, 231
NEGM = 232
def AQ(t, ks): return 16 * t + 4 * ks
def AK(p, kt, ks): return 96 + 32 * p + 16 * kt + 4 * ks
def AV(p, dt): return 160 + 32 * p + 4 * dt

S_QSRD, S_KSRD, S_VSRD, S_OSRD = 4, 8, 12, 16
S_W, S_WOFF, S_TOFF, S_CNT, S_T0, S_T1, S_T2, S_T3 = 20, 21, 22, 23, 24, 25, 26, 27
S_WS = 28
S_PRIV = 88
S_CMP = 90
S_RST = 40
S_CST = 72

def v(a, n=1): return f"v{a}" if n == 1 else f"v[{a}:{a+n-1}]"
def a(x, n=1): return f"a{x}" if n == 1 else f"a[{x}:{x+n-1}]"
def s(x, n=1): return f"s{x}" if n == 1 else f"s[{x}:{x+n-1}]"

class Gen:
    def __init__(self, opt):
        self.o = []
        self.opt = opt
        self.LDS = R * SLOT + 4 * PRIV
        self.ldfl = opt.get("ldfl", " nt")
        self.qfl = opt.get("qfl", " nt")
        self.stfl = opt.get("stfl", " sc0 sc1 nt")
        self.inloop = False
        self.D = 3
        self.peel = opt.get('peel', True)
        self.tail2 = opt.get('tail2', True) and self.peel
        self.exitpos = (1 if self.tail2 else 2) if self.peel else 3
    def e(self, line): self.o.append("    " + line)
    def lab(self, name): self.o.append(name + ":")
    def c(self, txt): self.o.append("    ; " + txt)
    def nit(self):
        first = 2 if self.opt.get("hd", "2") == "2" else 1
        last = 63 if not self.peel else (61 if self.tail2 else 62)
        return last - first + 1
    def capture(self, fn):
        saved = self.o; self.o = []
        fn()
        lines = [x.strip() for x in self.o]; self.o = saved
        return lines
    def stamp(self, idx, cyc=None):
        if self.opt.get("stamp"):
            self.e(f"s_memrealtime {s(S_RST + 2 * idx, 2)}")
            if cyc is not None: self.e(f"s_memtime {s(S_CST + 2 * cyc, 2)}")

    def dma(self, i, va=V_OFFA, vb=V_OFFB):
        srd = S_KSRD if i < 2 else S_VSRD
        off = f" offset:{i * BLK}" if i else ""
        return f"buffer_load_dwordx4 {v(va if i % 2 == 0 else vb)}, {s(srd,4)}, {s(S_TOFF)} offen{off}{self.ldfl} lds"
    def m0set(self, slot): return f"s_add_u32 m0, {s(S_WOFF)}, {slot * SLOT}"
    def kread(self, p, slot, kt, ks, addr=V_KADDR):
        return f"ds_read_b128 {a(AK(p, kt, ks), 4)}, {v(addr)} offset:{slot * SLOT + kt * 2 * QRT + 256 * ks}"
    def vread(self, p, slot, dt, hh, addr=V_VADDR):
        return f"ds_read_b64_tr_b16 {a(AV(p, dt) + 2 * hh, 2)}, {v(addr)} offset:{slot * SLOT + hh * 2 * QRT + 256 * (dt >> 1) + 32 * (dt & 1)}"
    def qk(self, p, t, kt, ks, cinit="0", sb=None):
        d = v(SB[t & 1 if sb is None else sb] + 4 * kt, 4)
        first = ks == 0
        if self.opt.get("rev", True) and kt == 1: ks = 3 - ks
        return f"{M16} {d}, {a(AK(p, kt, ks), 4)}, {a(AQ(t, ks), 4)}, {cinit if first else d}"
    def pv(self, p, t, dt, pb=None):
        d = v(O(t, dt), 4)
        return f"{M16} {d}, {a(AV(p, dt), 4)}, {v(PB[t & 1 if pb is None else pb], 4)}, {d}"

    def period(self, j, t, lds, shadow, do_qk=True, do_pv=True, extras=None, bp=None):
        jq, tq = (j, t + 1) if t < 5 else (j + 1, 0)
        jp, tp = (j, t - 1) if t > 0 else (j - 1, 5)
        self.period_x((jq & 1, tq, tq & 1) if do_qk else None, (t, t & 1), (jp & 1, tp, tp & 1) if do_pv else None, lds, shadow, extras, bp)

    def period_x(self, qkb, sm, pvb, lds, shadow, extras=None, bp=None):
        Q = [self.qk(qkb[0], qkb[1], kt, ks, sb=qkb[2]) if qkb else None for kt in range(2) for ks in range(4)]
        V = [self.pv(pvb[0], pvb[1], dt, pb=pvb[2]) if pvb else None for dt in range(8)]
        if self.opt.get("order", "88") == "4444": mf = Q[0:4] + V[0:4] + Q[4:8] + V[4:8]
        else: mf = Q + V
        t, sb = sm
        S = SB[sb]; P = PB[sb]; L = L0 + t
        e64 = self.opt.get("e64", "")
        ex = lambda i: f"v_exp_f32{'_e64' if 'e' in e64 else ''} {v(S+i)}, {v(S+i)}"
        ad = lambda i: f"v_add_f32{'_e64' if 'a' in e64 else ''} {v(L)}, {v(L)}, {v(S+i)}"
        cv = lambda i: f"v_cvt_pk_bf16_f32 {v(P+i)}, {v(S+2*i)}, {v(S+2*i+1)}"
        lds = list(lds) + [None] * (4 - len(lds))
        fill = {0: [ex(0)], 1: [ex(1)], 2: [lds[0], ad(0)], 3: [ex(2)], 4: [ad(1), cv(0)], 5: [ex(3)],
                6: [lds[1], ad(2)], 7: [ex(4)], 8: [ad(3), cv(1)], 9: [ex(5)], 10: [lds[2], ad(4)],
                11: [ex(6)], 12: [ad(5), cv(2)], 13: [ex(7)], 14: [lds[3], ad(6)], 15: [ad(7), cv(3)]}
        if bp:
            LP = NEGM + 16 + 2 * t
            fill[6] = [lds[1], cv(1)]
            fill[8] = [bp, f"v_pk_add_f32 {v(LP,2)}, {v(LP,2)}, {v(S+2,2)}"]
        abl = self.opt.get("abl", "") if self.inloop else ""
        for g in range(16):
            if mf[g]: self.e(mf[g])
            for x in shadow.get(g, []):
                if 'D' in abl and x.startswith("buffer_load"): continue
                if 'B' in abl and x.startswith("s_barrier"): continue
                self.e(x)
            for x in fill[g]:
                if x is None: continue
                if 'e' in abl and x.startswith("v_exp"): continue
                if 'a' in abl and x.startswith("v_add"): continue
                if 'c' in abl and x.startswith("v_cvt"): continue
                if 'l' in abl and x.startswith("ds_read"): continue
                self.e(x)
            if extras:
                n = len(extras)
                for x in extras[g * n // 16:(g + 1) * n // 16]: self.e(x)

    def iteration(self, j):
        self.c(f"---- iteration j%R={j % R}")
        p1 = (j + 1) & 1
        s1 = (j + 1) % R
        K = [self.kread(p1, s1, kt, ks) for kt in range(2) for ks in range(4)]
        V = [self.vread(p1, s1, dt, hh) for dt in range(8) for hh in range(2)]
        sched = [K[0:4], [K[4]] + V[0:3], [K[5]] + V[3:6], [K[6]] + V[6:9], [K[7]] + V[9:12], V[12:16]]
        sl = (j + self.D) % R
        bpm = self.opt.get("bp", False)
        pos = self.opt.get("dmapos", {0: [(1, 'm')], 3: [(11, 'inc')]} if bpm else {0: [(1, 'm'), (3, 0)], 1: [(3, 1)], 2: [(3, 2)], 3: [(3, 3), (5, 'inc')]})
        for t in range(6):
            sh = {}
            if t == 0:
                sh[0] = [f"s_waitcnt vmcnt({self.opt.get('xvm', 4 * (self.D - 2))})", "s_barrier"]
                if self.opt.get("xb2") and j % 2 == 0: sh[0] = []
            if t == 1: sh[0] = ["s_waitcnt lgkmcnt(4)"]
            if t == 4: sh[15] = ["s_waitcnt lgkmcnt(3)"]
            for (g, what) in pos.get(t, []):
                if what == 'm': ins = self.m0set(sl)
                elif what == 'inc': ins = f"s_add_u32 {s(S_TOFF)}, {s(S_TOFF)}, 8192"
                else: ins = self.dma(what)
                sh.setdefault(g, []).append(ins)
            if t == 5 and j % R == self.exitpos:
                sh.setdefault(3, []).append(f"s_sub_u32 {s(S_CNT)}, {s(S_CNT)}, 1")
                sh.setdefault(5, []).append(f"s_cmp_lg_u32 {s(S_CNT)}, 0")
            self.period(j, t, sched[t], sh, bp=(self.dma(t) if bpm and t < 4 else None))

    def lreduce(self, op="v_add_f32", regs=None):
        regs = regs or [L0 + t for t in range(6)]
        red = []
        for t in range(6): red.append(f"v_mov_b32 {v(NEGM+t)}, {v(regs[t])}")
        for t in range(6): red.append(f"v_permlane32_swap_b32 {v(regs[t])}, {v(NEGM+t)}")
        for t in range(6): red.append(f"{op} {v(regs[t])}, {v(regs[t])}, {v(NEGM+t)}")
        for t in range(6): red.append(f"v_mov_b32 {v(NEGM+t)}, {v(regs[t])}")
        for t in range(6): red.append(f"v_permlane16_swap_b32 {v(regs[t])}, {v(NEGM+t)}")
        for t in range(6): red.append(f"{op} {v(regs[t])}, {v(regs[t])}, {v(NEGM+t)}")
        return red

    def build(self):
        opt = self.opt
        e = self.e
        self.o.append(f"""; MHA forward (softmax(Q K^T / sqrt(D)) V), B=8 H=32 Sq=384 Sk=2048 D=128, bf16 in / bf16 out.
; @launch grid=(256,1,1) block=(256,1,1) lds={self.LDS}
;
.amdgcn_target "amdgcn-amd-amdhsa--gfx950"
.text
.globl {KN}
.p2align 8
.type {KN},@function
{KN}:""")
        e("s_load_dwordx4 s[32:35], s[0:1], 0")
        e("s_load_dwordx4 s[36:39], s[0:1], 16")
        e("s_cmpk_ge_u32 s2, 0x100")
        e("s_cbranch_scc1 L_end")
        self.stamp(0)
        for _ in range(opt.get("sleep0", 0)): e("s_sleep 32")
        QV = NEGM + 8
        X = QV + 3
        e(f"v_lshrrev_b32 {v(V_T1)}, 6, v0")
        e(f"v_bfe_u32 {v(V_T2)}, v0, 2, 2")
        e(f"v_bfe_u32 {v(V_T0)}, v0, 4, 2")
        e(f"v_readfirstlane_b32 {s(S_W)}, {v(V_T1)}")
        e(f"v_and_b32 {v(V_T3)}, 3, v0")
        e(f"v_lshlrev_b32 {v(X)}, 8, {v(V_T2)}")
        e(f"v_lshl_add_u32 {v(X)}, {v(V_T0)}, 6, {v(X)}")
        e(f"v_lshl_add_u32 {v(X)}, {v(V_T3)}, 4, {v(X)}")
        if opt.get("dmalin"):
            e(f"v_and_b32 {v(X)}, 63, v0"); e(f"v_lshlrev_b32 {v(X)}, 4, {v(X)}")
        e(f"s_lshl_b32 {s(S_T0)}, {s(S_W)}, {10 if opt.get('xdma') else 11}")
        e(f"s_mul_i32 {s(S_WOFF)}, {s(S_W)}, {QRT}")
        e(f"v_add_u32 {v(V_OFFB)}, {s(S_T0)}, {v(X)}")
        e(f"v_add_u32 {v(V_OFFA)}, 32, {v(V_OFFB)}")
        if opt.get('xdma'): e(f"v_add_u32 {v(V_OFFB)}, 3072, {v(V_OFFB)}")
        e(f"s_mul_i32 {s(S_T0)}, {s(S_W)}, {96 * 256}")
        e(f"v_add_u32 {v(QV+3)}, {s(S_T0)}, {v(X)}")
        e(f"v_add_u32 {v(QV+2)}, 32, {v(QV+3)}")
        e(f"v_add_u32 {v(QV+1)}, 32, {v(QV+2)}")
        e(f"v_add_u32 {v(QV)}, 32, {v(QV+1)}")
        e(f"s_mul_i32 {s(S_PRIV)}, {s(S_W)}, {PRIV}")
        e(f"s_add_u32 {s(S_PRIV)}, {s(S_PRIV)}, {R * SLOT}")
        if opt.get("remap", False):
            e(f"s_and_b32 {s(S_T0)}, s2, 7")
            e(f"s_lshl_b32 {s(S_T0)}, {s(S_T0)}, 5")
            e(f"s_lshr_b32 {s(S_T1)}, s2, 3")
            e(f"s_add_u32 s2, {s(S_T0)}, {s(S_T1)}")
        e(f"s_mul_i32 {s(S_T0)}, s2, 98304")
        e(f"s_lshl_b32 {s(S_T1)}, s2, 19")
        e(f"s_mov_b32 {s(S_KSRD+3)}, 0x20000")
        e(f"s_mov_b32 {s(S_KSRD+2)}, {524288 + 32}")
        e(f"s_mov_b32 {s(S_QSRD+3)}, {s(S_KSRD+3)}")
        e(f"s_mov_b32 {s(S_QSRD+2)}, {s(S_KSRD+2)}")
        e(f"s_mov_b32 {s(S_VSRD+3)}, {s(S_KSRD+3)}")
        e(f"s_mov_b32 {s(S_VSRD+2)}, {s(S_KSRD+2)}")
        e(f"s_mov_b32 {s(S_TOFF)}, 0")
        e(f"s_mov_b32 m0, {s(S_WOFF)}")
        e("s_waitcnt lgkmcnt(0)")
        if opt.get("fine"): self.stamp(1)
        e(f"s_add_u32 {s(S_KSRD)}, s34, {s(S_T1)}")
        e(f"s_addc_u32 {s(S_KSRD+1)}, s35, 0")
        e(f"s_sub_u32 {s(S_KSRD)}, {s(S_KSRD)}, 32")
        e(f"s_subb_u32 {s(S_KSRD+1)}, {s(S_KSRD+1)}, 0")
        vm = []
        e(self.dma(0)); e(self.dma(1)); vm += ["K0", "K0"]
        if opt.get("fine"): self.stamp(3)
        e(f"s_add_u32 {s(S_QSRD)}, s32, {s(S_T0)}")
        e(f"s_addc_u32 {s(S_QSRD+1)}, s33, 0")
        e(f"s_sub_u32 {s(S_QSRD)}, {s(S_QSRD)}, 96")
        e(f"s_subb_u32 {s(S_QSRD+1)}, {s(S_QSRD+1)}, 0")
        QPLACE = {0: ('p', 0), 1: ('p', STG), 2: ('r', 2 * SLOT), 3: ('r', 3 * SLOT), 4: ('p', 0), 5: ('p', STG)}
        def qload(t, pad=None):
            kind, off_ = QPLACE[t]
            base = s(S_PRIV if kind == 'p' else S_WOFF)
            e(f"s_add_u32 m0, {base}, {off_}" if off_ else f"s_mov_b32 m0, {base}")
            if t == 0: e(pad or "s_nop 0")
            else: e(f"s_movk_i32 {s(S_T3)}, {t * 4096}")
            for b in range(4):
                off = f" offset:{b * BLK}" if b else ""
                e(f"buffer_load_dwordx4 {v(QV+b)}, {s(S_QSRD,4)}, {s(S_TOFF if t == 0 else S_T3)} offen{off}{self.qfl} lds")
                vm.append(f"Q{t}")
        qload(0, pad=f"s_add_u32 {s(S_VSRD)}, s36, {s(S_T1)}")
        if opt.get("fine"): self.stamp(4)
        e(f"s_addc_u32 {s(S_VSRD+1)}, s37, 0")
        e(f"s_sub_u32 {s(S_VSRD)}, {s(S_VSRD)}, 2144")
        e(f"s_mov_b32 m0, {s(S_WOFF)}")
        e(f"s_subb_u32 {s(S_VSRD+1)}, {s(S_VSRD+1)}, 0")
        e(self.dma(2)); e(self.dma(3)); vm += ["V0", "V0"]
        if opt.get("fine"): self.stamp(5)
        if opt.get("hd", "2") == "2":
            e(f"s_add_u32 m0, {s(S_WOFF)}, {SLOT}")
            e(f"s_movk_i32 {s(S_TOFF)}, 0x2000")
            for i in range(4): e(self.dma(i))
            vm += ["K1", "K1", "V1", "V1"]
        else:
            qload(1)
        self.stamp(2, 0)
        if opt.get("stamp") and not opt.get("fine"): self.stamp(1)
        e(f"s_mov_b32 {s(S_QSRD+2)}, {98304 + 96}")
        e(f"s_mov_b32 {s(S_VSRD+2)}, {524288 + 2144}")
        e(f"s_mov_b32 {s(S_OSRD+2)}, 98304")
        e(f"s_mov_b32 {s(S_OSRD+3)}, {s(S_KSRD+3)}")
        e(f"s_add_u32 {s(S_OSRD)}, s38, {s(S_T0)}")
        e(f"s_addc_u32 {s(S_OSRD+1)}, s39, 0")
        e(f"v_and_b32 {v(V_LANE)}, 63, v0")
        def dma_half(tile, kv):
            e(f"s_mov_b32 {s(S_TOFF)}, {tile * 8192}")
            e(self.m0set(tile % R))
            e("s_nop 0")
            for i in ((0, 1) if kv == 'K' else (2, 3)): e(self.dma(i))
            vm.extend([f"{kv}{tile}"] * 2)
        def wait_for(lbl):
            last = max(i for i, x in enumerate(vm) if x == lbl)
            e(f"s_waitcnt vmcnt({len(vm) - 1 - last})")
        TMPC = NEGM
        QA = NEGM + 12
        two = opt.get("hd", "2") == "2"
        def qread(t):
            land = (O(5, 0) + (16 if t == 5 else 0)) if two else O(t, 0)
            wait_for(f"Q{t}")
            if not opt.get("fs"): self.stamp(3 + t)
            for ks in range(4):
                kind, off_ = QPLACE[t]
                e(f"ds_read_b128 {v(land + 4 * ks, 4)}, {v(QA if kind == 'p' else QA + 2)} offset:{off_ + 256 * ks}")
        def qcvt(t, after_read=None):
            land = (O(5, 0) + (16 if t == 5 else 0)) if two else O(t, 0)
            if two and t == 5:
                for i in range(16): e(f"v_mov_b32 {v(O(5, 0) + i)}, 0")
            e("s_waitcnt lgkmcnt(0)")
            if after_read: after_read()
            for i in range(16):
                x = land + i
                lo = TMPC + 2 * (i % 4); hi = lo + 1
                e(f"v_lshlrev_b32 {v(lo)}, 16, {v(x)}")
                e(f"v_and_b32 {v(hi)}, {s(S_T2)}, {v(x)}")
                e(f"v_pk_mul_f32 {v(lo,2)}, {v(lo,2)}, {v(V_T0,2)}")
                e(f"v_cvt_pk_bf16_f32 {v(lo)}, {v(lo)}, {v(hi)}")
                e(f"v_accvgpr_write_b32 {a(AQ(t,0)+i)}, {v(lo)}")
                if not two or t == 5: e(f"v_mov_b32 {v(x)}, 0")
        def qconv(t, after_read=None):
            qread(t); qcvt(t, after_read)
        e(f"v_lshrrev_b32 {v(V_KADDR)}, 1, {v(V_T2)}")
        e(f"v_mul_u32_u24 {v(V_KADDR)}, {QRT}, {v(V_KADDR)}")
        e(f"v_and_b32 {v(V_VADDR)}, 1, {v(V_T2)}")
        e(f"v_mul_u32_u24 {v(V_VADDR)}, {BLK}, {v(V_VADDR)}")
        e(f"v_add_u32 {v(V_KADDR)}, {v(V_KADDR)}, {v(V_VADDR)}")
        e(f"v_lshl_add_u32 {v(V_KADDR)}, {v(V_T3)}, 6, {v(V_KADDR)}")
        e(f"v_lshl_add_u32 {v(V_KADDR)}, {v(V_T0)}, 4, {v(V_KADDR)}")
        e(f"v_mul_u32_u24 {v(QA)}, {BLK}, {v(V_T2)}")
        e(f"v_lshl_add_u32 {v(QA)}, {v(V_T3)}, 6, {v(QA)}")
        e(f"v_lshl_add_u32 {v(QA)}, {v(V_T0)}, 4, {v(QA)}")
        e(f"v_add_u32 {v(QA+2)}, {s(S_WOFF)}, {v(QA)}")
        e(f"v_add_u32 {v(QA)}, {s(S_PRIV)}, {v(QA)}")
        e(f"v_lshrrev_b32 {v(V_VADDR)}, 1, {v(V_T0)}")
        e(f"v_mul_u32_u24 {v(V_VADDR)}, {QRT}, {v(V_VADDR)}")
        e(f"v_and_b32 {v(V_T1)}, 1, {v(V_T0)}")
        e(f"v_mul_u32_u24 {v(NEGM+13)}, {BLK}, {v(V_T1)}")
        e(f"v_add_u32 {v(V_VADDR)}, {v(V_VADDR)}, {v(NEGM+13)}")
        e(f"v_lshl_add_u32 {v(V_VADDR)}, {v(V_T2)}, 6, {v(V_VADDR)}")
        e(f"v_lshl_add_u32 {v(V_VADDR)}, {v(V_T3)}, 3, {v(V_VADDR)}")
        e(f"v_add_u32 {v(V_VADDR)}, {2 * BLK}, {v(V_VADDR)}")
        for i in range(6): e(f"v_mov_b32 {v(L0+i)}, 0")
        if opt.get("hd", "2") != "2":
            for i in range(4): e(f"v_mov_b32 {v(PB[1]+i)}, 0")
            for i in range(32): e(f"v_accvgpr_write_b32 {a(AV(1,0)+i)}, 0")
        if opt.get("hd", "2") == "2":
            for i in range(160): e(f"v_mov_b32 {v(i)}, 0")
        else:
            for t in range(6):
                for i in range(16, 32): e(f"v_mov_b32 {v(O(t,0)+i)}, 0")
        self.epi_addr()
        if opt.get("bp", False):
            for i in range(8): e(f"v_mov_b32 {v(NEGM+16+i)}, 0")
        e(f"s_mov_b32 {s(S_T1)}, 0x3e0293ee")
        e(f"v_mov_b32 {v(V_T0)}, {s(S_T1)}")
        e(f"v_mov_b32 {v(V_T1)}, {s(S_T1)}")
        e(f"s_mov_b32 {s(S_T2)}, 0xffff0000")
        hd = opt.get("hd", "2")
        if hd == "2":
            Kf = lambda tile: [self.kread(tile & 1, tile % R, kt, ks) for kt in range(2) for ks in range(4)]
            Vf = lambda tile: [self.vread(tile & 1, tile % R, dt, hh) for dt in range(8) for hh in range(2)]
            def tile_dma(tile): dma_half(tile, 'K'); dma_half(tile, 'V')
            qload(1)
            qconv(0, lambda: qload(2))
            wait_for("V1")
            e("s_barrier")
            for x in Kf(0) + Kf(1): e(x)
            e("s_waitcnt lgkmcnt(8)")
            V0r = Vf(0)
            for kt in range(2):
                for ks in range(4):
                    e(self.qk(0, 0, kt, ks, sb=0))
                    for x in V0r[8 * kt + 2 * ks: 8 * kt + 2 * ks + 2]: e(x)
            e("s_waitcnt lgkmcnt(15)")
            qload(3)
            K2 = Kf(2)
            for n in range(12):
                nq = n + 1
                lds = []; extras = []; sh = {}
                if n % 2 == 0 and n // 2 + 1 <= 5 and n > 0: qread(n // 2 + 1)
                if nq < 12 and nq % 2 == 0:
                    tq = nq >> 1
                    if tq == 1: qread(1)
                    qcvt(tq)
                    e("s_nop 1")
                    if tq == 1: extras = self.capture(lambda: qload(4))
                    if tq == 2: extras = self.capture(lambda: qload(5))
                    if tq == 3: extras = self.capture(lambda: tile_dma(2))
                    if tq == 4: extras = self.capture(lambda: tile_dma(3))
                if n == 0: extras = Vf(1)
                if n == 9:
                    wait_for("K2")
                    e("s_barrier")
                    if not opt.get("fs"): self.stamp(9)
                    lds = [None, None, K2[0], K2[1]]
                if n == 10:
                    lds = K2[2:6]
                    sh = {1: [K2[6]], 3: [K2[7]]}
                    extras = self.capture(lambda: tile_dma(4))
                if n == 11:
                    wait_for("V2")
                    e("s_waitcnt lgkmcnt(0)")
                    e("s_barrier")
                    V2 = Vf(2)
                    for dt in range(7): sh[9 + dt] = V2[2 * dt: 2 * dt + 2]
                qkb = (nq & 1, nq >> 1, nq & 1) if nq < 12 else (0, 0, 0)
                pvb = ((n - 1) & 1, (n - 1) >> 1, (n - 1) & 1) if n >= 1 else None
                self.period_x(qkb, (n >> 1, n & 1), pvb, lds, sh, extras)
            for x in Vf(2)[14:16]: e(x)
            e(f"s_mov_b32 {s(S_TOFF)}, {5 * 8192}")
            self.stamp(10, 1)
            e(f"s_mov_b32 {s(S_CNT)}, {30 if opt.get('xu2') else (15 if self.tail2 else 16)}")
            if not (opt.get("rot", True) and self.tail2 and not opt.get("xu2")): e("s_branch L_it2")
        else:
            fs = opt.get("fs")
            def fstamp(i):
                if fs and not (opt.get("fine") and i in (3, 4, 5)): self.stamp(i)
            qload(2)
            fstamp(3)
            if hd == "d":
                qconv(0, lambda: (fstamp(4), qload(3), fstamp(5)))
                fstamp(6)
            else:
                qconv(0, lambda: qload(3))
                qload(4)
            wait_for("V0")
            fstamp(7)
            e("s_barrier")
            fstamp(8)
            for kt in range(2):
                for ks in range(4): e(self.kread(0, 0, kt, ks))
            for dt in range(8):
                for hh in range(2): e(self.vread(0, 0, dt, hh))
            if hd != "d":
                qload(5)
                dma_half(1, 'K'); dma_half(1, 'V')
            e("s_waitcnt lgkmcnt(15)")
            for kt in range(2):
                for ks in range(4): e(self.qk(0, 0, kt, ks))
            fstamp(9)
            K1 = [self.kread(1, 1 % R, kt, ks) for kt in range(2) for ks in range(4)]
            V1 = [self.vread(1, 1 % R, dt, hh) for dt in range(8) for hh in range(2)]
            for t in range(6):
                if t + 1 <= 5:
                    def after(t=t):
                        if hd == "d":
                            if t == 0: qload(4)
                            if t == 1: qload(5)
                            if t == 2: dma_half(1, 'K'); dma_half(1, 'V')
                            if t == 3: dma_half(2, 'K'); dma_half(2, 'V')
                        else:
                            if t == 2: dma_half(2, 'K'); dma_half(2, 'V')
                            if t == 3: dma_half(3, 'K'); dma_half(3, 'V')
                    qconv(t + 1, after)
                    e("s_nop 1")
                if t == 0: e("s_waitcnt lgkmcnt(0)")
                if t == 5:
                    wait_for("K1")
                    e("s_barrier")
                    if not opt.get("fs"): self.stamp(9)
                    for x in K1: e(x)
                    e("s_waitcnt lgkmcnt(0)")
                self.period(0, t, [], {}, do_pv=True)
            wait_for("V1")
            e("s_barrier")
            for x in V1: e(x)
            if hd == "d":
                dma_half(3, 'K'); dma_half(3, 'V')
            e(f"s_mov_b32 {s(S_TOFF)}, {(self.D + 1) * 8192}")
            self.stamp(10, 1)
            e(f"s_mov_b32 {s(S_CNT)}, {NT // R}")
            e("s_branch L_it1")
        rot = opt.get("rot", True) and opt.get("hd", "2") == "2" and self.tail2 and not opt.get("xu2")
        e(".p2align 6")
        self.lab("L_loop")
        self.inloop = True
        if rot:
            for j in (2, 3, 0, 1): self.iteration(j)
            e("s_cbranch_scc1 L_loop")
        else:
            if opt.get("xu2"):
                self.lab("L_it1")
                self.iteration(1)
                e("s_cbranch_scc0 L_last")
                self.lab("L_it2")
                self.iteration(2)
                e(f"v_add_u32 {v(V_KADDR)}, 0, {v(V_KADDR)}")
                e(f"v_add_u32 {v(V_VADDR)}, 0, {v(V_VADDR)}")
            for j in (range(R) if not opt.get("xu2") else []):
                if j == 1: self.lab("L_it1")
                if j == 2: self.lab("L_it2")
                self.iteration(j)
                if self.peel and j == self.exitpos: e("s_cbranch_scc0 L_last")
            if self.peel: e("s_branch L_loop")
            else: e("s_cbranch_scc1 L_loop")
        self.inloop = False
        if self.peel:
            self.lab("L_last")
            self.stamp(11, 2)
            self.last_iteration()
        else:
            self.stamp(11, 2)
            red = self.lreduce()
            e("s_nop 1")
            for dt in range(8):
                e(self.pv(63 & 1, 5, dt))
                for x in red[2*dt:2*dt+2]: e(x)
            for x in red[16:]: e(x)
            self.check()
            self.lab("L_norm")
            for t in range(6): e(f"v_rcp_f32 {v(L0+t)}, {v(L0+t)}")
            self.stamp(12, 3)
            self.epilogue()
        self.stamp(13, 4)
        if opt.get("stamp") and opt.get("dbg") is None:
            e("s_waitcnt vmcnt(0)")
            self.stamp(14, 5)
            e(f"s_load_dwordx2 {s(S_WS,2)}, s[0:1], 40")
            e("s_waitcnt lgkmcnt(0)")
            e(f"s_mov_b32 {s(S_WS+2)}, 0x20000000")
            e(f"s_mov_b32 {s(S_WS+3)}, 0x20000")
            e(f"v_mov_b32 {v(V_T0)}, 0")
            for i in range(16): e(f"v_writelane_b32 {v(V_T0)}, {s(S_RST + 2*i)}, {i}")
            for i in range(8): e(f"v_writelane_b32 {v(V_T0)}, {s(S_CST + 2*i)}, {16+i}")
            e(f"s_lshl_b32 {s(S_T0)}, s2, 2")
            e(f"s_add_u32 {s(S_T0)}, {s(S_T0)}, {s(S_W)}")
            e(f"s_lshl_b32 {s(S_T0)}, {s(S_T0)}, 8")
            e(f"v_lshlrev_b32 {v(V_T1)}, 2, {v(V_LANE)}")
            e(f"buffer_store_dword {v(V_T0)}, {v(V_T1)}, {s(S_WS,4)}, {s(S_T0)} offen")
        if opt.get("dbg") is not None:
            e("s_waitcnt vmcnt(0)")
            self.stamp(14, 5)
            e(f"s_load_dwordx2 {s(S_WS,2)}, s[0:1], 32")
            e("s_waitcnt lgkmcnt(0)")
            e(f"s_cmp_lg_u32 s2, {opt['dbg']}")
            e("s_cbranch_scc1 L_end")
            e(f"s_cmp_lg_u32 {s(S_W)}, 0")
            e("s_cbranch_scc1 L_end")
            e(f"s_mov_b32 {s(S_WS+2)}, 256")
            e(f"s_mov_b32 {s(S_WS+3)}, 0x20000")
            e(f"v_mov_b32 {v(V_T0)}, 0")
            for i in range(1, 15):
                e(f"s_sub_u32 {s(S_T0)}, {s(S_RST + 2*i)}, {s(S_RST)}")
                e(f"v_writelane_b32 {v(V_T0)}, {s(S_T0)}, {i - 1}")
            e(f"s_sub_u32 {s(S_T0)}, {s(S_CST + 4)}, {s(S_CST + 2)}")
            e(f"v_writelane_b32 {v(V_T0)}, {s(S_T0)}, 14")
            e(f"s_sub_u32 {s(S_T0)}, {s(S_CST + 10)}, {s(S_CST)}")
            e(f"v_writelane_b32 {v(V_T0)}, {s(S_T0)}, 15")
            e(f"v_lshlrev_b32 {v(V_T1)}, 2, {v(V_LANE)}")
            e(f"buffer_store_dword {v(V_T0)}, {v(V_T1)}, {s(S_WS,4)}, 0 offen")
        for _ in range(opt.get("sleep1", 0)): e("s_sleep 32")
        self.lab("L_end")
        e("s_endpgm")
        if not opt.get("nocheck"): self.fallback()
        self.o.append(f""".section .rodata,"a"
.p2align 6
.amdhsa_kernel {KN}
  .amdhsa_next_free_vgpr 512
  .amdhsa_next_free_sgpr 102
  .amdhsa_accum_offset 256
  .amdhsa_group_segment_fixed_size 0
  .amdhsa_kernarg_size 48
  .amdhsa_user_sgpr_count 2
  .amdhsa_user_sgpr_kernarg_segment_ptr 1
  .amdhsa_system_sgpr_workgroup_id_x 1
.end_amdhsa_kernel""")
        return "\n".join(self.o) + "\n"

    def check(self):
        if self.opt.get("nocheck"): return
        e = self.e
        e(f"v_max3_f32 {v(NEGM)}, {v(L0)}, {v(L0+1)}, {v(L0+2)}")
        e(f"v_min3_f32 {v(NEGM+1)}, {v(L0)}, {v(L0+1)}, {v(L0+2)}")
        e(f"v_max3_f32 {v(NEGM)}, {v(NEGM)}, {v(L0+3)}, {v(L0+4)}")
        e(f"v_min3_f32 {v(NEGM+1)}, {v(NEGM+1)}, {v(L0+3)}, {v(L0+4)}")
        e(f"v_max_f32 {v(NEGM)}, {v(NEGM)}, {v(L0+5)}")
        e(f"v_min_f32 {v(NEGM+1)}, {v(NEGM+1)}, {v(L0+5)}")
        e(f"s_mov_b32 {s(S_T1)}, 0x53800000")
        e(f"s_mov_b32 {s(S_T3)}, 0x37800000")
        e(f"v_cmp_ge_f32 vcc, {s(S_T1)}, {v(NEGM)}")
        e(f"v_cmp_le_f32 {s(S_CMP,2)}, {s(S_T3)}, {v(NEGM+1)}")
        e(f"s_and_b64 vcc, vcc, {s(S_CMP,2)}")
        e("s_cmp_eq_u64 vcc, -1")
        e("s_cbranch_scc0 L_fallback")

    def epi_addr(self):
        e = self.e
        WA, RA, GA = V_T2, V_T3, V_OST
        e(f"v_and_b32 {v(NEGM+16)}, 15, {v(V_LANE)}")
        e(f"v_lshrrev_b32 {v(NEGM+17)}, 4, {v(V_LANE)}")
        e(f"v_mul_u32_u24 {v(WA)}, 272, {v(NEGM+16)}")
        e(f"v_lshl_add_u32 {v(WA)}, {v(NEGM+17)}, 3, {v(WA)}")
        e(f"v_add_u32 {v(WA)}, {s(S_PRIV)}, {v(WA)}")
        e(f"v_mul_u32_u24 {v(RA)}, 272, {v(NEGM+17)}")
        e(f"v_lshl_add_u32 {v(RA)}, {v(NEGM+16)}, 4, {v(RA)}")
        e(f"v_add_u32 {v(RA)}, {s(S_PRIV)}, {v(RA)}")
        e(f"s_mul_i32 {s(S_T1)}, {s(S_W)}, {96 * 256}")
        e(f"v_lshlrev_b32 {v(GA)}, 4, {v(V_LANE)}")
        e(f"v_add_u32 {v(GA)}, {s(S_T1)}, {v(GA)}")

    def last_iteration(self):
        e = self.e; opt = self.opt
        WA, RA, GA = V_T2, V_T3, V_OST
        RC = NEGM + 8
        def lred(t):
            L, T = L0 + t, NEGM + t
            fold = [f"v_add_f32 {v(L)}, {v(L)}, {v(NEGM+16+2*t)}", f"v_add_f32 {v(L)}, {v(L)}, {v(NEGM+17+2*t)}"] if opt.get("bp", False) and t < 4 else []
            return fold + [f"v_mov_b32 {v(T)}, {v(L)}", "s_nop 1", f"v_permlane32_swap_b32 {v(L)}, {v(T)}", "s_nop 0", f"v_add_f32 {v(L)}, {v(L)}, {v(T)}",
                    f"v_mov_b32 {v(T)}, {v(L)}", "s_nop 1", f"v_permlane16_swap_b32 {v(L)}, {v(T)}", "s_nop 0", f"v_add_f32 {v(L)}, {v(L)}, {v(T)}",
                    f"v_rcp_f32 {v(RC+t)}, {v(L)}", "s_nop 0"]
        def norm(t, pk=False):
            x = []
            if pk:
                x += [f"v_mov_b32 {v(V_T0)}, {v(RC+t)}", f"v_mov_b32 {v(V_T1)}, {v(RC+t)}"]
            for dt in range(8):
                o = O(t, dt)
                if pk:
                    x += [f"v_pk_mul_f32 {v(o,2)}, {v(o,2)}, {v(V_T0,2)}", f"v_pk_mul_f32 {v(o+2,2)}, {v(o+2,2)}, {v(V_T0,2)}"]
                else:
                    x += [f"v_mul_f32 {v(o+r)}, {v(o+r)}, {v(RC+t)}" for r in range(4)]
                x += [f"v_cvt_pk_bf16_f32 {v(o)}, {v(o)}, {v(o+1)}", f"v_cvt_pk_bf16_f32 {v(o+1)}, {v(o+2)}, {v(o+3)}",
                      f"ds_write_b64 {v(WA)}, {v(o,2)} offset:{(t & 1) * STG + 32 * dt}"]
            x += [f"ds_read_b128 {v(O(t, 0) + 4 * k, 4)}, {v(RA)} offset:{(t & 1) * STG + k * 4 * 272}" for k in range(4)]
            return x
        def stores(t):
            if opt.get("nostore"): return []
            return [f"buffer_store_dwordx4 {v(O(t, 0) + 4 * k, 4)}, {v(GA)}, {s(S_OSRD,4)}, {s(S_T0)} offen offset:{1024 * k}{self.stfl}" for k in range(4)]
        def pre(t, n=0): return [f"s_waitcnt lgkmcnt({n})", f"s_mov_b32 {s(S_T0)}, {t * 4096}"]
        def weave(main, sts):
            out = []; n = len(main); k = len(sts)
            marks = {(i * n) // k + 1: i for i in range(k)} if k else {}
            for i, x in enumerate(main):
                if i in marks: out.append(sts[marks[i]])
                out.append(x)
            return out
        pk = opt.get("epipk", False)
        def weave2(main, sts):
            if not main: return list(sts)
            return weave(main, sts)
        if self.tail2:
            self.c("---- last two tiles, q-tile major")
            b = [(0, 62), (1, 62), (0, 63), (1, 63), (2, 62), (2, 63), (3, 62), (3, 63), (4, 62), (4, 63), (5, 62), (5, 63)]
            K63 = [self.kread(1, 63 % R, kt, ks) for kt in range(2) for ks in range(4)]
            V63 = [self.vread(1, 63 % R, dt, hh) for dt in range(8) for hh in range(2)]
            exs = {3: lambda: lred(0), 4: lambda: lred(1) + norm(0, pk),
                   5: lambda: pre(0) + weave2(norm(1, pk), stores(0)), 6: lambda: pre(1) + weave2(lred(2), stores(1)),
                   7: lambda: norm(2, pk), 8: lambda: pre(2) + weave2(lred(3), stores(2)),
                   9: lambda: norm(3, pk), 10: lambda: pre(3) + weave2(lred(4), stores(3)), 11: lambda: norm(4, pk)}
            for n in range(12):
                sh = {}; lds = []
                if n == 0:
                    sh[0] = [f"s_waitcnt vmcnt({4 * (self.D - 2)})", "s_barrier"]
                    lds = K63[0:4]
                    for i, g in enumerate((1, 3, 5, 7)): sh[g] = [K63[4 + i]]
                if n == 1:
                    sh[0] = []
                    e("s_waitcnt lgkmcnt(0)")
                if n in (1, 2):
                    o = 8 * (n - 1)
                    lds = V63[o:o + 4]
                    for i, g in enumerate((1, 3, 5, 7)): sh[g] = [V63[o + 4 + i]]
                if n == 3: sh[0] = ["s_waitcnt lgkmcnt(0)"]
                qkb = (b[n + 1][1] & 1, b[n + 1][0], (n + 1) & 1) if n < 11 else None
                pvb = (b[n - 1][1] & 1, b[n - 1][0], (n - 1) & 1) if n >= 1 else (1, 5, 1)
                self.period_x(qkb, (b[n][0], n & 1), pvb, lds, sh, exs[n]() if n in exs else None)
            ex = pre(4) + weave2(lred(5), stores(4))
            e("s_nop 1")
            n = len(ex)
            for dt in range(8):
                e(self.pv(1, 5, dt, pb=1))
                for x in ex[dt * n // 8:(dt + 1) * n // 8]: e(x)
            self.stamp(12, 3)
            for x in norm(5, pk=True): e(x)
            for x in pre(5) + stores(5): e(x)
            self.check()
            return
        self.c("---- last tile")
        for t in range(6):
            sh = {}
            if t == 1: sh[0] = ["s_waitcnt lgkmcnt(0)"]
            ex = []
            if t >= 1: ex += lred(t - 1)
            if t >= 2: ex += norm(t - 2, pk)
            if t >= 3: ex = pre(t - 3) + weave(ex, stores(t - 3))
            self.period(63, t, [], sh, do_qk=(t < 5), extras=ex)
        ex = pre(3) + weave(lred(5) + norm(4, pk), stores(3))
        e("s_nop 1")
        n = len(ex)
        for dt in range(8):
            e(self.pv(63 & 1, 5, dt))
            for x in ex[dt * n // 8:(dt + 1) * n // 8]: e(x)
        self.check()
        self.stamp(12, 3)
        nx = norm(5, pk=True)
        for x in pre(4) + weave(nx[:-4], stores(4)) + nx[-4:]: e(x)
        for x in pre(5) + stores(5): e(x)

    def epilogue(self):
        e = self.e; opt = self.opt
        WA, RA, GA = V_T2, V_T3, V_OST
        PK = [SB[0], NEGM]
        RD = [160 - 160 + 0, 0]
        e(f"s_mul_i32 {s(S_T1)}, {s(S_W)}, {PRIV}")
        e(f"s_add_u32 {s(S_T1)}, {s(S_T1)}, {R * SLOT}")
        e(f"v_and_b32 {v(V_T0)}, 15, {v(V_LANE)}")
        e(f"v_lshrrev_b32 {v(V_T1)}, 4, {v(V_LANE)}")
        e(f"v_mul_u32_u24 {v(WA)}, 272, {v(V_T0)}")
        e(f"v_lshl_add_u32 {v(WA)}, {v(V_T1)}, 3, {v(WA)}")
        e(f"v_add_u32 {v(WA)}, {s(S_T1)}, {v(WA)}")
        e(f"v_mul_u32_u24 {v(RA)}, 272, {v(V_T1)}")
        e(f"v_lshl_add_u32 {v(RA)}, {v(V_T0)}, 4, {v(RA)}")
        e(f"v_add_u32 {v(RA)}, {s(S_T1)}, {v(RA)}")
        e(f"s_mul_i32 {s(S_T1)}, {s(S_W)}, {96 * 256}")
        e(f"v_lshlrev_b32 {v(GA)}, 4, {v(V_LANE)}")
        e(f"v_add_u32 {v(GA)}, {s(S_T1)}, {v(GA)}")
        def pack(t):
            L = L0 + t
            e(f"v_mov_b32 {v(V_T0)}, {v(L)}")
            e(f"v_mov_b32 {v(V_T1)}, {v(L)}")
            for dt in range(8):
                o = O(t, dt)
                e(f"v_pk_mul_f32 {v(o,2)}, {v(o,2)}, {v(V_T0,2)}")
                e(f"v_pk_mul_f32 {v(o+2,2)}, {v(o+2,2)}, {v(V_T0,2)}")
            for dt in range(8):
                o = O(t, dt)
                e(f"v_cvt_pk_bf16_f32 {v(o)}, {v(o)}, {v(o+1)}")
                e(f"v_cvt_pk_bf16_f32 {v(o+1)}, {v(o+2)}, {v(o+3)}")
                e(f"ds_write_b64 {v(WA)}, {v(o,2)} offset:{(t & 1) * STG + 32 * dt}")
        def unload(t):
            for k in range(4):
                e(f"ds_read_b128 {v(O(t, 0) + 4 * k, 4)}, {v(RA)} offset:{(t & 1) * STG + k * 4 * 272}")
        def store(t):
            e(f"s_mov_b32 {s(S_T0)}, {t * 4096}")
            for k in range(4):
                if not opt.get("nostore"):
                    e(f"buffer_store_dwordx4 {v(O(t, 0) + 4 * k, 4)}, {v(GA)}, {s(S_OSRD,4)}, {s(S_T0)} offen offset:{1024 * k}{self.stfl}")
        pack(0); unload(0)
        for t in range(1, 6):
            pack(t)
            e("s_waitcnt lgkmcnt(8)")
            store(t - 1)
            unload(t)
        e("s_waitcnt lgkmcnt(0)")
        store(5)

    def fallback(self):
        e = self.e
        FA, FB, FK, FV = V_T0, V_T1, V_T2, V_T3
        MX = L0
        self.lab("L_fallback")
        e("s_waitcnt vmcnt(0) lgkmcnt(0)")
        e("s_barrier")
        e(f"s_lshl_b32 {s(S_T0)}, {s(S_W)}, 11")
        e(f"v_subrev_u32 {v(FA)}, {s(S_T0)}, {v(V_OFFA)}")
        e(f"v_subrev_u32 {v(FB)}, {s(S_T0)}, {v(V_OFFB)}")
        e(f"s_mul_i32 {s(S_WOFF)}, {s(S_W)}, {SLOT}")
        e(f"v_add_u32 {v(FK)}, {s(S_WOFF)}, {v(V_KADDR)}")
        e(f"v_add_u32 {v(FV)}, {s(S_WOFF)}, {v(V_VADDR)}")
        def load_tile(with_v):
            for q in range(4):
                e(f"s_add_u32 m0, {s(S_WOFF)}, {q * QRT}")
                e(f"s_add_u32 {s(S_TOFF)}, {s(S_T1)}, {q * 2048}")
                for i in range(4 if with_v else 2): e(self.dma(i, FA, FB))
            e("s_waitcnt vmcnt(0)")
            for kt in range(2):
                for ks in range(4): e(self.kread(0, 0, kt, ks, FK))
            if with_v:
                for dt in range(8):
                    for hh in range(2): e(self.vread(0, 0, dt, hh, FV))
            e("s_waitcnt lgkmcnt(0)")
        for t in range(6): e(f"v_mov_b32 {v(MX+t)}, 0xff800000")
        e(f"s_mov_b32 {s(S_T1)}, 0")
        self.lab("L_fb1")
        load_tile(False)
        for t in range(6):
            for kt in range(2):
                for ks in range(4): e(self.qk(0, t, kt, ks))
            e("s_nop 7")
            e("s_nop 1")
            S = SB[t & 1]
            for i in range(0, 8, 2): e(f"v_max3_f32 {v(MX+t)}, {v(MX+t)}, {v(S+i)}, {v(S+i+1)}")
        e(f"s_add_u32 {s(S_T1)}, {s(S_T1)}, 8192")
        e(f"s_cmp_lt_u32 {s(S_T1)}, {NT * 8192}")
        e("s_cbranch_scc1 L_fb1")
        for x in self.lreduce("v_max_f32"):
            e(x); e("s_nop 1")
        for t in range(6):
            for r in range(4): e(f"v_sub_f32 {v(NEGM + 4*t + r)}, 0, {v(MX+t)}")
        for t in range(6): e(f"v_mov_b32 {v(L0+t)}, 0")
        for i in range(192): e(f"v_mov_b32 {v(i)}, 0")
        e(f"s_mov_b32 {s(S_T1)}, 0")
        self.lab("L_fb2")
        load_tile(True)
        for t in range(6):
            for kt in range(2):
                for ks in range(4): e(self.qk(0, t, kt, ks, v(NEGM + 4*t, 4)))
            e("s_nop 7")
            e("s_nop 1")
            S = SB[t & 1]; P = PB[t & 1]
            for i in range(8): e(f"v_exp_f32 {v(S+i)}, {v(S+i)}")
            e("s_nop 0")
            for i in range(8): e(f"v_add_f32 {v(L0+t)}, {v(L0+t)}, {v(S+i)}")
            for i in range(4): e(f"v_cvt_pk_bf16_f32 {v(P+i)}, {v(S+2*i)}, {v(S+2*i+1)}")
            e("s_nop 1")
            for dt in range(8): e(self.pv(0, t, dt))
        e(f"s_add_u32 {s(S_T1)}, {s(S_T1)}, 8192")
        e(f"s_cmp_lt_u32 {s(S_T1)}, {NT * 8192}")
        e("s_cbranch_scc1 L_fb2")
        for x in self.lreduce():
            e(x); e("s_nop 1")
        e("s_nop 7")
        if self.peel:
            for t in range(6): e(f"v_rcp_f32 {v(L0+t)}, {v(L0+t)}")
            self.epilogue()
            e("s_endpgm")
        else:
            e("s_branch L_norm")

if __name__ == "__main__":
    opt = {}
    out = sys.argv[1]
    for x in sys.argv[2:]:
        k, _, val = x.partition("=")
        opt[k] = eval(val) if val else True
    open(out, "w").write(Gen(opt).build())
```

```python
import sys

KN = "standalone__mha_softmax__near_ridge_kernel"
M16 = "v_mfma_f32_16x16x32_bf16"
NT = 64
BLK = 1056
QRT = 4 * BLK
SLOT = 4 * QRT
R = 4
STG = 16 * 272
QBUF = 4 * BLK
PRIV = 2 * STG

def O(t, dt): return 32 * t + 4 * dt
SB = [192, 200]
PB = [208, 212]
L0 = 216
V_KADDR, V_VADDR, V_OFFA, V_OFFB = 222, 223, 224, 225
V_LANE, V_OST, V_T0, V_T1, V_T2, V_T3 = 226, 227, 228, 229, 230, 231
NEGM = 232
def AQ(t, ks): return 16 * t + 4 * ks
def AK(p, kt, ks): return 96 + 32 * p + 16 * kt + 4 * ks
def AV(p, dt): return 160 + 32 * p + 4 * dt

S_QSRD, S_KSRD, S_VSRD, S_OSRD = 4, 8, 12, 16
S_W, S_WOFF, S_TOFF, S_CNT, S_T0, S_T1, S_T2, S_T3 = 20, 21, 22, 23, 24, 25, 26, 27
S_WS = 28
S_PRIV = 88
S_CMP = 90
S_RST = 40
S_CST = 72

def v(a, n=1): return f"v{a}" if n == 1 else f"v[{a}:{a+n-1}]"
def a(x, n=1): return f"a{x}" if n == 1 else f"a[{x}:{x+n-1}]"
def s(x, n=1): return f"s{x}" if n == 1 else f"s[{x}:{x+n-1}]"

class Gen:
    def __init__(self, opt):
        self.o = []
        self.opt = opt
        self.LDS = R * SLOT + 4 * PRIV
        self.ldfl = opt.get("ldfl", " nt")
        self.qfl = opt.get("qfl", " nt")
        self.stfl = opt.get("stfl", " sc0 sc1 nt")
        self.inloop = False
        self.D = 3
        self.peel = opt.get('peel', True)
        self.tail2 = opt.get('tail2', True) and self.peel
        self.exitpos = (1 if self.tail2 else 2) if self.peel else 3
    def e(self, line): self.o.append("    " + line)
    def lab(self, name): self.o.append(name + ":")
    def c(self, txt): self.o.append("    ; " + txt)
    def nit(self):
        first = 2 if self.opt.get("hd", "2") == "2" else 1
        last = 63 if not self.peel else (61 if self.tail2 else 62)
        if self.opt.get("xu8"): return 56
        return last - first + 1
    def capture(self, fn):
        saved = self.o; self.o = []
        fn()
        lines = [x.strip() for x in self.o]; self.o = saved
        return lines
    def stamp(self, idx, cyc=None):
        if self.opt.get("stamp"):
            self.e(f"s_memrealtime {s(S_RST + 2 * idx, 2)}")
            if cyc is not None: self.e(f"s_memtime {s(S_CST + 2 * cyc, 2)}")

    def dma(self, i, va=V_OFFA, vb=V_OFFB):
        srd = S_KSRD if i < 2 else S_VSRD
        off = f" offset:{i * BLK}" if i else ""
        return f"buffer_load_dwordx4 {v(va if i % 2 == 0 else vb)}, {s(srd,4)}, {s(S_TOFF)} offen{off}{self.ldfl} lds"
    def m0set(self, slot): return f"s_add_u32 m0, {s(S_WOFF)}, {slot * SLOT}"
    def kread(self, p, slot, kt, ks, addr=V_KADDR):
        return f"ds_read_b128 {a(AK(p, kt, ks), 4)}, {v(addr)} offset:{slot * SLOT + kt * 2 * QRT + 256 * ks}"
    def vread(self, p, slot, dt, hh, addr=V_VADDR):
        return f"ds_read_b64_tr_b16 {a(AV(p, dt) + 2 * hh, 2)}, {v(addr)} offset:{slot * SLOT + hh * 2 * QRT + 256 * (dt >> 1) + 32 * (dt & 1)}"
    def qk(self, p, t, kt, ks, cinit="0", sb=None):
        d = v(SB[t & 1 if sb is None else sb] + 4 * kt, 4)
        first = ks == 0
        if self.opt.get("rev", True) and kt == 1: ks = 3 - ks
        return f"{M16} {d}, {a(AK(p, kt, ks), 4)}, {a(AQ(t, ks), 4)}, {cinit if first else d}"
    def pv(self, p, t, dt, pb=None, first=False):
        d = v(O(t, dt), 4)
        return f"{M16} {d}, {a(AV(p, dt), 4)}, {v(PB[t & 1 if pb is None else pb], 4)}, {'0' if first else d}"

    def period(self, j, t, lds, shadow, do_qk=True, do_pv=True, extras=None, bp=None):
        jq, tq = (j, t + 1) if t < 5 else (j + 1, 0)
        jp, tp = (j, t - 1) if t > 0 else (j - 1, 5)
        self.period_x((jq & 1, tq, tq & 1) if do_qk else None, (t, t & 1), (jp & 1, tp, tp & 1) if do_pv else None, lds, shadow, extras, bp)

    def period_x(self, qkb, sm, pvb, lds, shadow, extras=None, bp=None):
        Q = [self.qk(qkb[0], qkb[1], kt, ks, sb=qkb[2]) if qkb else None for kt in range(2) for ks in range(4)]
        V = [self.pv(pvb[0], pvb[1], dt, pb=pvb[2], first=len(pvb) > 3 and pvb[3]) if pvb else None for dt in range(8)]
        if self.opt.get("order", "88") == "4444": mf = Q[0:4] + V[0:4] + Q[4:8] + V[4:8]
        else: mf = Q + V
        t, sb = sm
        S = SB[sb]; P = PB[sb]; L = L0 + t
        e64 = self.opt.get("e64", "")
        ex = lambda i: f"v_exp_f32{'_e64' if 'e' in e64 else ''} {v(S+i)}, {v(S+i)}"
        ad = lambda i: f"v_add_f32{'_e64' if 'a' in e64 else ''} {v(L)}, {v(L)}, {v(S+i)}"
        cv = lambda i: f"v_cvt_pk_bf16_f32 {v(P+i)}, {v(S+2*i)}, {v(S+2*i+1)}"
        lds = list(lds) + [None] * (4 - len(lds))
        fill = {0: [ex(0)], 1: [ex(1)], 2: [lds[0], ad(0)], 3: [ex(2)], 4: [ad(1), cv(0)], 5: [ex(3)],
                6: [lds[1], ad(2)], 7: [ex(4)], 8: [ad(3), cv(1)], 9: [ex(5)], 10: [lds[2], ad(4)],
                11: [ex(6)], 12: [ad(5), cv(2)], 13: [ex(7)], 14: [lds[3], ad(6)], 15: [ad(7), cv(3)]}
        if bp:
            LP = NEGM + 16 + 2 * t
            fill[6] = [lds[1], cv(1)]
            fill[8] = [bp, f"v_pk_add_f32 {v(LP,2)}, {v(LP,2)}, {v(S+2,2)}"]
        abl = self.opt.get("abl", "") if self.inloop else ""
        for g in range(16):
            if mf[g]: self.e(mf[g])
            for x in shadow.get(g, []):
                if 'D' in abl and x.startswith("buffer_load"): continue
                if 'B' in abl and x.startswith("s_barrier"): continue
                self.e(x)
            for x in fill[g]:
                if x is None: continue
                if 'e' in abl and x.startswith("v_exp"): continue
                if 'a' in abl and x.startswith("v_add"): continue
                if 'c' in abl and x.startswith("v_cvt"): continue
                if 'l' in abl and x.startswith("ds_read"): continue
                self.e(x)
            if extras:
                n = len(extras)
                for x in extras[g * n // 16:(g + 1) * n // 16]: self.e(x)

    def iteration(self, j):
        self.c(f"---- iteration j%R={j % R}")
        p1 = (j + 1) & 1
        s1 = (j + 1) % R
        K = [self.kread(p1, s1, kt, ks) for kt in range(2) for ks in range(4)]
        V = [self.vread(p1, s1, dt, hh) for dt in range(8) for hh in range(2)]
        sched = [K[0:4], [K[4]] + V[0:3], [K[5]] + V[3:6], [K[6]] + V[6:9], [K[7]] + V[9:12], V[12:16]]
        sl = (j + self.D) % R
        bpm = self.opt.get("bp", False)
        pos = self.opt.get("dmapos", {0: [(1, 'm')], 3: [(11, 'inc')]} if bpm else {0: [(1, 'm'), (3, 0)], 1: [(3, 1)], 2: [(3, 2)], 3: [(3, 3), (5, 'inc')]})
        for t in range(6):
            sh = {}
            if t == 0:
                sh[0] = [f"s_waitcnt vmcnt({self.opt.get('xvm', 4 * (self.D - 2))})", "s_barrier"]
                if self.opt.get("xb2") and j % 2 == 0: sh[0] = []
            if t == 1: sh[0] = ["s_waitcnt lgkmcnt(4)"]
            if t == 4: sh[15] = ["s_waitcnt lgkmcnt(3)"]
            for (g, what) in pos.get(t, []):
                if what == 'm': ins = self.m0set(sl)
                elif what == 'inc': ins = f"s_add_u32 {s(S_TOFF)}, {s(S_TOFF)}, 8192"
                else: ins = self.dma(what)
                sh.setdefault(g, []).append(ins)
            if t == 5 and j % R == self.exitpos:
                sh.setdefault(3, []).append(f"s_sub_u32 {s(S_CNT)}, {s(S_CNT)}, 1")
                sh.setdefault(5, []).append(f"s_cmp_lg_u32 {s(S_CNT)}, 0")
            self.period(j, t, sched[t], sh, bp=(self.dma(t) if bpm and t < 4 else None))

    def lreduce(self, op="v_add_f32", regs=None):
        regs = regs or [L0 + t for t in range(6)]
        red = []
        for t in range(6): red.append(f"v_mov_b32 {v(NEGM+t)}, {v(regs[t])}")
        for t in range(6): red.append(f"v_permlane32_swap_b32 {v(regs[t])}, {v(NEGM+t)}")
        for t in range(6): red.append(f"{op} {v(regs[t])}, {v(regs[t])}, {v(NEGM+t)}")
        for t in range(6): red.append(f"v_mov_b32 {v(NEGM+t)}, {v(regs[t])}")
        for t in range(6): red.append(f"v_permlane16_swap_b32 {v(regs[t])}, {v(NEGM+t)}")
        for t in range(6): red.append(f"{op} {v(regs[t])}, {v(regs[t])}, {v(NEGM+t)}")
        return red

    def build(self):
        opt = self.opt
        e = self.e
        self.o.append(f"""; MHA forward (softmax(Q K^T / sqrt(D)) V), B=8 H=32 Sq=384 Sk=2048 D=128, bf16 in / bf16 out.
; @launch grid=(256,1,1) block=(256,1,1) lds={self.LDS}
;
.amdgcn_target "amdgcn-amd-amdhsa--gfx950"
.text
.globl {KN}
.p2align 8
.type {KN},@function
{KN}:""")
        e("s_load_dwordx4 s[32:35], s[0:1], 0")
        e("s_load_dwordx4 s[36:39], s[0:1], 16")
        e("s_cmpk_ge_u32 s2, 0x100")
        e("s_cbranch_scc1 L_end")
        self.stamp(0)
        for _ in range(opt.get("sleep0", 0)): e("s_sleep 32")
        QV = NEGM + 8
        X = QV + 3
        e(f"v_lshrrev_b32 {v(V_T1)}, 6, v0")
        e(f"v_bfe_u32 {v(V_T2)}, v0, 2, 2")
        e(f"v_bfe_u32 {v(V_T0)}, v0, 4, 2")
        e(f"v_readfirstlane_b32 {s(S_W)}, {v(V_T1)}")
        e(f"v_and_b32 {v(V_T3)}, 3, v0")
        e(f"v_lshlrev_b32 {v(X)}, 8, {v(V_T2)}")
        e(f"v_lshl_add_u32 {v(X)}, {v(V_T0)}, 6, {v(X)}")
        e(f"v_lshl_add_u32 {v(X)}, {v(V_T3)}, 4, {v(X)}")
        if opt.get("dmalin"):
            e(f"v_and_b32 {v(X)}, 63, v0"); e(f"v_lshlrev_b32 {v(X)}, 4, {v(X)}")
        e(f"s_lshl_b32 {s(S_T0)}, {s(S_W)}, {10 if opt.get('xdma') else 11}")
        e(f"s_mul_i32 {s(S_WOFF)}, {s(S_W)}, {QRT}")
        e(f"v_add_u32 {v(V_OFFB)}, {s(S_T0)}, {v(X)}")
        e(f"v_add_u32 {v(V_OFFA)}, 32, {v(V_OFFB)}")
        if opt.get('xdma'): e(f"v_add_u32 {v(V_OFFB)}, 3072, {v(V_OFFB)}")
        e(f"s_mul_i32 {s(S_T0)}, {s(S_W)}, {96 * 256}")
        e(f"v_add_u32 {v(QV+3)}, {s(S_T0)}, {v(X)}")
        e(f"v_add_u32 {v(QV+2)}, 32, {v(QV+3)}")
        e(f"v_add_u32 {v(QV+1)}, 32, {v(QV+2)}")
        e(f"v_add_u32 {v(QV)}, 32, {v(QV+1)}")
        e(f"s_mul_i32 {s(S_PRIV)}, {s(S_W)}, {PRIV}")
        e(f"s_add_u32 {s(S_PRIV)}, {s(S_PRIV)}, {R * SLOT}")
        if opt.get("remap", False):
            e(f"s_and_b32 {s(S_T0)}, s2, 7")
            e(f"s_lshl_b32 {s(S_T0)}, {s(S_T0)}, 5")
            e(f"s_lshr_b32 {s(S_T1)}, s2, 3")
            e(f"s_add_u32 s2, {s(S_T0)}, {s(S_T1)}")
        e(f"s_mul_i32 {s(S_T0)}, s2, 98304")
        e(f"s_lshl_b32 {s(S_T1)}, s2, 19")
        e(f"s_mov_b32 {s(S_KSRD+3)}, 0x20000")
        e(f"s_mov_b32 {s(S_KSRD+2)}, {524288 + 32}")
        e(f"s_mov_b32 {s(S_QSRD+3)}, {s(S_KSRD+3)}")
        e(f"s_mov_b32 {s(S_QSRD+2)}, {s(S_KSRD+2)}")
        e(f"s_mov_b32 {s(S_VSRD+3)}, {s(S_KSRD+3)}")
        e(f"s_mov_b32 {s(S_VSRD+2)}, {s(S_KSRD+2)}")
        e(f"s_mov_b32 {s(S_TOFF)}, 0")
        e(f"s_mov_b32 m0, {s(S_WOFF)}")
        e("s_waitcnt lgkmcnt(0)")
        if opt.get("fine"): self.stamp(1)
        e(f"s_add_u32 {s(S_KSRD)}, s34, {s(S_T1)}")
        e(f"s_addc_u32 {s(S_KSRD+1)}, s35, 0")
        e(f"s_sub_u32 {s(S_KSRD)}, {s(S_KSRD)}, 32")
        e(f"s_subb_u32 {s(S_KSRD+1)}, {s(S_KSRD+1)}, 0")
        vm = []
        e(self.dma(0)); e(self.dma(1)); vm += ["K0", "K0"]
        if opt.get("fine"): self.stamp(3)
        e(f"s_add_u32 {s(S_QSRD)}, s32, {s(S_T0)}")
        e(f"s_addc_u32 {s(S_QSRD+1)}, s33, 0")
        e(f"s_sub_u32 {s(S_QSRD)}, {s(S_QSRD)}, 96")
        e(f"s_subb_u32 {s(S_QSRD+1)}, {s(S_QSRD+1)}, 0")
        QPLACE = {0: ('p', 0), 1: ('p', STG), 2: ('r', 2 * SLOT), 3: ('r', 3 * SLOT), 4: ('p', 0), 5: ('p', STG)}
        def qload(t, pad=None):
            kind, off_ = QPLACE[t]
            base = s(S_PRIV if kind == 'p' else S_WOFF)
            e(f"s_add_u32 m0, {base}, {off_}" if off_ else f"s_mov_b32 m0, {base}")
            if t == 0: e(pad or "s_nop 0")
            else: e(f"s_movk_i32 {s(S_T3)}, {t * 4096}")
            for b in range(4):
                off = f" offset:{b * BLK}" if b else ""
                e(f"buffer_load_dwordx4 {v(QV+b)}, {s(S_QSRD,4)}, {s(S_TOFF if t == 0 else S_T3)} offen{off}{self.qfl} lds")
                vm.append(f"Q{t}")
        qload(0, pad=f"s_add_u32 {s(S_VSRD)}, s36, {s(S_T1)}")
        if opt.get("fine"): self.stamp(4)
        e(f"s_addc_u32 {s(S_VSRD+1)}, s37, 0")
        e(f"s_sub_u32 {s(S_VSRD)}, {s(S_VSRD)}, 2144")
        e(f"s_mov_b32 m0, {s(S_WOFF)}")
        e(f"s_subb_u32 {s(S_VSRD+1)}, {s(S_VSRD+1)}, 0")
        e(self.dma(2)); e(self.dma(3)); vm += ["V0", "V0"]
        if opt.get("fine"): self.stamp(5)
        if opt.get("hd", "2") == "2":
            e(f"s_add_u32 m0, {s(S_WOFF)}, {SLOT}")
            e(f"s_movk_i32 {s(S_TOFF)}, 0x2000")
            for i in range(4): e(self.dma(i))
            vm += ["K1", "K1", "V1", "V1"]
        else:
            qload(1)
        self.stamp(2, 0)
        if opt.get("stamp") and not opt.get("fine"): self.stamp(1)
        e(f"s_mov_b32 {s(S_QSRD+2)}, {98304 + 96}")
        e(f"s_mov_b32 {s(S_VSRD+2)}, {524288 + 2144}")
        e(f"s_mov_b32 {s(S_OSRD+2)}, 98304")
        e(f"s_mov_b32 {s(S_OSRD+3)}, {s(S_KSRD+3)}")
        e(f"s_add_u32 {s(S_OSRD)}, s38, {s(S_T0)}")
        e(f"s_addc_u32 {s(S_OSRD+1)}, s39, 0")
        e(f"v_and_b32 {v(V_LANE)}, 63, v0")
        def dma_half(tile, kv):
            e(f"s_mov_b32 {s(S_TOFF)}, {tile * 8192}")
            e(self.m0set(tile % R))
            e("s_nop 0")
            for i in ((0, 1) if kv == 'K' else (2, 3)): e(self.dma(i))
            vm.extend([f"{kv}{tile}"] * 2)
        def wait_for(lbl):
            last = max(i for i, x in enumerate(vm) if x == lbl)
            e(f"s_waitcnt vmcnt({len(vm) - 1 - last})")
        TMPC = NEGM
        QA = NEGM + 12
        two = opt.get("hd", "2") == "2"
        def qread(t):
            land = (O(5, 0) + (16 if t == 5 else 0)) if two else O(t, 0)
            wait_for(f"Q{t}")
            if not opt.get("fs"): self.stamp(3 + t)
            for ks in range(4):
                kind, off_ = QPLACE[t]
                e(f"ds_read_b128 {v(land + 4 * ks, 4)}, {v(QA if kind == 'p' else QA + 2)} offset:{off_ + 256 * ks}")
        def qcvt(t, after_read=None):
            land = (O(5, 0) + (16 if t == 5 else 0)) if two else O(t, 0)
            e("s_waitcnt lgkmcnt(0)")
            if after_read: after_read()
            for i in range(16):
                x = land + i
                lo = TMPC + 2 * (i % 4); hi = lo + 1
                e(f"v_lshlrev_b32 {v(lo)}, 16, {v(x)}")
                e(f"v_and_b32 {v(hi)}, {s(S_T2)}, {v(x)}")
                e(f"v_pk_mul_f32 {v(lo,2)}, {v(lo,2)}, {v(V_T0,2)}")
                e(f"v_cvt_pk_bf16_f32 {v(lo)}, {v(lo)}, {v(hi)}")
                e(f"v_accvgpr_write_b32 {a(AQ(t,0)+i)}, {v(lo)}")
                if not two: e(f"v_mov_b32 {v(x)}, 0")
        def qconv(t, after_read=None):
            qread(t); qcvt(t, after_read)
        e(f"v_lshrrev_b32 {v(V_KADDR)}, 1, {v(V_T2)}")
        e(f"v_mul_u32_u24 {v(V_KADDR)}, {QRT}, {v(V_KADDR)}")
        e(f"v_and_b32 {v(V_VADDR)}, 1, {v(V_T2)}")
        e(f"v_mul_u32_u24 {v(V_VADDR)}, {BLK}, {v(V_VADDR)}")
        e(f"v_add_u32 {v(V_KADDR)}, {v(V_KADDR)}, {v(V_VADDR)}")
        e(f"v_lshl_add_u32 {v(V_KADDR)}, {v(V_T3)}, 6, {v(V_KADDR)}")
        e(f"v_lshl_add_u32 {v(V_KADDR)}, {v(V_T0)}, 4, {v(V_KADDR)}")
        e(f"v_mul_u32_u24 {v(QA)}, {BLK}, {v(V_T2)}")
        e(f"v_lshl_add_u32 {v(QA)}, {v(V_T3)}, 6, {v(QA)}")
        e(f"v_lshl_add_u32 {v(QA)}, {v(V_T0)}, 4, {v(QA)}")
        e(f"v_add_u32 {v(QA+2)}, {s(S_WOFF)}, {v(QA)}")
        e(f"v_add_u32 {v(QA)}, {s(S_PRIV)}, {v(QA)}")
        e(f"v_lshrrev_b32 {v(V_VADDR)}, 1, {v(V_T0)}")
        e(f"v_mul_u32_u24 {v(V_VADDR)}, {QRT}, {v(V_VADDR)}")
        e(f"v_and_b32 {v(V_T1)}, 1, {v(V_T0)}")
        e(f"v_mul_u32_u24 {v(NEGM+13)}, {BLK}, {v(V_T1)}")
        e(f"v_add_u32 {v(V_VADDR)}, {v(V_VADDR)}, {v(NEGM+13)}")
        e(f"v_lshl_add_u32 {v(V_VADDR)}, {v(V_T2)}, 6, {v(V_VADDR)}")
        e(f"v_lshl_add_u32 {v(V_VADDR)}, {v(V_T3)}, 3, {v(V_VADDR)}")
        e(f"v_add_u32 {v(V_VADDR)}, {2 * BLK}, {v(V_VADDR)}")
        for i in range(6): e(f"v_mov_b32 {v(L0+i)}, 0")
        if opt.get("hd", "2") != "2":
            for i in range(4): e(f"v_mov_b32 {v(PB[1]+i)}, 0")
            for i in range(32): e(f"v_accvgpr_write_b32 {a(AV(1,0)+i)}, 0")
        if opt.get("hd", "2") == "2":
            pass
        else:
            for t in range(6):
                for i in range(16, 32): e(f"v_mov_b32 {v(O(t,0)+i)}, 0")
        self.epi_addr()
        if opt.get("bp", False):
            for i in range(8): e(f"v_mov_b32 {v(NEGM+16+i)}, 0")
        e(f"s_mov_b32 {s(S_T1)}, 0x3e0293ee")
        e(f"v_mov_b32 {v(V_T0)}, {s(S_T1)}")
        e(f"v_mov_b32 {v(V_T1)}, {s(S_T1)}")
        e(f"s_mov_b32 {s(S_T2)}, 0xffff0000")
        hd = opt.get("hd", "2")
        if hd == "2":
            Kf = lambda tile: [self.kread(tile & 1, tile % R, kt, ks) for kt in range(2) for ks in range(4)]
            Vf = lambda tile: [self.vread(tile & 1, tile % R, dt, hh) for dt in range(8) for hh in range(2)]
            def tile_dma(tile): dma_half(tile, 'K'); dma_half(tile, 'V')
            qload(1)
            qconv(0, lambda: qload(2))
            wait_for("V1")
            e("s_barrier")
            for x in Kf(0) + Kf(1): e(x)
            e("s_waitcnt lgkmcnt(8)")
            V0r = Vf(0)
            for kt in range(2):
                for ks in range(4):
                    e(self.qk(0, 0, kt, ks, sb=0))
                    for x in V0r[8 * kt + 2 * ks: 8 * kt + 2 * ks + 2]: e(x)
            e("s_waitcnt lgkmcnt(15)")
            qload(3)
            K2 = Kf(2)
            for n in range(12):
                nq = n + 1
                lds = []; extras = []; sh = {}
                if n % 2 == 0 and n // 2 + 1 <= 5 and n > 0: qread(n // 2 + 1)
                if nq < 12 and nq % 2 == 0:
                    tq = nq >> 1
                    if tq == 1: qread(1)
                    qcvt(tq)
                    e("s_nop 1")
                    if tq == 1: extras = self.capture(lambda: qload(4))
                    if tq == 2: extras = self.capture(lambda: qload(5))
                    if tq == 3: extras = self.capture(lambda: tile_dma(2))
                    if tq == 4: extras = self.capture(lambda: tile_dma(3))
                if n == 0: extras = Vf(1)
                if n == 9:
                    wait_for("K2")
                    e("s_barrier")
                    if not opt.get("fs"): self.stamp(9)
                    lds = [None, None, K2[0], K2[1]]
                if n == 10:
                    lds = K2[2:6]
                    sh = {1: [K2[6]], 3: [K2[7]]}
                    extras = self.capture(lambda: tile_dma(4))
                if n == 11:
                    wait_for("V2")
                    e("s_waitcnt lgkmcnt(0)")
                    e("s_barrier")
                    V2 = Vf(2)
                    for dt in range(7): sh[9 + dt] = V2[2 * dt: 2 * dt + 2]
                qkb = (nq & 1, nq >> 1, nq & 1) if nq < 12 else (0, 0, 0)
                pvb = ((n - 1) & 1, (n - 1) >> 1, (n - 1) & 1, (n - 1) % 2 == 0) if n >= 1 else None
                self.period_x(qkb, (n >> 1, n & 1), pvb, lds, sh, extras)
            for x in Vf(2)[14:16]: e(x)
            e(f"s_mov_b32 {s(S_TOFF)}, {5 * 8192}")
            self.stamp(10, 1)
            e(f"s_mov_b32 {s(S_CNT)}, {30 if opt.get('xu2') else (7 if opt.get('xu8') else (15 if self.tail2 else 16))}")
            if not (opt.get("rot", True) and self.tail2 and not opt.get("xu2")): e("s_branch L_it2")
        else:
            fs = opt.get("fs")
            def fstamp(i):
                if fs and not (opt.get("fine") and i in (3, 4, 5)): self.stamp(i)
            qload(2)
            fstamp(3)
            if hd == "d":
                qconv(0, lambda: (fstamp(4), qload(3), fstamp(5)))
                fstamp(6)
            else:
                qconv(0, lambda: qload(3))
                qload(4)
            wait_for("V0")
            fstamp(7)
            e("s_barrier")
            fstamp(8)
            for kt in range(2):
                for ks in range(4): e(self.kread(0, 0, kt, ks))
            for dt in range(8):
                for hh in range(2): e(self.vread(0, 0, dt, hh))
            if hd != "d":
                qload(5)
                dma_half(1, 'K'); dma_half(1, 'V')
            e("s_waitcnt lgkmcnt(15)")
            for kt in range(2):
                for ks in range(4): e(self.qk(0, 0, kt, ks))
            fstamp(9)
            K1 = [self.kread(1, 1 % R, kt, ks) for kt in range(2) for ks in range(4)]
            V1 = [self.vread(1, 1 % R, dt, hh) for dt in range(8) for hh in range(2)]
            for t in range(6):
                if t + 1 <= 5:
                    def after(t=t):
                        if hd == "d":
                            if t == 0: qload(4)
                            if t == 1: qload(5)
                            if t == 2: dma_half(1, 'K'); dma_half(1, 'V')
                            if t == 3: dma_half(2, 'K'); dma_half(2, 'V')
                        else:
                            if t == 2: dma_half(2, 'K'); dma_half(2, 'V')
                            if t == 3: dma_half(3, 'K'); dma_half(3, 'V')
                    qconv(t + 1, after)
                    e("s_nop 1")
                if t == 0: e("s_waitcnt lgkmcnt(0)")
                if t == 5:
                    wait_for("K1")
                    e("s_barrier")
                    if not opt.get("fs"): self.stamp(9)
                    for x in K1: e(x)
                    e("s_waitcnt lgkmcnt(0)")
                self.period(0, t, [], {}, do_pv=True)
            wait_for("V1")
            e("s_barrier")
            for x in V1: e(x)
            if hd == "d":
                dma_half(3, 'K'); dma_half(3, 'V')
            e(f"s_mov_b32 {s(S_TOFF)}, {(self.D + 1) * 8192}")
            self.stamp(10, 1)
            e(f"s_mov_b32 {s(S_CNT)}, {NT // R}")
            e("s_branch L_it1")
        rot = opt.get("rot", True) and opt.get("hd", "2") == "2" and self.tail2 and not opt.get("xu2")
        e(".p2align 6")
        self.lab("L_loop")
        self.inloop = True
        if rot:
            if opt.get("xu8"):
                for j in (2, 3, 0, 1):
                    self.exitpos = -1
                    self.iteration(j)
                self.exitpos = 1
            for j in (2, 3, 0, 1): self.iteration(j)
            e("s_cbranch_scc1 L_loop")
        else:
            if opt.get("xu2"):
                self.lab("L_it1")
                self.iteration(1)
                e("s_cbranch_scc0 L_last")
                self.lab("L_it2")
                self.iteration(2)
                e(f"v_add_u32 {v(V_KADDR)}, 0, {v(V_KADDR)}")
                e(f"v_add_u32 {v(V_VADDR)}, 0, {v(V_VADDR)}")
            for j in (range(R) if not opt.get("xu2") else []):
                if j == 1: self.lab("L_it1")
                if j == 2: self.lab("L_it2")
                self.iteration(j)
                if self.peel and j == self.exitpos: e("s_cbranch_scc0 L_last")
            if self.peel: e("s_branch L_loop")
            else: e("s_cbranch_scc1 L_loop")
        self.inloop = False
        if self.peel:
            self.lab("L_last")
            self.stamp(11, 2)
            self.last_iteration()
        else:
            self.stamp(11, 2)
            red = self.lreduce()
            e("s_nop 1")
            for dt in range(8):
                e(self.pv(63 & 1, 5, dt))
                for x in red[2*dt:2*dt+2]: e(x)
            for x in red[16:]: e(x)
            self.check()
            self.lab("L_norm")
            for t in range(6): e(f"v_rcp_f32 {v(L0+t)}, {v(L0+t)}")
            self.stamp(12, 3)
            self.epilogue()
        self.stamp(13, 4)
        if opt.get("stamp") and opt.get("dbg") is None:
            e("s_waitcnt vmcnt(0)")
            self.stamp(14, 5)
            e(f"s_load_dwordx2 {s(S_WS,2)}, s[0:1], 40")
            e("s_waitcnt lgkmcnt(0)")
            e(f"s_mov_b32 {s(S_WS+2)}, 0x20000000")
            e(f"s_mov_b32 {s(S_WS+3)}, 0x20000")
            e(f"v_mov_b32 {v(V_T0)}, 0")
            for i in range(16): e(f"v_writelane_b32 {v(V_T0)}, {s(S_RST + 2*i)}, {i}")
            for i in range(8): e(f"v_writelane_b32 {v(V_T0)}, {s(S_CST + 2*i)}, {16+i}")
            e(f"s_lshl_b32 {s(S_T0)}, s2, 2")
            e(f"s_add_u32 {s(S_T0)}, {s(S_T0)}, {s(S_W)}")
            e(f"s_lshl_b32 {s(S_T0)}, {s(S_T0)}, 8")
            e(f"v_lshlrev_b32 {v(V_T1)}, 2, {v(V_LANE)}")
            e(f"buffer_store_dword {v(V_T0)}, {v(V_T1)}, {s(S_WS,4)}, {s(S_T0)} offen")
        if opt.get("dbg") is not None:
            e("s_waitcnt vmcnt(0)")
            self.stamp(14, 5)
            e(f"s_load_dwordx2 {s(S_WS,2)}, s[0:1], 32")
            e("s_waitcnt lgkmcnt(0)")
            e(f"s_cmp_lg_u32 s2, {opt['dbg']}")
            e("s_cbranch_scc1 L_end")
            e(f"s_cmp_lg_u32 {s(S_W)}, 0")
            e("s_cbranch_scc1 L_end")
            e(f"s_mov_b32 {s(S_WS+2)}, 256")
            e(f"s_mov_b32 {s(S_WS+3)}, 0x20000")
            e(f"v_mov_b32 {v(V_T0)}, 0")
            for i in range(1, 15):
                e(f"s_sub_u32 {s(S_T0)}, {s(S_RST + 2*i)}, {s(S_RST)}")
                e(f"v_writelane_b32 {v(V_T0)}, {s(S_T0)}, {i - 1}")
            e(f"s_sub_u32 {s(S_T0)}, {s(S_CST + 4)}, {s(S_CST + 2)}")
            e(f"v_writelane_b32 {v(V_T0)}, {s(S_T0)}, 14")
            e(f"s_sub_u32 {s(S_T0)}, {s(S_CST + 10)}, {s(S_CST)}")
            e(f"v_writelane_b32 {v(V_T0)}, {s(S_T0)}, 15")
            e(f"v_lshlrev_b32 {v(V_T1)}, 2, {v(V_LANE)}")
            e(f"buffer_store_dword {v(V_T0)}, {v(V_T1)}, {s(S_WS,4)}, 0 offen")
        for _ in range(opt.get("sleep1", 0)): e("s_sleep 32")
        self.lab("L_end")
        e("s_endpgm")
        if not opt.get("nocheck"): self.fallback()
        self.o.append(f""".section .rodata,"a"
.p2align 6
.amdhsa_kernel {KN}
  .amdhsa_next_free_vgpr 512
  .amdhsa_next_free_sgpr 102
  .amdhsa_accum_offset 256
  .amdhsa_group_segment_fixed_size 0
  .amdhsa_kernarg_size 48
  .amdhsa_user_sgpr_count 2
  .amdhsa_user_sgpr_kernarg_segment_ptr 1
  .amdhsa_system_sgpr_workgroup_id_x 1
.end_amdhsa_kernel""")
        return "\n".join(self.o) + "\n"

    def check(self):
        if self.opt.get("nocheck"): return
        e = self.e
        e(f"v_max3_f32 {v(NEGM)}, {v(L0)}, {v(L0+1)}, {v(L0+2)}")
        e(f"v_min3_f32 {v(NEGM+1)}, {v(L0)}, {v(L0+1)}, {v(L0+2)}")
        e(f"v_max3_f32 {v(NEGM)}, {v(NEGM)}, {v(L0+3)}, {v(L0+4)}")
        e(f"v_min3_f32 {v(NEGM+1)}, {v(NEGM+1)}, {v(L0+3)}, {v(L0+4)}")
        e(f"v_max_f32 {v(NEGM)}, {v(NEGM)}, {v(L0+5)}")
        e(f"v_min_f32 {v(NEGM+1)}, {v(NEGM+1)}, {v(L0+5)}")
        e(f"s_mov_b32 {s(S_T1)}, 0x53800000")
        e(f"s_mov_b32 {s(S_T3)}, 0x37800000")
        e(f"v_cmp_ge_f32 vcc, {s(S_T1)}, {v(NEGM)}")
        e(f"v_cmp_le_f32 {s(S_CMP,2)}, {s(S_T3)}, {v(NEGM+1)}")
        e(f"s_and_b64 vcc, vcc, {s(S_CMP,2)}")
        e("s_cmp_eq_u64 vcc, -1")
        e("s_cbranch_scc0 L_fallback")

    def epi_addr(self):
        e = self.e
        WA, RA, GA = V_T2, V_T3, V_OST
        e(f"v_and_b32 {v(NEGM+16)}, 15, {v(V_LANE)}")
        e(f"v_lshrrev_b32 {v(NEGM+17)}, 4, {v(V_LANE)}")
        e(f"v_mul_u32_u24 {v(WA)}, 272, {v(NEGM+16)}")
        e(f"v_lshl_add_u32 {v(WA)}, {v(NEGM+17)}, 3, {v(WA)}")
        e(f"v_add_u32 {v(WA)}, {s(S_PRIV)}, {v(WA)}")
        e(f"v_mul_u32_u24 {v(RA)}, 272, {v(NEGM+17)}")
        e(f"v_lshl_add_u32 {v(RA)}, {v(NEGM+16)}, 4, {v(RA)}")
        e(f"v_add_u32 {v(RA)}, {s(S_PRIV)}, {v(RA)}")
        e(f"s_mul_i32 {s(S_T1)}, {s(S_W)}, {96 * 256}")
        e(f"v_lshlrev_b32 {v(GA)}, 4, {v(V_LANE)}")
        e(f"v_add_u32 {v(GA)}, {s(S_T1)}, {v(GA)}")

    def last_iteration(self):
        e = self.e; opt = self.opt
        WA, RA, GA = V_T2, V_T3, V_OST
        RC = NEGM + 8
        def lred(t):
            L, T = L0 + t, NEGM + t
            fold = [f"v_add_f32 {v(L)}, {v(L)}, {v(NEGM+16+2*t)}", f"v_add_f32 {v(L)}, {v(L)}, {v(NEGM+17+2*t)}"] if opt.get("bp", False) and t < 4 else []
            return fold + [f"v_mov_b32 {v(T)}, {v(L)}", "s_nop 1", f"v_permlane32_swap_b32 {v(L)}, {v(T)}", "s_nop 0", f"v_add_f32 {v(L)}, {v(L)}, {v(T)}",
                    f"v_mov_b32 {v(T)}, {v(L)}", "s_nop 1", f"v_permlane16_swap_b32 {v(L)}, {v(T)}", "s_nop 0", f"v_add_f32 {v(L)}, {v(L)}, {v(T)}",
                    f"v_rcp_f32 {v(RC+t)}, {v(L)}", "s_nop 0"]
        def norm(t, pk=False):
            x = []
            if pk:
                x += [f"v_mov_b32 {v(V_T0)}, {v(RC+t)}", f"v_mov_b32 {v(V_T1)}, {v(RC+t)}"]
            for dt in range(8):
                o = O(t, dt)
                if pk:
                    x += [f"v_pk_mul_f32 {v(o,2)}, {v(o,2)}, {v(V_T0,2)}", f"v_pk_mul_f32 {v(o+2,2)}, {v(o+2,2)}, {v(V_T0,2)}"]
                else:
                    x += [f"v_mul_f32 {v(o+r)}, {v(o+r)}, {v(RC+t)}" for r in range(4)]
                x += [f"v_cvt_pk_bf16_f32 {v(o)}, {v(o)}, {v(o+1)}", f"v_cvt_pk_bf16_f32 {v(o+1)}, {v(o+2)}, {v(o+3)}",
                      f"ds_write_b64 {v(WA)}, {v(o,2)} offset:{(t & 1) * STG + 32 * dt}"]
            x += [f"ds_read_b128 {v(O(t, 0) + 4 * k, 4)}, {v(RA)} offset:{(t & 1) * STG + k * 4 * 272}" for k in range(4)]
            return x
        def stores(t):
            if opt.get("nostore"): return []
            return [f"buffer_store_dwordx4 {v(O(t, 0) + 4 * k, 4)}, {v(GA)}, {s(S_OSRD,4)}, {s(S_T0)} offen offset:{1024 * k}{self.stfl}" for k in range(4)]
        def pre(t, n=0): return [f"s_waitcnt lgkmcnt({n})", f"s_mov_b32 {s(S_T0)}, {t * 4096}"]
        def weave(main, sts):
            out = []; n = len(main); k = len(sts)
            marks = {(i * n) // k + 1: i for i in range(k)} if k else {}
            for i, x in enumerate(main):
                if i in marks: out.append(sts[marks[i]])
                out.append(x)
            return out
        pk = opt.get("epipk", False)
        def weave2(main, sts):
            if not main: return list(sts)
            return weave(main, sts)
        if self.tail2:
            self.c("---- last two tiles, q-tile major")
            b = [(0, 62), (1, 62), (0, 63), (1, 63), (2, 62), (2, 63), (3, 62), (3, 63), (4, 62), (4, 63), (5, 62), (5, 63)]
            K63 = [self.kread(1, 63 % R, kt, ks) for kt in range(2) for ks in range(4)]
            V63 = [self.vread(1, 63 % R, dt, hh) for dt in range(8) for hh in range(2)]
            exs = {3: lambda: lred(0), 4: lambda: lred(1) + norm(0, pk),
                   5: lambda: pre(0) + weave2(norm(1, pk), stores(0)), 6: lambda: pre(1) + weave2(lred(2), stores(1)),
                   7: lambda: norm(2, pk), 8: lambda: pre(2) + weave2(lred(3), stores(2)),
                   9: lambda: norm(3, pk), 10: lambda: pre(3) + weave2(lred(4), stores(3)), 11: lambda: norm(4, pk)}
            for n in range(12):
                sh = {}; lds = []
                if n == 0:
                    sh[0] = [f"s_waitcnt vmcnt({4 * (self.D - 2)})", "s_barrier"]
                    lds = K63[0:4]
                    for i, g in enumerate((1, 3, 5, 7)): sh[g] = [K63[4 + i]]
                if n == 1:
                    sh[0] = []
                    e("s_waitcnt lgkmcnt(0)")
                if n in (1, 2):
                    o = 8 * (n - 1)
                    lds = V63[o:o + 4]
                    for i, g in enumerate((1, 3, 5, 7)): sh[g] = [V63[o + 4 + i]]
                if n == 3: sh[0] = ["s_waitcnt lgkmcnt(0)"]
                qkb = (b[n + 1][1] & 1, b[n + 1][0], (n + 1) & 1) if n < 11 else None
                pvb = (b[n - 1][1] & 1, b[n - 1][0], (n - 1) & 1) if n >= 1 else (1, 5, 1)
                self.period_x(qkb, (b[n][0], n & 1), pvb, lds, sh, exs[n]() if n in exs else None)
            ex = pre(4) + weave2(lred(5), stores(4))
            e("s_nop 1")
            n = len(ex)
            for dt in range(8):
                e(self.pv(1, 5, dt, pb=1))
                for x in ex[dt * n // 8:(dt + 1) * n // 8]: e(x)
            self.stamp(12, 3)
            for x in norm(5, pk=True): e(x)
            for x in pre(5) + stores(5): e(x)
            self.check()
            return
        self.c("---- last tile")
        for t in range(6):
            sh = {}
            if t == 1: sh[0] = ["s_waitcnt lgkmcnt(0)"]
            ex = []
            if t >= 1: ex += lred(t - 1)
            if t >= 2: ex += norm(t - 2, pk)
            if t >= 3: ex = pre(t - 3) + weave(ex, stores(t - 3))
            self.period(63, t, [], sh, do_qk=(t < 5), extras=ex)
        ex = pre(3) + weave(lred(5) + norm(4, pk), stores(3))
        e("s_nop 1")
        n = len(ex)
        for dt in range(8):
            e(self.pv(63 & 1, 5, dt))
            for x in ex[dt * n // 8:(dt + 1) * n // 8]: e(x)
        self.check()
        self.stamp(12, 3)
        nx = norm(5, pk=True)
        for x in pre(4) + weave(nx[:-4], stores(4)) + nx[-4:]: e(x)
        for x in pre(5) + stores(5): e(x)

    def epilogue(self):
        e = self.e; opt = self.opt
        WA, RA, GA = V_T2, V_T3, V_OST
        PK = [SB[0], NEGM]
        RD = [160 - 160 + 0, 0]
        e(f"s_mul_i32 {s(S_T1)}, {s(S_W)}, {PRIV}")
        e(f"s_add_u32 {s(S_T1)}, {s(S_T1)}, {R * SLOT}")
        e(f"v_and_b32 {v(V_T0)}, 15, {v(V_LANE)}")
        e(f"v_lshrrev_b32 {v(V_T1)}, 4, {v(V_LANE)}")
        e(f"v_mul_u32_u24 {v(WA)}, 272, {v(V_T0)}")
        e(f"v_lshl_add_u32 {v(WA)}, {v(V_T1)}, 3, {v(WA)}")
        e(f"v_add_u32 {v(WA)}, {s(S_T1)}, {v(WA)}")
        e(f"v_mul_u32_u24 {v(RA)}, 272, {v(V_T1)}")
        e(f"v_lshl_add_u32 {v(RA)}, {v(V_T0)}, 4, {v(RA)}")
        e(f"v_add_u32 {v(RA)}, {s(S_T1)}, {v(RA)}")
        e(f"s_mul_i32 {s(S_T1)}, {s(S_W)}, {96 * 256}")
        e(f"v_lshlrev_b32 {v(GA)}, 4, {v(V_LANE)}")
        e(f"v_add_u32 {v(GA)}, {s(S_T1)}, {v(GA)}")
        def pack(t):
            L = L0 + t
            e(f"v_mov_b32 {v(V_T0)}, {v(L)}")
            e(f"v_mov_b32 {v(V_T1)}, {v(L)}")
            for dt in range(8):
                o = O(t, dt)
                e(f"v_pk_mul_f32 {v(o,2)}, {v(o,2)}, {v(V_T0,2)}")
                e(f"v_pk_mul_f32 {v(o+2,2)}, {v(o+2,2)}, {v(V_T0,2)}")
            for dt in range(8):
                o = O(t, dt)
                e(f"v_cvt_pk_bf16_f32 {v(o)}, {v(o)}, {v(o+1)}")
                e(f"v_cvt_pk_bf16_f32 {v(o+1)}, {v(o+2)}, {v(o+3)}")
                e(f"ds_write_b64 {v(WA)}, {v(o,2)} offset:{(t & 1) * STG + 32 * dt}")
        def unload(t):
            for k in range(4):
                e(f"ds_read_b128 {v(O(t, 0) + 4 * k, 4)}, {v(RA)} offset:{(t & 1) * STG + k * 4 * 272}")
        def store(t):
            e(f"s_mov_b32 {s(S_T0)}, {t * 4096}")
            for k in range(4):
                if not opt.get("nostore"):
                    e(f"buffer_store_dwordx4 {v(O(t, 0) + 4 * k, 4)}, {v(GA)}, {s(S_OSRD,4)}, {s(S_T0)} offen offset:{1024 * k}{self.stfl}")
        pack(0); unload(0)
        for t in range(1, 6):
            pack(t)
            e("s_waitcnt lgkmcnt(8)")
            store(t - 1)
            unload(t)
        e("s_waitcnt lgkmcnt(0)")
        store(5)

    def fallback(self):
        e = self.e
        FA, FB, FK, FV = V_T0, V_T1, V_T2, V_T3
        MX = L0
        self.lab("L_fallback")
        e("s_waitcnt vmcnt(0) lgkmcnt(0)")
        e("s_barrier")
        e(f"s_lshl_b32 {s(S_T0)}, {s(S_W)}, 11")
        e(f"v_subrev_u32 {v(FA)}, {s(S_T0)}, {v(V_OFFA)}")
        e(f"v_subrev_u32 {v(FB)}, {s(S_T0)}, {v(V_OFFB)}")
        e(f"s_mul_i32 {s(S_WOFF)}, {s(S_W)}, {SLOT}")
        e(f"v_add_u32 {v(FK)}, {s(S_WOFF)}, {v(V_KADDR)}")
        e(f"v_add_u32 {v(FV)}, {s(S_WOFF)}, {v(V_VADDR)}")
        def load_tile(with_v):
            for q in range(4):
                e(f"s_add_u32 m0, {s(S_WOFF)}, {q * QRT}")
                e(f"s_add_u32 {s(S_TOFF)}, {s(S_T1)}, {q * 2048}")
                for i in range(4 if with_v else 2): e(self.dma(i, FA, FB))
            e("s_waitcnt vmcnt(0)")
            for kt in range(2):
                for ks in range(4): e(self.kread(0, 0, kt, ks, FK))
            if with_v:
                for dt in range(8):
                    for hh in range(2): e(self.vread(0, 0, dt, hh, FV))
            e("s_waitcnt lgkmcnt(0)")
        for t in range(6): e(f"v_mov_b32 {v(MX+t)}, 0xff800000")
        e(f"s_mov_b32 {s(S_T1)}, 0")
        self.lab("L_fb1")
        load_tile(False)
        for t in range(6):
            for kt in range(2):
                for ks in range(4): e(self.qk(0, t, kt, ks))
            e("s_nop 7")
            e("s_nop 1")
            S = SB[t & 1]
            for i in range(0, 8, 2): e(f"v_max3_f32 {v(MX+t)}, {v(MX+t)}, {v(S+i)}, {v(S+i+1)}")
        e(f"s_add_u32 {s(S_T1)}, {s(S_T1)}, 8192")
        e(f"s_cmp_lt_u32 {s(S_T1)}, {NT * 8192}")
        e("s_cbranch_scc1 L_fb1")
        for x in self.lreduce("v_max_f32"):
            e(x); e("s_nop 1")
        for t in range(6):
            for r in range(4): e(f"v_sub_f32 {v(NEGM + 4*t + r)}, 0, {v(MX+t)}")
        for t in range(6): e(f"v_mov_b32 {v(L0+t)}, 0")
        for i in range(192): e(f"v_mov_b32 {v(i)}, 0")
        e(f"s_mov_b32 {s(S_T1)}, 0")
        self.lab("L_fb2")
        load_tile(True)
        for t in range(6):
            for kt in range(2):
                for ks in range(4): e(self.qk(0, t, kt, ks, v(NEGM + 4*t, 4)))
            e("s_nop 7")
            e("s_nop 1")
            S = SB[t & 1]; P = PB[t & 1]
            for i in range(8): e(f"v_exp_f32 {v(S+i)}, {v(S+i)}")
            e("s_nop 0")
            for i in range(8): e(f"v_add_f32 {v(L0+t)}, {v(L0+t)}, {v(S+i)}")
            for i in range(4): e(f"v_cvt_pk_bf16_f32 {v(P+i)}, {v(S+2*i)}, {v(S+2*i+1)}")
            e("s_nop 1")
            for dt in range(8): e(self.pv(0, t, dt))
        e(f"s_add_u32 {s(S_T1)}, {s(S_T1)}, 8192")
        e(f"s_cmp_lt_u32 {s(S_T1)}, {NT * 8192}")
        e("s_cbranch_scc1 L_fb2")
        for x in self.lreduce():
            e(x); e("s_nop 1")
        e("s_nop 7")
        if self.peel:
            for t in range(6): e(f"v_rcp_f32 {v(L0+t)}, {v(L0+t)}")
            self.epilogue()
            e("s_endpgm")
        else:
            e("s_branch L_norm")

if __name__ == "__main__":
    opt = {}
    out = sys.argv[1]
    for x in sys.argv[2:]:
        k, _, val = x.partition("=")
        opt[k] = eval(val) if val else True
    open(out, "w").write(Gen(opt).build())
```

```python
import re, sys

def regs(tok):
    tok = tok.strip().rstrip(',')
    m = re.fullmatch(r'([vas])\[(\d+):(\d+)\]', tok)
    if m: return {(m.group(1), i) for i in range(int(m.group(2)), int(m.group(3)) + 1)}
    m = re.fullmatch(r'([vas])(\d+)', tok)
    if m: return {(m.group(1), int(m.group(2)))}
    if tok in ('vcc', 'm0', 'exec'): return {('x', tok)}
    return set()

TRANS = ('v_exp_f32', 'v_rcp_f32', 'v_log_f32', 'v_rsq_f32', 'v_sqrt_f32')
class I:
    def __init__(self, line, n):
        self.line = line; self.n = n
        parts = line.split(None, 1)
        self.op = parts[0]
        ops = [x.strip() for x in parts[1].split(',')] if len(parts) > 1 else []
        if ops: ops[-1] = ops[-1].split()[0]
        self.ops = ops
        op = self.op
        self.mfma = op.startswith('v_mfma')
        self.valu = op.startswith('v_') and not self.mfma
        self.trans = op in TRANS
        self.ds = op.startswith('ds_')
        self.vmem = op.startswith('buffer_') or op.startswith('global_')
        self.salu = op.startswith('s_')
        self.lds_dma = self.vmem and line.rstrip().endswith(' lds')
        self.w = set(); self.r = set(); self.c = set()
        R = [regs(x) for x in ops]
        if self.mfma:
            self.w = R[0]; self.r = R[1] | R[2]; self.c = R[3]
        elif op.startswith('v_permlane') and 'swap' in op:
            self.w = R[0] | R[1]; self.r = R[0] | R[1]
        elif op.startswith('v_cmp'):
            self.w = R[0]; self.r = set().union(*R[1:])
        elif op in ('v_readfirstlane_b32', 'v_readlane_b32'):
            self.w = R[0]; self.r = R[1]
        elif op == 'v_writelane_b32':
            self.w = R[0]; self.r = R[0] | R[1]
        elif self.valu:
            self.w = R[0]; self.r = set().union(*R[1:]) if len(R) > 1 else set()
            if op.startswith('v_fmac') or 'dpp' in op: self.r |= R[0]
        elif self.ds:
            if 'read' in op: self.w = R[0]; self.r = R[1]
            else: self.r = set().union(*R)
        elif self.vmem:
            if 'store' in op: self.r = set().union(*R); self.sdata = R[0]
            elif self.lds_dma: self.r = set().union(*R) | {('x', 'm0')}
            else: self.w = R[0]; self.r = set().union(*R[1:])
        elif self.salu:
            if op.startswith(('s_cmp', 's_waitcnt', 's_nop', 's_barrier', 's_branch', 's_cbranch', 's_endpgm', 's_sleep')): pass
            elif R: self.w = R[0]; self.r = set().union(*R[1:]) if len(R) > 1 else set()
        self.states = 1
        if op == 's_nop': self.states = int(ops[0]) + 1

def pair_need(a, b):
    need = 0; why = ''
    if a.mfma:
        if b.mfma:
            if a.w & b.r: need, why = 8, 'MFMA D -> MFMA A/B'
            elif a.w & b.c and a.w != b.c: need, why = 6, 'MFMA D -> MFMA C partial'
        elif (b.valu or b.ds or b.vmem) and (a.w & (b.r | b.w)): need, why = 8, 'MFMA D -> VALU/mem'
        if b.valu and (a.c & b.w) and need < 3: need, why = 3, 'MFMA C read -> VALU write'
    if a.valu:
        if b.mfma and a.w & (b.r | b.c): need, why = max(need, 2), 'VALU -> MFMA operand'
        if a.trans and b.valu and not b.trans and a.w & b.r: need, why = max(need, 1), 'trans -> VALU'
        if b.op.startswith('v_permlane') and a.w & b.r: need, why = max(need, 2), 'VALU -> permlane'
        if b.op in ('v_readfirstlane_b32', 'v_readlane_b32') and a.w & b.r: need, why = max(need, 1), 'VALU -> readlane'
        sw = {x for x in a.w if x[0] in 'sx'}
        if sw and b.vmem and sw & b.r: need, why = max(need, 5), 'VALU sgpr -> VMEM'
        if sw and b.valu and sw & b.r: need, why = max(need, 2), 'VALU sgpr -> VALU const'
    if a.salu and ('x', 'm0') in a.w and b.lds_dma: need, why = max(need, 1), 'M0 -> LDS DMA'
    if a.vmem and 'store' in a.op and 'x4' in a.op and b.valu and a.sdata & b.w: need, why = max(need, 2), 'store data -> VALU write'
    return need, why

def required_pad(hist, b):
    dist = 0; pad = 0
    for a in reversed(hist):
        need, _ = pair_need(a, b)
        pad = max(pad, need - dist)
        dist += a.states
        if dist >= 12: break
    return pad

def check(trace, name):
    bad = 0
    for i, b in enumerate(trace):
        dist = 0
        for j in range(i - 1, max(-1, i - 40), -1):
            a = trace[j]
            need, why = pair_need(a, b)
            if need > dist:
                print(f"[{name}] line {b.n}: '{b.line}' needs {need} states after line {a.n}: '{a.line}' ({why}), has {dist}")
                bad += 1
            dist += a.states
            if dist >= 12: break
    return bad

def check_waits(trace, name):
    out = []; bad = 0
    for b in trace:
        if b.op == 's_waitcnt':
            m = re.search(r'lgkmcnt\((\d+)\)', b.line)
            if m:
                n = int(m.group(1))
                out = out[len(out) - n:] if n < len(out) else out
                if n == 0: out = []
            continue
        touched = b.r | b.w | b.c
        for a in out:
            if a.w & touched and not (b.ds and 'read' in b.op and not (a.w & b.r)):
                print(f"[{name}] line {b.n}: '{b.line}' touches the destination of line {a.n}: '{a.line}' before its wait")
                bad += 1
        if b.ds: out.append(b)
    return bad

def main(path):
    ins = []; labels = {}
    for n, raw in enumerate(open(path), 1):
        line = raw.split(';')[0].strip()
        if not line or line.startswith('.'): continue
        if line.endswith(':'):
            labels[line[:-1]] = len(ins); continue
        ins.append(I(line, n))
    def seg(a, b): return ins[a:b]
    def find_branch(op, target, start=0):
        for k in range(start, len(ins)):
            if ins[k].op == op and ins[k].ops and ins[k].ops[0] == target: return k
    kn = [k for k in labels if k.endswith('_kernel')][0]
    bad = 0
    end = labels['L_end']
    rb = find_branch('s_cbranch_scc1', 'L_loop')
    if rb is not None and 'L_it2' not in labels:
        loop = seg(labels['L_loop'], rb + 1)
        tr = seg(labels[kn], labels['L_loop']) + loop + loop + seg(rb + 1, end)
        bad += check(tr, 'all') + check_waits(tr, 'all')
    else:
        entry = 'L_it2' if find_branch('s_branch', 'L_it2') is not None else 'L_it1'
        eb = find_branch('s_branch', entry)
        lb = find_branch('s_branch', 'L_loop')
        xb = find_branch('s_cbranch_scc0', 'L_last')
        loop = seg(labels['L_loop'], lb)
        tr = seg(labels[kn], eb) + seg(labels[entry], lb) + loop + loop
        bad += check(tr, 'head+loop') + check_waits(tr, 'head+loop')
        bad += check(seg(labels['L_loop'], xb + 1) + seg(labels['L_last'], end), 'exit+tail')
        tr = loop + seg(labels['L_loop'], xb + 1) + seg(labels['L_last'], end)
        bad += check(tr, 'loop+exit+tail') + check_waits(tr, 'loop+exit+tail')
    if 'L_fallback' in labels:
        fb = labels['L_fallback']
        cb = find_branch('s_cbranch_scc0', 'L_fallback')
        l1, l2 = labels['L_fb1'], labels['L_fb2']
        b1 = find_branch('s_cbranch_scc1', 'L_fb1'); b2 = find_branch('s_cbranch_scc1', 'L_fb2')
        tr = seg(labels['L_last'], cb + 1) + seg(fb, b1) + seg(l1, b1 + 1) + seg(b1 + 1, b2) + seg(l2, b2 + 1) + seg(b2 + 1, len(ins))
        bad += check(tr, 'fallback') + check_waits(tr, 'fallback')
    print("hazards found:", bad)
    return bad

if __name__ == '__main__':
    sys.exit(1 if main(sys.argv[1]) else 0)
```

```python
import sys

KN = "standalone__mha_softmax__near_ridge_kernel"
M16 = "v_mfma_f32_16x16x32_bf16"
NT = 64
BLK = 1056
QRT = 4 * BLK
SLOT = 4 * QRT
R = 4
STG = 16 * 272
QBUF = 4 * BLK
PRIV = 2 * STG

def O(t, dt): return 32 * t + 4 * dt
SB = [192, 200]
PB = [208, 212]
L0 = 216
V_KADDR, V_VADDR, V_OFFA, V_OFFB = 222, 223, 224, 225
V_LANE, V_OST, V_T0, V_T1, V_T2, V_T3 = 226, 227, 228, 229, 230, 231
NEGM = 232
def AQ(t, ks): return 16 * t + 4 * ks
def AK(p, kt, ks): return 96 + 32 * p + 16 * kt + 4 * ks
def AV(p, dt): return 160 + 32 * p + 4 * dt

S_QSRD, S_KSRD, S_VSRD, S_OSRD = 4, 8, 12, 16
S_W, S_WOFF, S_TOFF, S_CNT, S_T0, S_T1, S_T2, S_T3 = 20, 21, 22, 23, 24, 25, 26, 27
S_WS = 28
S_PRIV = 88
S_CMP = 90
S_RST = 40
S_CST = 72

def v(a, n=1): return f"v{a}" if n == 1 else f"v[{a}:{a+n-1}]"
def a(x, n=1): return f"a{x}" if n == 1 else f"a[{x}:{x+n-1}]"
def s(x, n=1): return f"s{x}" if n == 1 else f"s[{x}:{x+n-1}]"

class Gen:
    def __init__(self, opt):
        self.o = []
        self.opt = opt
        self.LDS = R * SLOT + 4 * PRIV
        self.ldfl = opt.get("ldfl", " nt")
        self.qfl = opt.get("qfl", " nt")
        self.stfl = opt.get("stfl", " sc0 sc1 nt")
        self.inloop = False
        self.D = 3
        self.peel = opt.get('peel', True)
        self.tail2 = opt.get('tail2', True) and self.peel
        self.exitpos = (1 if self.tail2 else 2) if self.peel else 3
    def e(self, line): self.o.append("    " + line)
    def lab(self, name): self.o.append(name + ":")
    def c(self, txt): self.o.append("    ; " + txt)
    def nit(self):
        first = 2 if self.opt.get("hd", "2") == "2" else 1
        last = 63 if not self.peel else (61 if self.tail2 else 62)
        if self.opt.get("xu8"): return 56
        return last - first + 1
    def capture(self, fn):
        saved = self.o; self.o = []
        fn()
        lines = [x.strip() for x in self.o]; self.o = saved
        return lines
    def stamp(self, idx, cyc=None):
        if self.opt.get("stamp"):
            self.e(f"s_memrealtime {s(S_RST + 2 * idx, 2)}")
            if cyc is not None: self.e(f"s_memtime {s(S_CST + 2 * cyc, 2)}")

    def dma(self, i, va=V_OFFA, vb=V_OFFB):
        srd = S_KSRD if i < 2 else S_VSRD
        off = f" offset:{i * BLK}" if i else ""
        return f"buffer_load_dwordx4 {v(va if i % 2 == 0 else vb)}, {s(srd,4)}, {s(S_TOFF)} offen{off}{self.ldfl} lds"
    def m0set(self, slot): return f"s_add_u32 m0, {s(S_WOFF)}, {slot * SLOT}"
    def kread(self, p, slot, kt, ks, addr=V_KADDR):
        return f"ds_read_b128 {a(AK(p, kt, ks), 4)}, {v(addr)} offset:{slot * SLOT + kt * 2 * QRT + 256 * ks}"
    def vread(self, p, slot, dt, hh, addr=V_VADDR):
        return f"ds_read_b64_tr_b16 {a(AV(p, dt) + 2 * hh, 2)}, {v(addr)} offset:{slot * SLOT + hh * 2 * QRT + 256 * (dt >> 1) + 32 * (dt & 1)}"
    def qk(self, p, t, kt, ks, cinit="0", sb=None):
        d = v(SB[t & 1 if sb is None else sb] + 4 * kt, 4)
        first = ks == 0
        if self.opt.get("rev", True) and kt == 1: ks = 3 - ks
        return f"{M16} {d}, {a(AK(p, kt, ks), 4)}, {a(AQ(t, ks), 4)}, {cinit if first else d}"
    def pv(self, p, t, dt, pb=None, first=False):
        d = v(O(t, dt), 4)
        return f"{M16} {d}, {a(AV(p, dt), 4)}, {v(PB[t & 1 if pb is None else pb], 4)}, {'0' if first else d}"

    def period(self, j, t, lds, shadow, do_qk=True, do_pv=True, extras=None, bp=None):
        jq, tq = (j, t + 1) if t < 5 else (j + 1, 0)
        jp, tp = (j, t - 1) if t > 0 else (j - 1, 5)
        self.period_x((jq & 1, tq, tq & 1) if do_qk else None, (t, t & 1), (jp & 1, tp, tp & 1) if do_pv else None, lds, shadow, extras, bp)

    def period_x(self, qkb, sm, pvb, lds, shadow, extras=None, bp=None):
        Q = [self.qk(qkb[0], qkb[1], kt, ks, sb=qkb[2]) if qkb else None for kt in range(2) for ks in range(4)]
        V = [self.pv(pvb[0], pvb[1], dt, pb=pvb[2], first=len(pvb) > 3 and pvb[3]) if pvb else None for dt in range(8)]
        if self.opt.get("order", "88") == "4444": mf = Q[0:4] + V[0:4] + Q[4:8] + V[4:8]
        else: mf = Q + V
        t, sb = sm
        S = SB[sb]; P = PB[sb]; L = L0 + t
        e64 = self.opt.get("e64", "")
        ex = lambda i: f"v_exp_f32{'_e64' if 'e' in e64 else ''} {v(S+i)}, {v(S+i)}"
        ad = lambda i: f"v_add_f32{'_e64' if 'a' in e64 else ''} {v(L)}, {v(L)}, {v(S+i)}"
        cv = lambda i: f"v_cvt_pk_bf16_f32 {v(P+i)}, {v(S+2*i)}, {v(S+2*i+1)}"
        lds = list(lds) + [None] * (4 - len(lds))
        fill = {0: [ex(0)], 1: [ex(1)], 2: [lds[0], ad(0)], 3: [ex(2)], 4: [ad(1), cv(0)], 5: [ex(3)],
                6: [lds[1], ad(2)], 7: [ex(4)], 8: [ad(3), cv(1)], 9: [ex(5)], 10: [lds[2], ad(4)],
                11: [ex(6)], 12: [ad(5), cv(2)], 13: [ex(7)], 14: [lds[3], ad(6)], 15: [ad(7), cv(3)]}
        if bp:
            LP = NEGM + 16 + 2 * t
            fill[6] = [lds[1], cv(1)]
            fill[8] = [bp, f"v_pk_add_f32 {v(LP,2)}, {v(LP,2)}, {v(S+2,2)}"]
        abl = self.opt.get("abl", "") if self.inloop else ""
        for g in range(16):
            if mf[g]: self.e(mf[g])
            for x in shadow.get(g, []):
                if 'D' in abl and x.startswith("buffer_load"): continue
                if 'B' in abl and x.startswith("s_barrier"): continue
                self.e(x)
            for x in fill[g]:
                if x is None: continue
                if 'e' in abl and x.startswith("v_exp"): continue
                if 'a' in abl and x.startswith("v_add"): continue
                if 'c' in abl and x.startswith("v_cvt"): continue
                if 'l' in abl and x.startswith("ds_read"): continue
                self.e(x)
            if extras:
                n = len(extras)
                for x in extras[g * n // 16:(g + 1) * n // 16]: self.e(x)

    def iteration(self, j):
        self.c(f"---- iteration j%R={j % R}")
        p1 = (j + 1) & 1
        s1 = (j + 1) % R
        K = [self.kread(p1, s1, kt, ks) for kt in range(2) for ks in range(4)]
        V = [self.vread(p1, s1, dt, hh) for dt in range(8) for hh in range(2)]
        sched = [K[0:4], [K[4]] + V[0:3], [K[5]] + V[3:6], [K[6]] + V[6:9], [K[7]] + V[9:12], V[12:16]]
        sl = (j + self.D) % R
        bpm = self.opt.get("bp", False)
        pos = self.opt.get("dmapos", {0: [(1, 'm')], 3: [(11, 'inc')]} if bpm else {0: [(1, 'm'), (3, 0)], 1: [(3, 1)], 2: [(3, 2)], 3: [(3, 3), (5, 'inc')]})
        for t in range(6):
            sh = {}
            if t == 0:
                sh[0] = [f"s_waitcnt vmcnt({self.opt.get('xvm', 4 * (self.D - 2))})", "s_barrier"]
                if self.opt.get("xb2") and j % 2 == 0: sh[0] = []
            if t == 1: sh[0] = ["s_waitcnt lgkmcnt(4)"]
            if t == 4: sh[15] = ["s_waitcnt lgkmcnt(3)"]
            for (g, what) in pos.get(t, []):
                if what == 'm': ins = self.m0set(sl)
                elif what == 'inc': ins = f"s_add_u32 {s(S_TOFF)}, {s(S_TOFF)}, 8192"
                else: ins = self.dma(what)
                sh.setdefault(g, []).append(ins)
            if t == 5 and j % R == self.exitpos:
                sh.setdefault(3, []).append(f"s_sub_u32 {s(S_CNT)}, {s(S_CNT)}, 1")
                sh.setdefault(5, []).append(f"s_cmp_lg_u32 {s(S_CNT)}, 0")
            self.period(j, t, sched[t], sh, bp=(self.dma(t) if bpm and t < 4 else None))

    def lreduce(self, op="v_add_f32", regs=None):
        regs = regs or [L0 + t for t in range(6)]
        red = []
        for t in range(6): red.append(f"v_mov_b32 {v(NEGM+t)}, {v(regs[t])}")
        for t in range(6): red.append(f"v_permlane32_swap_b32 {v(regs[t])}, {v(NEGM+t)}")
        for t in range(6): red.append(f"{op} {v(regs[t])}, {v(regs[t])}, {v(NEGM+t)}")
        for t in range(6): red.append(f"v_mov_b32 {v(NEGM+t)}, {v(regs[t])}")
        for t in range(6): red.append(f"v_permlane16_swap_b32 {v(regs[t])}, {v(NEGM+t)}")
        for t in range(6): red.append(f"{op} {v(regs[t])}, {v(regs[t])}, {v(NEGM+t)}")
        return red

    def build(self):
        opt = self.opt
        e = self.e
        self.o.append(f"""; MHA forward (softmax(Q K^T / sqrt(D)) V), B=8 H=32 Sq=384 Sk=2048 D=128, bf16 in / bf16 out.
; @launch grid=(256,1,1) block=(256,1,1) lds={self.LDS}
;
.amdgcn_target "amdgcn-amd-amdhsa--gfx950"
.text
.globl {KN}
.p2align 8
.type {KN},@function
{KN}:""")
        e("s_load_dwordx4 s[32:35], s[0:1], 0")
        e("s_load_dwordx4 s[36:39], s[0:1], 16")
        e("s_cmpk_ge_u32 s2, 0x100")
        e("s_cbranch_scc1 L_end")
        self.stamp(0)
        for _ in range(opt.get("sleep0", 0)): e("s_sleep 32")
        QV = NEGM + 8
        X = QV + 3
        e(f"v_lshrrev_b32 {v(V_T1)}, 6, v0")
        e(f"v_bfe_u32 {v(V_T2)}, v0, 2, 2")
        e(f"v_bfe_u32 {v(V_T0)}, v0, 4, 2")
        e(f"v_readfirstlane_b32 {s(S_W)}, {v(V_T1)}")
        e(f"v_and_b32 {v(V_T3)}, 3, v0")
        e(f"v_lshlrev_b32 {v(X)}, 8, {v(V_T2)}")
        e(f"v_lshl_add_u32 {v(X)}, {v(V_T0)}, 6, {v(X)}")
        e(f"v_lshl_add_u32 {v(X)}, {v(V_T3)}, 4, {v(X)}")
        if opt.get("dmalin"):
            e(f"v_and_b32 {v(X)}, 63, v0"); e(f"v_lshlrev_b32 {v(X)}, 4, {v(X)}")
        e(f"s_lshl_b32 {s(S_T0)}, {s(S_W)}, {10 if opt.get('xdma') else 11}")
        e(f"s_mul_i32 {s(S_WOFF)}, {s(S_W)}, {QRT}")
        e(f"v_add_u32 {v(V_OFFB)}, {s(S_T0)}, {v(X)}")
        e(f"v_add_u32 {v(V_OFFA)}, 32, {v(V_OFFB)}")
        if opt.get('xdma'): e(f"v_add_u32 {v(V_OFFB)}, 3072, {v(V_OFFB)}")
        e(f"s_mul_i32 {s(S_T0)}, {s(S_W)}, {96 * 256}")
        e(f"v_add_u32 {v(QV+3)}, {s(S_T0)}, {v(X)}")
        e(f"v_add_u32 {v(QV+2)}, 32, {v(QV+3)}")
        e(f"v_add_u32 {v(QV+1)}, 32, {v(QV+2)}")
        e(f"v_add_u32 {v(QV)}, 32, {v(QV+1)}")
        e(f"s_mul_i32 {s(S_PRIV)}, {s(S_W)}, {PRIV}")
        e(f"s_add_u32 {s(S_PRIV)}, {s(S_PRIV)}, {R * SLOT}")
        if opt.get("remap", False):
            e(f"s_and_b32 {s(S_T0)}, s2, 7")
            e(f"s_lshl_b32 {s(S_T0)}, {s(S_T0)}, 5")
            e(f"s_lshr_b32 {s(S_T1)}, s2, 3")
            e(f"s_add_u32 s2, {s(S_T0)}, {s(S_T1)}")
        e(f"s_mul_i32 {s(S_T0)}, s2, 98304")
        e(f"s_lshl_b32 {s(S_T1)}, s2, 19")
        e(f"s_mov_b32 {s(S_KSRD+3)}, 0x20000")
        e(f"s_mov_b32 {s(S_KSRD+2)}, {524288 + 32}")
        e(f"s_mov_b32 {s(S_QSRD+3)}, {s(S_KSRD+3)}")
        e(f"s_mov_b32 {s(S_QSRD+2)}, {s(S_KSRD+2)}")
        e(f"s_mov_b32 {s(S_VSRD+3)}, {s(S_KSRD+3)}")
        e(f"s_mov_b32 {s(S_VSRD+2)}, {s(S_KSRD+2)}")
        e(f"s_mov_b32 {s(S_TOFF)}, 0")
        e(f"s_mov_b32 m0, {s(S_WOFF)}")
        e("s_waitcnt lgkmcnt(0)")
        if opt.get("fine"): self.stamp(1)
        e(f"s_add_u32 {s(S_KSRD)}, s34, {s(S_T1)}")
        e(f"s_addc_u32 {s(S_KSRD+1)}, s35, 0")
        e(f"s_sub_u32 {s(S_KSRD)}, {s(S_KSRD)}, 32")
        e(f"s_subb_u32 {s(S_KSRD+1)}, {s(S_KSRD+1)}, 0")
        vm = []
        e(self.dma(0)); e(self.dma(1)); vm += ["K0", "K0"]
        if opt.get("fine"): self.stamp(3)
        e(f"s_add_u32 {s(S_QSRD)}, s32, {s(S_T0)}")
        e(f"s_addc_u32 {s(S_QSRD+1)}, s33, 0")
        e(f"s_sub_u32 {s(S_QSRD)}, {s(S_QSRD)}, 96")
        e(f"s_subb_u32 {s(S_QSRD+1)}, {s(S_QSRD+1)}, 0")
        QPLACE = {0: ('p', 0), 1: ('p', STG), 2: ('r', 2 * SLOT), 3: ('r', 3 * SLOT), 4: ('p', 0), 5: ('p', STG)}
        def qload(t, pad=None):
            kind, off_ = QPLACE[t]
            base = s(S_PRIV if kind == 'p' else S_WOFF)
            e(f"s_add_u32 m0, {base}, {off_}" if off_ else f"s_mov_b32 m0, {base}")
            if t == 0: e(pad or "s_nop 0")
            else: e(f"s_movk_i32 {s(S_T3)}, {t * 4096}")
            for b in range(4):
                off = f" offset:{b * BLK}" if b else ""
                e(f"buffer_load_dwordx4 {v(QV+b)}, {s(S_QSRD,4)}, {s(S_TOFF if t == 0 else S_T3)} offen{off}{self.qfl} lds")
                vm.append(f"Q{t}")
        qload(0, pad=f"s_add_u32 {s(S_VSRD)}, s36, {s(S_T1)}")
        if opt.get("fine"): self.stamp(4)
        e(f"s_addc_u32 {s(S_VSRD+1)}, s37, 0")
        e(f"s_sub_u32 {s(S_VSRD)}, {s(S_VSRD)}, 2144")
        e(f"s_mov_b32 m0, {s(S_WOFF)}")
        e(f"s_subb_u32 {s(S_VSRD+1)}, {s(S_VSRD+1)}, 0")
        e(self.dma(2)); e(self.dma(3)); vm += ["V0", "V0"]
        if opt.get("fine"): self.stamp(5)
        if opt.get("hd", "2") == "2":
            e(f"s_add_u32 m0, {s(S_WOFF)}, {SLOT}")
            e(f"s_movk_i32 {s(S_TOFF)}, 0x2000")
            for i in range(4): e(self.dma(i))
            vm += ["K1", "K1", "V1", "V1"]
        else:
            qload(1)
        self.stamp(2, 0)
        if opt.get("stamp") and not opt.get("fine"): self.stamp(1)
        e(f"s_mov_b32 {s(S_QSRD+2)}, {98304 + 96}")
        e(f"s_mov_b32 {s(S_VSRD+2)}, {524288 + 2144}")
        e(f"s_mov_b32 {s(S_OSRD+2)}, 98304")
        e(f"s_mov_b32 {s(S_OSRD+3)}, {s(S_KSRD+3)}")
        e(f"s_add_u32 {s(S_OSRD)}, s38, {s(S_T0)}")
        e(f"s_addc_u32 {s(S_OSRD+1)}, s39, 0")
        e(f"v_and_b32 {v(V_LANE)}, 63, v0")
        def dma_half(tile, kv):
            e(f"s_mov_b32 {s(S_TOFF)}, {tile * 8192}")
            e(self.m0set(tile % R))
            e("s_nop 0")
            for i in ((0, 1) if kv == 'K' else (2, 3)): e(self.dma(i))
            vm.extend([f"{kv}{tile}"] * 2)
        def wait_for(lbl):
            last = max(i for i, x in enumerate(vm) if x == lbl)
            e(f"s_waitcnt vmcnt({len(vm) - 1 - last})")
        TMPC = NEGM
        QA = NEGM + 12
        two = opt.get("hd", "2") == "2"
        def qread(t):
            land = (O(5, 0) + (16 if t == 5 else 0)) if two else O(t, 0)
            wait_for(f"Q{t}")
            if not opt.get("fs") and not opt.get("fst"): self.stamp(3 + t)
            for ks in range(4):
                kind, off_ = QPLACE[t]
                e(f"ds_read_b128 {v(land + 4 * ks, 4)}, {v(QA if kind == 'p' else QA + 2)} offset:{off_ + 256 * ks}")
        def qcvt(t, after_read=None):
            land = (O(5, 0) + (16 if t == 5 else 0)) if two else O(t, 0)
            e("s_waitcnt lgkmcnt(0)")
            if after_read: after_read()
            for i in range(16):
                x = land + i
                lo = TMPC + 2 * (i % 4); hi = lo + 1
                e(f"v_lshlrev_b32 {v(lo)}, 16, {v(x)}")
                e(f"v_and_b32 {v(hi)}, {s(S_T2)}, {v(x)}")
                e(f"v_pk_mul_f32 {v(lo,2)}, {v(lo,2)}, {v(V_T0,2)}")
                e(f"v_cvt_pk_bf16_f32 {v(lo)}, {v(lo)}, {v(hi)}")
                e(f"v_accvgpr_write_b32 {a(AQ(t,0)+i)}, {v(lo)}")
                if not two: e(f"v_mov_b32 {v(x)}, 0")
        def qconv(t, after_read=None):
            qread(t); qcvt(t, after_read)
        e(f"v_lshrrev_b32 {v(V_KADDR)}, 1, {v(V_T2)}")
        e(f"v_mul_u32_u24 {v(V_KADDR)}, {QRT}, {v(V_KADDR)}")
        e(f"v_and_b32 {v(V_VADDR)}, 1, {v(V_T2)}")
        e(f"v_mul_u32_u24 {v(V_VADDR)}, {BLK}, {v(V_VADDR)}")
        e(f"v_add_u32 {v(V_KADDR)}, {v(V_KADDR)}, {v(V_VADDR)}")
        e(f"v_lshl_add_u32 {v(V_KADDR)}, {v(V_T3)}, 6, {v(V_KADDR)}")
        e(f"v_lshl_add_u32 {v(V_KADDR)}, {v(V_T0)}, 4, {v(V_KADDR)}")
        e(f"v_mul_u32_u24 {v(QA)}, {BLK}, {v(V_T2)}")
        e(f"v_lshl_add_u32 {v(QA)}, {v(V_T3)}, 6, {v(QA)}")
        e(f"v_lshl_add_u32 {v(QA)}, {v(V_T0)}, 4, {v(QA)}")
        e(f"v_add_u32 {v(QA+2)}, {s(S_WOFF)}, {v(QA)}")
        e(f"v_add_u32 {v(QA)}, {s(S_PRIV)}, {v(QA)}")
        e(f"v_lshrrev_b32 {v(V_VADDR)}, 1, {v(V_T0)}")
        e(f"v_mul_u32_u24 {v(V_VADDR)}, {QRT}, {v(V_VADDR)}")
        e(f"v_and_b32 {v(V_T1)}, 1, {v(V_T0)}")
        e(f"v_mul_u32_u24 {v(NEGM+13)}, {BLK}, {v(V_T1)}")
        e(f"v_add_u32 {v(V_VADDR)}, {v(V_VADDR)}, {v(NEGM+13)}")
        e(f"v_lshl_add_u32 {v(V_VADDR)}, {v(V_T2)}, 6, {v(V_VADDR)}")
        e(f"v_lshl_add_u32 {v(V_VADDR)}, {v(V_T3)}, 3, {v(V_VADDR)}")
        e(f"v_add_u32 {v(V_VADDR)}, {2 * BLK}, {v(V_VADDR)}")
        for i in range(6): e(f"v_mov_b32 {v(L0+i)}, 0")
        if opt.get("hd", "2") != "2":
            for i in range(4): e(f"v_mov_b32 {v(PB[1]+i)}, 0")
            for i in range(32): e(f"v_accvgpr_write_b32 {a(AV(1,0)+i)}, 0")
        if opt.get("hd", "2") == "2":
            pass
        else:
            for t in range(6):
                for i in range(16, 32): e(f"v_mov_b32 {v(O(t,0)+i)}, 0")
        self.epi_addr()
        if opt.get("bp", False):
            for i in range(8): e(f"v_mov_b32 {v(NEGM+16+i)}, 0")
        e(f"s_mov_b32 {s(S_T1)}, 0x3e0293ee")
        e(f"v_mov_b32 {v(V_T0)}, {s(S_T1)}")
        e(f"v_mov_b32 {v(V_T1)}, {s(S_T1)}")
        e(f"s_mov_b32 {s(S_T2)}, 0xffff0000")
        hd = opt.get("hd", "2")
        if hd == "2":
            Kf = lambda tile: [self.kread(tile & 1, tile % R, kt, ks) for kt in range(2) for ks in range(4)]
            Vf = lambda tile: [self.vread(tile & 1, tile % R, dt, hh) for dt in range(8) for hh in range(2)]
            def tile_dma(tile): dma_half(tile, 'K'); dma_half(tile, 'V')
            qload(1)
            qconv(0, lambda: qload(2))
            wait_for("V1")
            e("s_barrier")
            for x in Kf(0) + Kf(1): e(x)
            e("s_waitcnt lgkmcnt(8)")
            V0r = Vf(0)
            for kt in range(2):
                for ks in range(4):
                    e(self.qk(0, 0, kt, ks, sb=0))
                    for x in V0r[8 * kt + 2 * ks: 8 * kt + 2 * ks + 2]: e(x)
            e("s_waitcnt lgkmcnt(15)")
            qload(3)
            K2 = Kf(2)
            for n in range(12):
                nq = n + 1
                lds = []; extras = []; sh = {}
                if n % 2 == 0 and n // 2 + 1 <= 5 and n > 0: qread(n // 2 + 1)
                if nq < 12 and nq % 2 == 0:
                    tq = nq >> 1
                    if tq == 1: qread(1)
                    qcvt(tq)
                    e("s_nop 1")
                    if tq == 1: extras = self.capture(lambda: qload(4))
                    if tq == 2: extras = self.capture(lambda: qload(5))
                    if tq == 3: extras = self.capture(lambda: tile_dma(2))
                    if tq == 4: extras = self.capture(lambda: tile_dma(3))
                if n == 0: extras = Vf(1)
                if n == 9:
                    wait_for("K2")
                    e("s_barrier")
                    if not opt.get("fs") and not opt.get("fst"): self.stamp(9)
                    lds = [None, None, K2[0], K2[1]]
                if n == 10:
                    lds = K2[2:6]
                    sh = {1: [K2[6]], 3: [K2[7]]}
                    extras = self.capture(lambda: tile_dma(4))
                if n == 11:
                    wait_for("V2")
                    e("s_waitcnt lgkmcnt(0)")
                    e("s_barrier")
                    V2 = Vf(2)
                    for dt in range(7): sh[9 + dt] = V2[2 * dt: 2 * dt + 2]
                qkb = (nq & 1, nq >> 1, nq & 1) if nq < 12 else (0, 0, 0)
                pvb = ((n - 1) & 1, (n - 1) >> 1, (n - 1) & 1, (n - 1) % 2 == 0) if n >= 1 else None
                self.period_x(qkb, (n >> 1, n & 1), pvb, lds, sh, extras)
            for x in Vf(2)[14:16]: e(x)
            e(f"s_mov_b32 {s(S_TOFF)}, {5 * 8192}")
            self.stamp(10, 1)
            e(f"s_mov_b32 {s(S_CNT)}, {30 if opt.get('xu2') else (7 if opt.get('xu8') else (15 if self.tail2 else 16))}")
            if not (opt.get("rot", True) and self.tail2 and not opt.get("xu2")): e("s_branch L_it2")
        else:
            fs = opt.get("fs")
            def fstamp(i):
                if fs and not (opt.get("fine") and i in (3, 4, 5)): self.stamp(i)
            qload(2)
            fstamp(3)
            if hd == "d":
                qconv(0, lambda: (fstamp(4), qload(3), fstamp(5)))
                fstamp(6)
            else:
                qconv(0, lambda: qload(3))
                qload(4)
            wait_for("V0")
            fstamp(7)
            e("s_barrier")
            fstamp(8)
            for kt in range(2):
                for ks in range(4): e(self.kread(0, 0, kt, ks))
            for dt in range(8):
                for hh in range(2): e(self.vread(0, 0, dt, hh))
            if hd != "d":
                qload(5)
                dma_half(1, 'K'); dma_half(1, 'V')
            e("s_waitcnt lgkmcnt(15)")
            for kt in range(2):
                for ks in range(4): e(self.qk(0, 0, kt, ks))
            fstamp(9)
            K1 = [self.kread(1, 1 % R, kt, ks) for kt in range(2) for ks in range(4)]
            V1 = [self.vread(1, 1 % R, dt, hh) for dt in range(8) for hh in range(2)]
            for t in range(6):
                if t + 1 <= 5:
                    def after(t=t):
                        if hd == "d":
                            if t == 0: qload(4)
                            if t == 1: qload(5)
                            if t == 2: dma_half(1, 'K'); dma_half(1, 'V')
                            if t == 3: dma_half(2, 'K'); dma_half(2, 'V')
                        else:
                            if t == 2: dma_half(2, 'K'); dma_half(2, 'V')
                            if t == 3: dma_half(3, 'K'); dma_half(3, 'V')
                    qconv(t + 1, after)
                    e("s_nop 1")
                if t == 0: e("s_waitcnt lgkmcnt(0)")
                if t == 5:
                    wait_for("K1")
                    e("s_barrier")
                    if not opt.get("fs"): self.stamp(9)
                    for x in K1: e(x)
                    e("s_waitcnt lgkmcnt(0)")
                self.period(0, t, [], {}, do_pv=True)
            wait_for("V1")
            e("s_barrier")
            for x in V1: e(x)
            if hd == "d":
                dma_half(3, 'K'); dma_half(3, 'V')
            e(f"s_mov_b32 {s(S_TOFF)}, {(self.D + 1) * 8192}")
            self.stamp(10, 1)
            e(f"s_mov_b32 {s(S_CNT)}, {NT // R}")
            e("s_branch L_it1")
        rot = opt.get("rot", True) and opt.get("hd", "2") == "2" and self.tail2 and not opt.get("xu2")
        e(".p2align 6")
        self.lab("L_loop")
        self.inloop = True
        if rot:
            if opt.get("xu8"):
                for j in (2, 3, 0, 1):
                    self.exitpos = -1
                    self.iteration(j)
                self.exitpos = 1
            for j in (2, 3, 0, 1): self.iteration(j)
            e("s_cbranch_scc1 L_loop")
        else:
            if opt.get("xu2"):
                self.lab("L_it1")
                self.iteration(1)
                e("s_cbranch_scc0 L_last")
                self.lab("L_it2")
                self.iteration(2)
                e(f"v_add_u32 {v(V_KADDR)}, 0, {v(V_KADDR)}")
                e(f"v_add_u32 {v(V_VADDR)}, 0, {v(V_VADDR)}")
            for j in (range(R) if not opt.get("xu2") else []):
                if j == 1: self.lab("L_it1")
                if j == 2: self.lab("L_it2")
                self.iteration(j)
                if self.peel and j == self.exitpos: e("s_cbranch_scc0 L_last")
            if self.peel: e("s_branch L_loop")
            else: e("s_cbranch_scc1 L_loop")
        self.inloop = False
        if self.peel:
            self.lab("L_last")
            self.stamp(11, 2)
            self.last_iteration()
        else:
            self.stamp(11, 2)
            red = self.lreduce()
            e("s_nop 1")
            for dt in range(8):
                e(self.pv(63 & 1, 5, dt))
                for x in red[2*dt:2*dt+2]: e(x)
            for x in red[16:]: e(x)
            self.check()
            self.lab("L_norm")
            for t in range(6): e(f"v_rcp_f32 {v(L0+t)}, {v(L0+t)}")
            self.stamp(12, 3)
            self.epilogue()
        self.stamp(13, 4)
        if opt.get("stamp") and opt.get("dbg") is None:
            e("s_waitcnt vmcnt(0)")
            self.stamp(14, 5)
            e(f"s_load_dwordx2 {s(S_WS,2)}, s[0:1], 40")
            e("s_waitcnt lgkmcnt(0)")
            e(f"s_mov_b32 {s(S_WS+2)}, 0x20000000")
            e(f"s_mov_b32 {s(S_WS+3)}, 0x20000")
            e(f"v_mov_b32 {v(V_T0)}, 0")
            for i in range(16): e(f"v_writelane_b32 {v(V_T0)}, {s(S_RST + 2*i)}, {i}")
            for i in range(8): e(f"v_writelane_b32 {v(V_T0)}, {s(S_CST + 2*i)}, {16+i}")
            e(f"s_lshl_b32 {s(S_T0)}, s2, 2")
            e(f"s_add_u32 {s(S_T0)}, {s(S_T0)}, {s(S_W)}")
            e(f"s_lshl_b32 {s(S_T0)}, {s(S_T0)}, 8")
            e(f"v_lshlrev_b32 {v(V_T1)}, 2, {v(V_LANE)}")
            e(f"buffer_store_dword {v(V_T0)}, {v(V_T1)}, {s(S_WS,4)}, {s(S_T0)} offen")
        if opt.get("dbg") is not None:
            e("s_waitcnt vmcnt(0)")
            self.stamp(14, 5)
            e(f"s_load_dwordx2 {s(S_WS,2)}, s[0:1], 32")
            e("s_waitcnt lgkmcnt(0)")
            e(f"s_cmp_lg_u32 s2, {opt['dbg']}")
            e("s_cbranch_scc1 L_end")
            e(f"s_cmp_lg_u32 {s(S_W)}, 0")
            e("s_cbranch_scc1 L_end")
            e(f"s_mov_b32 {s(S_WS+2)}, 256")
            e(f"s_mov_b32 {s(S_WS+3)}, 0x20000")
            e(f"v_mov_b32 {v(V_T0)}, 0")
            for i in range(1, 15):
                e(f"s_sub_u32 {s(S_T0)}, {s(S_RST + 2*i)}, {s(S_RST)}")
                e(f"v_writelane_b32 {v(V_T0)}, {s(S_T0)}, {i - 1}")
            e(f"s_sub_u32 {s(S_T0)}, {s(S_CST + 4)}, {s(S_CST + 2)}")
            e(f"v_writelane_b32 {v(V_T0)}, {s(S_T0)}, 14")
            e(f"s_sub_u32 {s(S_T0)}, {s(S_CST + 10)}, {s(S_CST)}")
            e(f"v_writelane_b32 {v(V_T0)}, {s(S_T0)}, 15")
            e(f"v_lshlrev_b32 {v(V_T1)}, 2, {v(V_LANE)}")
            e(f"buffer_store_dword {v(V_T0)}, {v(V_T1)}, {s(S_WS,4)}, 0 offen")
        for _ in range(opt.get("sleep1", 0)): e("s_sleep 32")
        self.lab("L_end")
        e("s_endpgm")
        if not opt.get("nocheck"): self.fallback()
        self.o.append(f""".section .rodata,"a"
.p2align 6
.amdhsa_kernel {KN}
  .amdhsa_next_free_vgpr 512
  .amdhsa_next_free_sgpr 102
  .amdhsa_accum_offset 256
  .amdhsa_group_segment_fixed_size 0
  .amdhsa_kernarg_size 48
  .amdhsa_user_sgpr_count 2
  .amdhsa_user_sgpr_kernarg_segment_ptr 1
  .amdhsa_system_sgpr_workgroup_id_x 1
.end_amdhsa_kernel""")
        return self.pad_hazards("\n".join(self.o) + "\n")

    def check(self):
        if self.opt.get("nocheck"): return
        e = self.e
        e(f"v_max3_f32 {v(NEGM)}, {v(L0)}, {v(L0+1)}, {v(L0+2)}")
        e(f"v_min3_f32 {v(NEGM+1)}, {v(L0)}, {v(L0+1)}, {v(L0+2)}")
        e(f"v_max3_f32 {v(NEGM)}, {v(NEGM)}, {v(L0+3)}, {v(L0+4)}")
        e(f"v_min3_f32 {v(NEGM+1)}, {v(NEGM+1)}, {v(L0+3)}, {v(L0+4)}")
        e(f"v_max_f32 {v(NEGM)}, {v(NEGM)}, {v(L0+5)}")
        e(f"v_min_f32 {v(NEGM+1)}, {v(NEGM+1)}, {v(L0+5)}")
        e(f"s_mov_b32 {s(S_T1)}, 0x53800000")
        e(f"s_mov_b32 {s(S_T3)}, 0x37800000")
        e(f"v_cmp_ge_f32 vcc, {s(S_T1)}, {v(NEGM)}")
        e(f"v_cmp_le_f32 {s(S_CMP,2)}, {s(S_T3)}, {v(NEGM+1)}")
        e(f"s_and_b64 vcc, vcc, {s(S_CMP,2)}")
        e("s_cmp_eq_u64 vcc, -1")
        e("s_cbranch_scc0 L_fallback")

    def epi_addr(self):
        e = self.e
        WA, RA, GA = V_T2, V_T3, V_OST
        e(f"v_and_b32 {v(NEGM+16)}, 15, {v(V_LANE)}")
        e(f"v_lshrrev_b32 {v(NEGM+17)}, 4, {v(V_LANE)}")
        e(f"v_mul_u32_u24 {v(WA)}, 272, {v(NEGM+16)}")
        e(f"v_lshl_add_u32 {v(WA)}, {v(NEGM+17)}, 3, {v(WA)}")
        e(f"v_add_u32 {v(WA)}, {s(S_PRIV)}, {v(WA)}")
        e(f"v_mul_u32_u24 {v(RA)}, 272, {v(NEGM+17)}")
        e(f"v_lshl_add_u32 {v(RA)}, {v(NEGM+16)}, 4, {v(RA)}")
        e(f"v_add_u32 {v(RA)}, {s(S_PRIV)}, {v(RA)}")
        e(f"s_mul_i32 {s(S_T1)}, {s(S_W)}, {96 * 256}")
        e(f"v_lshlrev_b32 {v(GA)}, 4, {v(V_LANE)}")
        e(f"v_add_u32 {v(GA)}, {s(S_T1)}, {v(GA)}")

    def last_iteration(self):
        e = self.e; opt = self.opt
        WA, RA, GA = V_T2, V_T3, V_OST
        RC = NEGM + 8
        def lred(t):
            L, T = L0 + t, NEGM + t
            fold = [f"v_add_f32 {v(L)}, {v(L)}, {v(NEGM+16+2*t)}", f"v_add_f32 {v(L)}, {v(L)}, {v(NEGM+17+2*t)}"] if opt.get("bp", False) and t < 4 else []
            return fold + [f"v_mov_b32 {v(T)}, {v(L)}", f"v_permlane32_swap_b32 {v(L)}, {v(T)}", f"v_add_f32 {v(L)}, {v(L)}, {v(T)}",
                    f"v_mov_b32 {v(T)}, {v(L)}", f"v_permlane16_swap_b32 {v(L)}, {v(T)}", f"v_add_f32 {v(L)}, {v(L)}, {v(T)}",
                    f"v_rcp_f32 {v(RC+t)}, {v(L)}"]
        def norm(t, pk=False):
            x = []
            if pk:
                x += [f"v_mov_b32 {v(V_T0)}, {v(RC+t)}", f"v_mov_b32 {v(V_T1)}, {v(RC+t)}"]
            for dt in range(8):
                o = O(t, dt)
                if pk:
                    x += [f"v_pk_mul_f32 {v(o,2)}, {v(o,2)}, {v(V_T0,2)}", f"v_pk_mul_f32 {v(o+2,2)}, {v(o+2,2)}, {v(V_T0,2)}"]
                else:
                    x += [f"v_mul_f32 {v(o+r)}, {v(o+r)}, {v(RC+t)}" for r in range(4)]
                x += [f"v_cvt_pk_bf16_f32 {v(o)}, {v(o)}, {v(o+1)}", f"v_cvt_pk_bf16_f32 {v(o+1)}, {v(o+2)}, {v(o+3)}",
                      f"ds_write_b64 {v(WA)}, {v(o,2)} offset:{(t & 1) * STG + 32 * dt}"]
            x += [f"ds_read_b128 {v(O(t, 0) + 4 * k, 4)}, {v(RA)} offset:{(t & 1) * STG + k * 4 * 272}" for k in range(4)]
            return x
        def stores(t):
            if opt.get("nostore"): return []
            fl = self.stfl if t < opt.get("wbfrom", 6) else opt.get("wbfl", "")
            return [f"buffer_store_dwordx4 {v(O(t, 0) + 4 * k, 4)}, {v(GA)}, {s(S_OSRD,4)}, {s(S_T0)} offen offset:{1024 * k}{fl}" for k in range(4)]
        def pre(t, n=0): return [f"s_waitcnt lgkmcnt({n})", f"s_mov_b32 {s(S_T0)}, {t * 4096}"]
        def weave(main, sts):
            out = []; n = len(main); k = len(sts)
            marks = {(i * n) // k + 1: i for i in range(k)} if k else {}
            for i, x in enumerate(main):
                if i in marks: out.append(sts[marks[i]])
                out.append(x)
            return out
        pk = opt.get("epipk", False)
        def weave2(main, sts):
            if not main: return list(sts)
            return weave(main, sts)
        if self.tail2:
            self.c("---- last two tiles, q-tile major")
            b = [(0, 62), (1, 62), (0, 63), (1, 63), (2, 62), (2, 63), (3, 62), (3, 63), (4, 62), (4, 63), (5, 62), (5, 63)]
            K63 = [self.kread(1, 63 % R, kt, ks) for kt in range(2) for ks in range(4)]
            V63 = [self.vread(1, 63 % R, dt, hh) for dt in range(8) for hh in range(2)]
            exs = {3: lambda: lred(0), 4: lambda: lred(1) + norm(0, pk),
                   5: lambda: pre(0) + weave2(norm(1, pk), stores(0)), 6: lambda: pre(1) + weave2(lred(2), stores(1)),
                   7: lambda: norm(2, pk), 8: lambda: pre(2) + weave2(lred(3), stores(2)),
                   9: lambda: norm(3, pk), 10: lambda: pre(3) + weave2(lred(4), stores(3)),
                   11: lambda: norm(4, pk) + ((pre(4) + stores(4)) if opt.get("early4") else [])}
            for n in range(12):
                sh = {}; lds = []
                if opt.get("fst") and n in (2, 4, 5, 6, 8, 10): self.stamp({2: 3, 4: 4, 5: 5, 6: 6, 8: 7, 10: 8}[n])
                if n == 0:
                    sh[0] = [f"s_waitcnt vmcnt({4 * (self.D - 2)})", "s_barrier"]
                    lds = K63[0:4]
                    for i, g in enumerate((1, 3, 5, 7)): sh[g] = [K63[4 + i]]
                if n == 1:
                    sh[0] = []
                    e("s_waitcnt lgkmcnt(0)")
                if n in (1, 2):
                    o = 8 * (n - 1)
                    lds = V63[o:o + 4]
                    for i, g in enumerate((1, 3, 5, 7)): sh[g] = [V63[o + 4 + i]]
                if n == 3: sh[0] = ["s_waitcnt lgkmcnt(0)"]
                qkb = (b[n + 1][1] & 1, b[n + 1][0], (n + 1) & 1) if n < 11 else None
                pvb = (b[n - 1][1] & 1, b[n - 1][0], (n - 1) & 1) if n >= 1 else (1, 5, 1)
                self.period_x(qkb, (b[n][0], n & 1), pvb, lds, sh, exs[n]() if n in exs else None)
            if opt.get("fst"): self.stamp(9)
            ex = lred(5) if opt.get("early4") else pre(4) + weave2(lred(5), stores(4))
            e("s_nop 1")
            n = len(ex)
            for dt in range(8):
                e(self.pv(1, 5, dt, pb=1))
                for x in ex[dt * n // 8:(dt + 1) * n // 8]: e(x)
            self.stamp(12, 3)
            for x in norm(5, pk=True): e(x)
            for x in pre(5) + stores(5): e(x)
            self.check()
            return
        self.c("---- last tile")
        for t in range(6):
            sh = {}
            if t == 1: sh[0] = ["s_waitcnt lgkmcnt(0)"]
            ex = []
            if t >= 1: ex += lred(t - 1)
            if t >= 2: ex += norm(t - 2, pk)
            if t >= 3: ex = pre(t - 3) + weave(ex, stores(t - 3))
            self.period(63, t, [], sh, do_qk=(t < 5), extras=ex)
        ex = pre(3) + weave(lred(5) + norm(4, pk), stores(3))
        e("s_nop 1")
        n = len(ex)
        for dt in range(8):
            e(self.pv(63 & 1, 5, dt))
            for x in ex[dt * n // 8:(dt + 1) * n // 8]: e(x)
        self.check()
        self.stamp(12, 3)
        nx = norm(5, pk=True)
        for x in pre(4) + weave(nx[:-4], stores(4)) + nx[-4:]: e(x)
        for x in pre(5) + stores(5): e(x)

    def epilogue(self):
        e = self.e; opt = self.opt
        WA, RA, GA = V_T2, V_T3, V_OST
        PK = [SB[0], NEGM]
        RD = [160 - 160 + 0, 0]
        e(f"s_mul_i32 {s(S_T1)}, {s(S_W)}, {PRIV}")
        e(f"s_add_u32 {s(S_T1)}, {s(S_T1)}, {R * SLOT}")
        e(f"v_and_b32 {v(V_T0)}, 15, {v(V_LANE)}")
        e(f"v_lshrrev_b32 {v(V_T1)}, 4, {v(V_LANE)}")
        e(f"v_mul_u32_u24 {v(WA)}, 272, {v(V_T0)}")
        e(f"v_lshl_add_u32 {v(WA)}, {v(V_T1)}, 3, {v(WA)}")
        e(f"v_add_u32 {v(WA)}, {s(S_T1)}, {v(WA)}")
        e(f"v_mul_u32_u24 {v(RA)}, 272, {v(V_T1)}")
        e(f"v_lshl_add_u32 {v(RA)}, {v(V_T0)}, 4, {v(RA)}")
        e(f"v_add_u32 {v(RA)}, {s(S_T1)}, {v(RA)}")
        e(f"s_mul_i32 {s(S_T1)}, {s(S_W)}, {96 * 256}")
        e(f"v_lshlrev_b32 {v(GA)}, 4, {v(V_LANE)}")
        e(f"v_add_u32 {v(GA)}, {s(S_T1)}, {v(GA)}")
        def pack(t):
            L = L0 + t
            e(f"v_mov_b32 {v(V_T0)}, {v(L)}")
            e(f"v_mov_b32 {v(V_T1)}, {v(L)}")
            for dt in range(8):
                o = O(t, dt)
                e(f"v_pk_mul_f32 {v(o,2)}, {v(o,2)}, {v(V_T0,2)}")
                e(f"v_pk_mul_f32 {v(o+2,2)}, {v(o+2,2)}, {v(V_T0,2)}")
            for dt in range(8):
                o = O(t, dt)
                e(f"v_cvt_pk_bf16_f32 {v(o)}, {v(o)}, {v(o+1)}")
                e(f"v_cvt_pk_bf16_f32 {v(o+1)}, {v(o+2)}, {v(o+3)}")
                e(f"ds_write_b64 {v(WA)}, {v(o,2)} offset:{(t & 1) * STG + 32 * dt}")
        def unload(t):
            for k in range(4):
                e(f"ds_read_b128 {v(O(t, 0) + 4 * k, 4)}, {v(RA)} offset:{(t & 1) * STG + k * 4 * 272}")
        def store(t):
            e(f"s_mov_b32 {s(S_T0)}, {t * 4096}")
            for k in range(4):
                if not opt.get("nostore"):
                    e(f"buffer_store_dwordx4 {v(O(t, 0) + 4 * k, 4)}, {v(GA)}, {s(S_OSRD,4)}, {s(S_T0)} offen offset:{1024 * k}{self.stfl}")
        pack(0); unload(0)
        for t in range(1, 6):
            pack(t)
            e("s_waitcnt lgkmcnt(8)")
            store(t - 1)
            unload(t)
        e("s_waitcnt lgkmcnt(0)")
        store(5)

    def pad_hazards(self, text):
        import hazchk
        lines = text.split("\n")
        out = []; hist = []; code = False
        for raw in lines:
            line = raw.split(';')[0].strip()
            if line.endswith('_kernel:'): code = True
            if line.startswith('.section'): code = False
            if not code or not line or line.startswith('.') or line.endswith(':'):
                out.append(raw); continue
            b = hazchk.I(line, 0)
            need_pad = hazchk.required_pad(hist, b)
            if need_pad:
                out.append(f"    s_nop {need_pad - 1}")
                hist.append(hazchk.I(f"s_nop {need_pad - 1}", 0))
            out.append(raw); hist.append(b)
            hist = hist[-40:]
        return "\n".join(out)

    def fallback(self):
        e = self.e
        FA, FB, FK, FV = V_T0, V_T1, V_T2, V_T3
        MX = L0
        self.lab("L_fallback")
        e("s_waitcnt vmcnt(0) lgkmcnt(0)")
        e("s_barrier")
        e(f"s_lshl_b32 {s(S_T0)}, {s(S_W)}, 11")
        e(f"v_subrev_u32 {v(FA)}, {s(S_T0)}, {v(V_OFFA)}")
        e(f"v_subrev_u32 {v(FB)}, {s(S_T0)}, {v(V_OFFB)}")
        e(f"s_mul_i32 {s(S_WOFF)}, {s(S_W)}, {SLOT}")
        e(f"v_add_u32 {v(FK)}, {s(S_WOFF)}, {v(V_KADDR)}")
        e(f"v_add_u32 {v(FV)}, {s(S_WOFF)}, {v(V_VADDR)}")
        def load_tile(with_v):
            for q in range(4):
                e(f"s_add_u32 m0, {s(S_WOFF)}, {q * QRT}")
                e(f"s_add_u32 {s(S_TOFF)}, {s(S_T1)}, {q * 2048}")
                for i in range(4 if with_v else 2): e(self.dma(i, FA, FB))
            e("s_waitcnt vmcnt(0)")
            for kt in range(2):
                for ks in range(4): e(self.kread(0, 0, kt, ks, FK))
            if with_v:
                for dt in range(8):
                    for hh in range(2): e(self.vread(0, 0, dt, hh, FV))
            e("s_waitcnt lgkmcnt(0)")
        for t in range(6): e(f"v_mov_b32 {v(MX+t)}, 0xff800000")
        e(f"s_mov_b32 {s(S_T1)}, 0")
        self.lab("L_fb1")
        load_tile(False)
        for t in range(6):
            for kt in range(2):
                for ks in range(4): e(self.qk(0, t, kt, ks))
            e("s_nop 7")
            e("s_nop 1")
            S = SB[t & 1]
            for i in range(0, 8, 2): e(f"v_max3_f32 {v(MX+t)}, {v(MX+t)}, {v(S+i)}, {v(S+i+1)}")
        e(f"s_add_u32 {s(S_T1)}, {s(S_T1)}, 8192")
        e(f"s_cmp_lt_u32 {s(S_T1)}, {NT * 8192}")
        e("s_cbranch_scc1 L_fb1")
        for x in self.lreduce("v_max_f32"):
            e(x); e("s_nop 1")
        for t in range(6):
            for r in range(4): e(f"v_sub_f32 {v(NEGM + 4*t + r)}, 0, {v(MX+t)}")
        for t in range(6): e(f"v_mov_b32 {v(L0+t)}, 0")
        for i in range(192): e(f"v_mov_b32 {v(i)}, 0")
        e(f"s_mov_b32 {s(S_T1)}, 0")
        self.lab("L_fb2")
        load_tile(True)
        for t in range(6):
            for kt in range(2):
                for ks in range(4): e(self.qk(0, t, kt, ks, v(NEGM + 4*t, 4)))
            e("s_nop 7")
            e("s_nop 1")
            S = SB[t & 1]; P = PB[t & 1]
            for i in range(8): e(f"v_exp_f32 {v(S+i)}, {v(S+i)}")
            e("s_nop 0")
            for i in range(8): e(f"v_add_f32 {v(L0+t)}, {v(L0+t)}, {v(S+i)}")
            for i in range(4): e(f"v_cvt_pk_bf16_f32 {v(P+i)}, {v(S+2*i)}, {v(S+2*i+1)}")
            e("s_nop 1")
            for dt in range(8): e(self.pv(0, t, dt))
        e(f"s_add_u32 {s(S_T1)}, {s(S_T1)}, 8192")
        e(f"s_cmp_lt_u32 {s(S_T1)}, {NT * 8192}")
        e("s_cbranch_scc1 L_fb2")
        for x in self.lreduce():
            e(x); e("s_nop 1")
        e("s_nop 7")
        if self.peel:
            for t in range(6): e(f"v_rcp_f32 {v(L0+t)}, {v(L0+t)}")
            self.epilogue()
            e("s_endpgm")
        else:
            e("s_branch L_norm")

if __name__ == "__main__":
    opt = {}
    out = sys.argv[1]
    for x in sys.argv[2:]:
        k, _, val = x.partition("=")
        opt[k] = eval(val) if val else True
    open(out, "w").write(Gen(opt).build())
```

```python
import sys

KN = "standalone__mha_softmax__near_ridge_kernel"
M16 = "v_mfma_f32_16x16x32_bf16"
NT = 64
BLK = 1056
QRT = 4 * BLK
SLOT = 4 * QRT
R = 4
STG = 16 * 272
QBUF = 4 * BLK
PRIV = 2 * STG

def O(t, dt): return 32 * t + 4 * dt
SB = [192, 200]
PB = [208, 212]
L0 = 216
V_KADDR, V_VADDR, V_OFFA, V_OFFB = 222, 223, 224, 225
V_LANE, V_OST, V_T0, V_T1, V_T2, V_T3 = 226, 227, 228, 229, 230, 231
NEGM = 232
def AQ(t, ks): return 16 * t + 4 * ks
def AK(p, kt, ks): return 96 + 32 * p + 16 * kt + 4 * ks
def AV(p, dt): return 160 + 32 * p + 4 * dt

S_QSRD, S_KSRD, S_VSRD, S_OSRD = 4, 8, 12, 16
S_W, S_WOFF, S_TOFF, S_CNT, S_T0, S_T1, S_T2, S_T3 = 20, 21, 22, 23, 24, 25, 26, 27
S_WS = 28
S_PRIV = 88
AZERO = 224
FIN = 248
S_CMP = 90
S_RST = 40
S_CST = 72

def v(a, n=1): return f"v{a}" if n == 1 else f"v[{a}:{a+n-1}]"
def a(x, n=1): return f"a{x}" if n == 1 else f"a[{x}:{x+n-1}]"
def s(x, n=1): return f"s{x}" if n == 1 else f"s[{x}:{x+n-1}]"

class Gen:
    def __init__(self, opt):
        self.o = []
        self.opt = opt
        self.LDS = R * SLOT + 4 * PRIV
        self.ldfl = opt.get("ldfl", " nt")
        self.qfl = opt.get("qfl", " nt")
        self.stfl = opt.get("stfl", " sc0 sc1 nt")
        self.inloop = False
        self.D = 3
        self.peel = opt.get('peel', True)
        self.tail2 = opt.get('tail2', True) and self.peel
        self.exitpos = (1 if self.tail2 else 2) if self.peel else 3
    def e(self, line): self.o.append("    " + line)
    def lab(self, name): self.o.append(name + ":")
    def c(self, txt): self.o.append("    ; " + txt)
    def nit(self):
        first = 2 if self.opt.get("hd", "2") == "2" else 1
        last = 63 if not self.peel else (61 if self.tail2 else 62)
        if self.opt.get("xu8"): return 56
        return last - first + 1
    def capture(self, fn):
        saved = self.o; self.o = []
        fn()
        lines = [x.strip() for x in self.o]; self.o = saved
        return lines
    def stamp(self, idx, cyc=None):
        if self.opt.get("stamp"):
            self.e(f"s_memrealtime {s(S_RST + 2 * idx, 2)}")
            if cyc is not None: self.e(f"s_memtime {s(S_CST + 2 * cyc, 2)}")

    def dma(self, i, va=V_OFFA, vb=V_OFFB):
        srd = S_KSRD if i < 2 else S_VSRD
        off = f" offset:{i * BLK}" if i else ""
        return f"buffer_load_dwordx4 {v(va if i % 2 == 0 else vb)}, {s(srd,4)}, {s(S_TOFF)} offen{off}{self.ldfl} lds"
    def m0set(self, slot): return f"s_add_u32 m0, {s(S_WOFF)}, {slot * SLOT}"
    def kread(self, p, slot, kt, ks, addr=V_KADDR):
        return f"ds_read_b128 {a(AK(p, kt, ks), 4)}, {v(addr)} offset:{slot * SLOT + kt * 2 * QRT + 256 * ks}"
    def vread(self, p, slot, dt, hh, addr=V_VADDR):
        return f"ds_read_b64_tr_b16 {a(AV(p, dt) + 2 * hh, 2)}, {v(addr)} offset:{slot * SLOT + hh * 2 * QRT + 256 * (dt >> 1) + 32 * (dt & 1)}"
    def qk(self, p, t, kt, ks, cinit="0", sb=None):
        d = v(SB[t & 1 if sb is None else sb] + 4 * kt, 4)
        first = ks == 0
        if self.opt.get("rev", True) and kt == 1: ks = 3 - ks
        return f"{M16} {d}, {a(AK(p, kt, ks), 4)}, {a(AQ(t, ks), 4)}, {cinit if first else d}"
    def pv(self, p, t, dt, pb=None, first=False):
        d = v(O(t, dt), 4)
        return f"{M16} {d}, {a(AV(p, dt), 4)}, {v(PB[t & 1 if pb is None else pb], 4)}, {'0' if first else d}"

    def period(self, j, t, lds, shadow, do_qk=True, do_pv=True, extras=None, bp=None):
        jq, tq = (j, t + 1) if t < 5 else (j + 1, 0)
        jp, tp = (j, t - 1) if t > 0 else (j - 1, 5)
        self.period_x((jq & 1, tq, tq & 1) if do_qk else None, (t, t & 1), (jp & 1, tp, tp & 1) if do_pv else None, lds, shadow, extras, bp)

    def period_x(self, qkb, sm, pvb, lds, shadow, extras=None, bp=None):
        Q = [self.qk(qkb[0], qkb[1], kt, ks, sb=qkb[2]) if qkb else None for kt in range(2) for ks in range(4)]
        V = [self.pv(pvb[0], pvb[1], dt, pb=pvb[2], first=len(pvb) > 3 and pvb[3]) if pvb else None for dt in range(8)]
        if self.opt.get("order", "88") == "4444": mf = Q[0:4] + V[0:4] + Q[4:8] + V[4:8]
        else: mf = Q + V
        t, sb = sm
        S = SB[sb]; P = PB[sb]; L = L0 + t
        e64 = self.opt.get("e64", "")
        ex = lambda i: f"v_exp_f32{'_e64' if 'e' in e64 else ''} {v(S+i)}, {v(S+i)}"
        ad = lambda i: f"v_add_f32{'_e64' if 'a' in e64 else ''} {v(L)}, {v(L)}, {v(S+i)}"
        cv = lambda i: f"v_cvt_pk_bf16_f32 {v(P+i)}, {v(S+2*i)}, {v(S+2*i+1)}"
        lds = list(lds) + [None] * (4 - len(lds))
        fill = {0: [ex(0)], 1: [ex(1)], 2: [lds[0], ad(0)], 3: [ex(2)], 4: [ad(1), cv(0)], 5: [ex(3)],
                6: [lds[1], ad(2)], 7: [ex(4)], 8: [ad(3), cv(1)], 9: [ex(5)], 10: [lds[2], ad(4)],
                11: [ex(6)], 12: [ad(5), cv(2)], 13: [ex(7)], 14: [lds[3], ad(6)], 15: [ad(7), cv(3)]}
        if bp:
            LP = NEGM + 16 + 2 * t
            fill[6] = [lds[1], cv(1)]
            fill[8] = [bp, f"v_pk_add_f32 {v(LP,2)}, {v(LP,2)}, {v(S+2,2)}"]
        abl = self.opt.get("abl", "") if self.inloop else ""
        for g in range(16):
            if mf[g]: self.e(mf[g])
            for x in shadow.get(g, []):
                if 'D' in abl and x.startswith("buffer_load"): continue
                if 'B' in abl and x.startswith("s_barrier"): continue
                self.e(x)
            for x in fill[g]:
                if x is None: continue
                if 'e' in abl and x.startswith("v_exp"): continue
                if 'a' in abl and x.startswith("v_add"): continue
                if 'c' in abl and x.startswith("v_cvt"): continue
                if 'l' in abl and x.startswith("ds_read"): continue
                self.e(x)
            if extras:
                n = len(extras)
                for x in extras[g * n // 16:(g + 1) * n // 16]: self.e(x)

    def iteration(self, j):
        self.c(f"---- iteration j%R={j % R}")
        p1 = (j + 1) & 1
        s1 = (j + 1) % R
        K = [self.kread(p1, s1, kt, ks) for kt in range(2) for ks in range(4)]
        V = [self.vread(p1, s1, dt, hh) for dt in range(8) for hh in range(2)]
        sched = [K[0:4], [K[4]] + V[0:3], [K[5]] + V[3:6], [K[6]] + V[6:9], [K[7]] + V[9:12], V[12:16]]
        sl = (j + self.D) % R
        bpm = self.opt.get("bp", False)
        pos = self.opt.get("dmapos", {0: [(1, 'm')], 3: [(11, 'inc')]} if bpm else {0: [(1, 'm'), (3, 0)], 1: [(3, 1)], 2: [(3, 2)], 3: [(3, 3), (5, 'inc')]})
        for t in range(6):
            sh = {}
            if t == 0:
                sh[0] = [f"s_waitcnt vmcnt({self.opt.get('xvm', 4 * (self.D - 2))})", "s_barrier"]
                if self.opt.get("xb2") and j % 2 == 0: sh[0] = []
            if t == 1: sh[0] = ["s_waitcnt lgkmcnt(4)"]
            if t == 4: sh[15] = ["s_waitcnt lgkmcnt(3)"]
            for (g, what) in pos.get(t, []):
                if what == 'm': ins = self.m0set(sl)
                elif what == 'inc': ins = f"s_add_u32 {s(S_TOFF)}, {s(S_TOFF)}, 8192"
                else: ins = self.dma(what)
                sh.setdefault(g, []).append(ins)
            if t == 5 and j % R == self.exitpos:
                sh.setdefault(3, []).append(f"s_sub_u32 {s(S_CNT)}, {s(S_CNT)}, 1")
                sh.setdefault(5, []).append(f"s_cmp_lg_u32 {s(S_CNT)}, 0")
            self.period(j, t, sched[t], sh, bp=(self.dma(t) if bpm and t < 4 else None))

    def lreduce(self, op="v_add_f32", regs=None):
        regs = regs or [L0 + t for t in range(6)]
        red = []
        for t in range(6): red.append(f"v_mov_b32 {v(NEGM+t)}, {v(regs[t])}")
        for t in range(6): red.append(f"v_permlane32_swap_b32 {v(regs[t])}, {v(NEGM+t)}")
        for t in range(6): red.append(f"{op} {v(regs[t])}, {v(regs[t])}, {v(NEGM+t)}")
        for t in range(6): red.append(f"v_mov_b32 {v(NEGM+t)}, {v(regs[t])}")
        for t in range(6): red.append(f"v_permlane16_swap_b32 {v(regs[t])}, {v(NEGM+t)}")
        for t in range(6): red.append(f"{op} {v(regs[t])}, {v(regs[t])}, {v(NEGM+t)}")
        return red

    def build(self):
        opt = self.opt
        e = self.e
        self.o.append(f"""; MHA forward (softmax(Q K^T / sqrt(D)) V), B=8 H=32 Sq=384 Sk=2048 D=128, bf16 in / bf16 out.
; @launch grid=(256,1,1) block=(256,1,1) lds={self.LDS}
;
.amdgcn_target "amdgcn-amd-amdhsa--gfx950"
.text
.globl {KN}
.p2align 8
.type {KN},@function
{KN}:""")
        e("s_load_dwordx4 s[32:35], s[0:1], 0")
        e("s_load_dwordx4 s[36:39], s[0:1], 16")
        e("s_cmpk_ge_u32 s2, 0x100")
        e("s_cbranch_scc1 L_end")
        self.stamp(0)
        for _ in range(opt.get("sleep0", 0)): e("s_sleep 32")
        QV = NEGM + 8
        X = QV + 3
        e(f"v_lshrrev_b32 {v(V_T1)}, 6, v0")
        e(f"v_bfe_u32 {v(V_T2)}, v0, 2, 2")
        e(f"v_bfe_u32 {v(V_T0)}, v0, 4, 2")
        e(f"v_readfirstlane_b32 {s(S_W)}, {v(V_T1)}")
        e(f"v_and_b32 {v(V_T3)}, 3, v0")
        e(f"v_lshlrev_b32 {v(X)}, 8, {v(V_T2)}")
        e(f"v_lshl_add_u32 {v(X)}, {v(V_T0)}, 6, {v(X)}")
        e(f"v_lshl_add_u32 {v(X)}, {v(V_T3)}, 4, {v(X)}")
        if opt.get("dmalin"):
            e(f"v_and_b32 {v(X)}, 63, v0"); e(f"v_lshlrev_b32 {v(X)}, 4, {v(X)}")
        e(f"s_lshl_b32 {s(S_T0)}, {s(S_W)}, {10 if opt.get('xdma') else 11}")
        e(f"s_mul_i32 {s(S_WOFF)}, {s(S_W)}, {QRT}")
        e(f"v_add_u32 {v(V_OFFB)}, {s(S_T0)}, {v(X)}")
        e(f"v_add_u32 {v(V_OFFA)}, 32, {v(V_OFFB)}")
        if opt.get('xdma'): e(f"v_add_u32 {v(V_OFFB)}, 3072, {v(V_OFFB)}")
        e(f"s_mul_i32 {s(S_T0)}, {s(S_W)}, {96 * 256}")
        e(f"v_add_u32 {v(QV+3)}, {s(S_T0)}, {v(X)}")
        e(f"v_add_u32 {v(QV+2)}, 32, {v(QV+3)}")
        e(f"v_add_u32 {v(QV+1)}, 32, {v(QV+2)}")
        e(f"v_add_u32 {v(QV)}, 32, {v(QV+1)}")
        e(f"s_mul_i32 {s(S_PRIV)}, {s(S_W)}, {PRIV}")
        e(f"s_add_u32 {s(S_PRIV)}, {s(S_PRIV)}, {R * SLOT}")
        if opt.get("remap", False):
            e(f"s_and_b32 {s(S_T0)}, s2, 7")
            e(f"s_lshl_b32 {s(S_T0)}, {s(S_T0)}, 5")
            e(f"s_lshr_b32 {s(S_T1)}, s2, 3")
            e(f"s_add_u32 s2, {s(S_T0)}, {s(S_T1)}")
        e(f"s_mul_i32 {s(S_T0)}, s2, 98304")
        e(f"s_lshl_b32 {s(S_T1)}, s2, 19")
        e(f"s_mov_b32 {s(S_KSRD+3)}, 0x20000")
        e(f"s_mov_b32 {s(S_KSRD+2)}, {524288 + 32}")
        e(f"s_mov_b32 {s(S_QSRD+3)}, {s(S_KSRD+3)}")
        e(f"s_mov_b32 {s(S_QSRD+2)}, {s(S_KSRD+2)}")
        e(f"s_mov_b32 {s(S_VSRD+3)}, {s(S_KSRD+3)}")
        e(f"s_mov_b32 {s(S_VSRD+2)}, {s(S_KSRD+2)}")
        e(f"s_mov_b32 {s(S_TOFF)}, 0")
        e(f"s_mov_b32 m0, {s(S_WOFF)}")
        e("s_waitcnt lgkmcnt(0)")
        if opt.get("fine"): self.stamp(1)
        e(f"s_add_u32 {s(S_KSRD)}, s34, {s(S_T1)}")
        e(f"s_addc_u32 {s(S_KSRD+1)}, s35, 0")
        e(f"s_sub_u32 {s(S_KSRD)}, {s(S_KSRD)}, 32")
        e(f"s_subb_u32 {s(S_KSRD+1)}, {s(S_KSRD+1)}, 0")
        vm = []
        e(self.dma(0)); e(self.dma(1)); vm += ["K0", "K0"]
        if opt.get("fine"): self.stamp(3)
        e(f"s_add_u32 {s(S_QSRD)}, s32, {s(S_T0)}")
        e(f"s_addc_u32 {s(S_QSRD+1)}, s33, 0")
        e(f"s_sub_u32 {s(S_QSRD)}, {s(S_QSRD)}, 96")
        e(f"s_subb_u32 {s(S_QSRD+1)}, {s(S_QSRD+1)}, 0")
        QPLACE = {0: ('p', 0), 1: ('p', STG), 2: ('r', 2 * SLOT), 3: ('r', 3 * SLOT), 4: ('p', 0), 5: ('p', STG)}
        def qload(t, pad=None):
            kind, off_ = QPLACE[t]
            base = s(S_PRIV if kind == 'p' else S_WOFF)
            e(f"s_add_u32 m0, {base}, {off_}" if off_ else f"s_mov_b32 m0, {base}")
            if t == 0: e(pad or "s_nop 0")
            else: e(f"s_movk_i32 {s(S_T3)}, {t * 4096}")
            for b in range(4):
                off = f" offset:{b * BLK}" if b else ""
                e(f"buffer_load_dwordx4 {v(QV+b)}, {s(S_QSRD,4)}, {s(S_TOFF if t == 0 else S_T3)} offen{off}{self.qfl} lds")
                vm.append(f"Q{t}")
        qload(0, pad=f"s_add_u32 {s(S_VSRD)}, s36, {s(S_T1)}")
        if opt.get("fine"): self.stamp(4)
        e(f"s_addc_u32 {s(S_VSRD+1)}, s37, 0")
        e(f"s_sub_u32 {s(S_VSRD)}, {s(S_VSRD)}, 2144")
        e(f"s_mov_b32 m0, {s(S_WOFF)}")
        e(f"s_subb_u32 {s(S_VSRD+1)}, {s(S_VSRD+1)}, 0")
        e(self.dma(2)); e(self.dma(3)); vm += ["V0", "V0"]
        if opt.get("fine"): self.stamp(5)
        if opt.get("hd", "2") == "2":
            e(f"s_add_u32 m0, {s(S_WOFF)}, {SLOT}")
            e(f"s_movk_i32 {s(S_TOFF)}, 0x2000")
            for i in range(4): e(self.dma(i))
            vm += ["K1", "K1", "V1", "V1"]
        else:
            qload(1)
        self.stamp(2, 0)
        if opt.get("stamp") and not opt.get("fine"): self.stamp(1)
        e(f"s_mov_b32 {s(S_QSRD+2)}, {98304 + 96}")
        e(f"s_mov_b32 {s(S_VSRD+2)}, {524288 + 2144}")
        e(f"s_mov_b32 {s(S_OSRD+2)}, 98304")
        e(f"s_mov_b32 {s(S_OSRD+3)}, {s(S_KSRD+3)}")
        e(f"s_add_u32 {s(S_OSRD)}, s38, {s(S_T0)}")
        e(f"s_addc_u32 {s(S_OSRD+1)}, s39, 0")
        e(f"v_and_b32 {v(V_LANE)}, 63, v0")
        def dma_half(tile, kv):
            e(f"s_mov_b32 {s(S_TOFF)}, {tile * 8192}")
            e(self.m0set(tile % R))
            e("s_nop 0")
            for i in ((0, 1) if kv == 'K' else (2, 3)): e(self.dma(i))
            vm.extend([f"{kv}{tile}"] * 2)
        def wait_for(lbl):
            last = max(i for i, x in enumerate(vm) if x == lbl)
            e(f"s_waitcnt vmcnt({len(vm) - 1 - last})")
        TMPC = NEGM
        QA = NEGM + 12
        two = opt.get("hd", "2") == "2"
        def qread(t):
            land = (O(5, 0) + (16 if t == 5 else 0)) if two else O(t, 0)
            wait_for(f"Q{t}")
            if not opt.get("fs") and not opt.get("fst"): self.stamp(3 + t)
            for ks in range(4):
                kind, off_ = QPLACE[t]
                e(f"ds_read_b128 {v(land + 4 * ks, 4)}, {v(QA if kind == 'p' else QA + 2)} offset:{off_ + 256 * ks}")
        def qcvt(t, after_read=None):
            land = (O(5, 0) + (16 if t == 5 else 0)) if two else O(t, 0)
            e("s_waitcnt lgkmcnt(0)")
            if after_read: after_read()
            for i in range(16):
                x = land + i
                lo = TMPC + 2 * (i % 4); hi = lo + 1
                e(f"v_lshlrev_b32 {v(lo)}, 16, {v(x)}")
                e(f"v_and_b32 {v(hi)}, {s(S_T2)}, {v(x)}")
                e(f"v_pk_mul_f32 {v(lo,2)}, {v(lo,2)}, {v(V_T0,2)}")
                e(f"v_cvt_pk_bf16_f32 {v(lo)}, {v(lo)}, {v(hi)}")
                e(f"v_accvgpr_write_b32 {a(AQ(t,0)+i)}, {v(lo)}")
                if not two: e(f"v_mov_b32 {v(x)}, 0")
        def qconv(t, after_read=None):
            qread(t); qcvt(t, after_read)
        e(f"v_lshrrev_b32 {v(V_KADDR)}, 1, {v(V_T2)}")
        e(f"v_mul_u32_u24 {v(V_KADDR)}, {QRT}, {v(V_KADDR)}")
        e(f"v_and_b32 {v(V_VADDR)}, 1, {v(V_T2)}")
        e(f"v_mul_u32_u24 {v(V_VADDR)}, {BLK}, {v(V_VADDR)}")
        e(f"v_add_u32 {v(V_KADDR)}, {v(V_KADDR)}, {v(V_VADDR)}")
        e(f"v_lshl_add_u32 {v(V_KADDR)}, {v(V_T3)}, 6, {v(V_KADDR)}")
        e(f"v_lshl_add_u32 {v(V_KADDR)}, {v(V_T0)}, 4, {v(V_KADDR)}")
        e(f"v_mul_u32_u24 {v(QA)}, {BLK}, {v(V_T2)}")
        e(f"v_lshl_add_u32 {v(QA)}, {v(V_T3)}, 6, {v(QA)}")
        e(f"v_lshl_add_u32 {v(QA)}, {v(V_T0)}, 4, {v(QA)}")
        e(f"v_add_u32 {v(QA+2)}, {s(S_WOFF)}, {v(QA)}")
        e(f"v_add_u32 {v(QA)}, {s(S_PRIV)}, {v(QA)}")
        e(f"v_lshrrev_b32 {v(V_VADDR)}, 1, {v(V_T0)}")
        e(f"v_mul_u32_u24 {v(V_VADDR)}, {QRT}, {v(V_VADDR)}")
        e(f"v_and_b32 {v(V_T1)}, 1, {v(V_T0)}")
        e(f"v_mul_u32_u24 {v(NEGM+13)}, {BLK}, {v(V_T1)}")
        e(f"v_add_u32 {v(V_VADDR)}, {v(V_VADDR)}, {v(NEGM+13)}")
        e(f"v_lshl_add_u32 {v(V_VADDR)}, {v(V_T2)}, 6, {v(V_VADDR)}")
        e(f"v_lshl_add_u32 {v(V_VADDR)}, {v(V_T3)}, 3, {v(V_VADDR)}")
        e(f"v_add_u32 {v(V_VADDR)}, {2 * BLK}, {v(V_VADDR)}")
        for i in range(6): e(f"v_mov_b32 {v(L0+i)}, 0")
        if opt.get("hd", "2") != "2":
            for i in range(4): e(f"v_mov_b32 {v(PB[1]+i)}, 0")
            for i in range(32): e(f"v_accvgpr_write_b32 {a(AV(1,0)+i)}, 0")
        if opt.get("hd", "2") == "2":
            pass
        else:
            for t in range(6):
                for i in range(16, 32): e(f"v_mov_b32 {v(O(t,0)+i)}, 0")
        self.epi_addr()
        if opt.get("ofin", True):
            for i in range(4): e(f"v_accvgpr_write_b32 {a(AZERO+i)}, 0")
        if opt.get("bp", False):
            for i in range(8): e(f"v_mov_b32 {v(NEGM+16+i)}, 0")
        e(f"s_mov_b32 {s(S_T1)}, 0x3e0293ee")
        e(f"v_mov_b32 {v(V_T0)}, {s(S_T1)}")
        e(f"v_mov_b32 {v(V_T1)}, {s(S_T1)}")
        e(f"s_mov_b32 {s(S_T2)}, 0xffff0000")
        hd = opt.get("hd", "2")
        if hd == "2":
            Kf = lambda tile: [self.kread(tile & 1, tile % R, kt, ks) for kt in range(2) for ks in range(4)]
            Vf = lambda tile: [self.vread(tile & 1, tile % R, dt, hh) for dt in range(8) for hh in range(2)]
            def tile_dma(tile): dma_half(tile, 'K'); dma_half(tile, 'V')
            qload(1)
            qconv(0, lambda: qload(2))
            wait_for("V1")
            e("s_barrier")
            for x in Kf(0) + Kf(1): e(x)
            e("s_waitcnt lgkmcnt(8)")
            V0r = Vf(0)
            for kt in range(2):
                for ks in range(4):
                    e(self.qk(0, 0, kt, ks, sb=0))
                    for x in V0r[8 * kt + 2 * ks: 8 * kt + 2 * ks + 2]: e(x)
            e("s_waitcnt lgkmcnt(15)")
            qload(3)
            K2 = Kf(2)
            for n in range(12):
                nq = n + 1
                lds = []; extras = []; sh = {}
                if n % 2 == 0 and n // 2 + 1 <= 5 and n > 0: qread(n // 2 + 1)
                if nq < 12 and nq % 2 == 0:
                    tq = nq >> 1
                    if tq == 1: qread(1)
                    qcvt(tq)
                    e("s_nop 1")
                    if tq == 1: extras = self.capture(lambda: qload(4))
                    if tq == 2: extras = self.capture(lambda: qload(5))
                    if tq == 3: extras = self.capture(lambda: tile_dma(2))
                    if tq == 4: extras = self.capture(lambda: tile_dma(3))
                if n == 0: extras = Vf(1)
                if n == 9:
                    wait_for("K2")
                    e("s_barrier")
                    if not opt.get("fs") and not opt.get("fst"): self.stamp(9)
                    lds = [None, None, K2[0], K2[1]]
                if n == 10:
                    lds = K2[2:6]
                    sh = {1: [K2[6]], 3: [K2[7]]}
                    extras = self.capture(lambda: tile_dma(4))
                if n == 11:
                    wait_for("V2")
                    e("s_waitcnt lgkmcnt(0)")
                    e("s_barrier")
                    V2 = Vf(2)
                    for dt in range(7): sh[9 + dt] = V2[2 * dt: 2 * dt + 2]
                qkb = (nq & 1, nq >> 1, nq & 1) if nq < 12 else (0, 0, 0)
                pvb = ((n - 1) & 1, (n - 1) >> 1, (n - 1) & 1, (n - 1) % 2 == 0) if n >= 1 else None
                self.period_x(qkb, (n >> 1, n & 1), pvb, lds, sh, extras)
            for x in Vf(2)[14:16]: e(x)
            e(f"s_mov_b32 {s(S_TOFF)}, {5 * 8192}")
            self.stamp(10, 1)
            e(f"s_mov_b32 {s(S_CNT)}, {30 if opt.get('xu2') else (7 if opt.get('xu8') else (15 if self.tail2 else 16))}")
            if not (opt.get("rot", True) and self.tail2 and not opt.get("xu2")): e("s_branch L_it2")
        else:
            fs = opt.get("fs")
            def fstamp(i):
                if fs and not (opt.get("fine") and i in (3, 4, 5)): self.stamp(i)
            qload(2)
            fstamp(3)
            if hd == "d":
                qconv(0, lambda: (fstamp(4), qload(3), fstamp(5)))
                fstamp(6)
            else:
                qconv(0, lambda: qload(3))
                qload(4)
            wait_for("V0")
            fstamp(7)
            e("s_barrier")
            fstamp(8)
            for kt in range(2):
                for ks in range(4): e(self.kread(0, 0, kt, ks))
            for dt in range(8):
                for hh in range(2): e(self.vread(0, 0, dt, hh))
            if hd != "d":
                qload(5)
                dma_half(1, 'K'); dma_half(1, 'V')
            e("s_waitcnt lgkmcnt(15)")
            for kt in range(2):
                for ks in range(4): e(self.qk(0, 0, kt, ks))
            fstamp(9)
            K1 = [self.kread(1, 1 % R, kt, ks) for kt in range(2) for ks in range(4)]
            V1 = [self.vread(1, 1 % R, dt, hh) for dt in range(8) for hh in range(2)]
            for t in range(6):
                if t + 1 <= 5:
                    def after(t=t):
                        if hd == "d":
                            if t == 0: qload(4)
                            if t == 1: qload(5)
                            if t == 2: dma_half(1, 'K'); dma_half(1, 'V')
                            if t == 3: dma_half(2, 'K'); dma_half(2, 'V')
                        else:
                            if t == 2: dma_half(2, 'K'); dma_half(2, 'V')
                            if t == 3: dma_half(3, 'K'); dma_half(3, 'V')
                    qconv(t + 1, after)
                    e("s_nop 1")
                if t == 0: e("s_waitcnt lgkmcnt(0)")
                if t == 5:
                    wait_for("K1")
                    e("s_barrier")
                    if not opt.get("fs"): self.stamp(9)
                    for x in K1: e(x)
                    e("s_waitcnt lgkmcnt(0)")
                self.period(0, t, [], {}, do_pv=True)
            wait_for("V1")
            e("s_barrier")
            for x in V1: e(x)
            if hd == "d":
                dma_half(3, 'K'); dma_half(3, 'V')
            e(f"s_mov_b32 {s(S_TOFF)}, {(self.D + 1) * 8192}")
            self.stamp(10, 1)
            e(f"s_mov_b32 {s(S_CNT)}, {NT // R}")
            e("s_branch L_it1")
        rot = opt.get("rot", True) and opt.get("hd", "2") == "2" and self.tail2 and not opt.get("xu2")
        e(".p2align 6")
        self.lab("L_loop")
        self.inloop = True
        if rot:
            if opt.get("xu8"):
                for j in (2, 3, 0, 1):
                    self.exitpos = -1
                    self.iteration(j)
                self.exitpos = 1
            for j in (2, 3, 0, 1): self.iteration(j)
            e("s_cbranch_scc1 L_loop")
        else:
            if opt.get("xu2"):
                self.lab("L_it1")
                self.iteration(1)
                e("s_cbranch_scc0 L_last")
                self.lab("L_it2")
                self.iteration(2)
                e(f"v_add_u32 {v(V_KADDR)}, 0, {v(V_KADDR)}")
                e(f"v_add_u32 {v(V_VADDR)}, 0, {v(V_VADDR)}")
            for j in (range(R) if not opt.get("xu2") else []):
                if j == 1: self.lab("L_it1")
                if j == 2: self.lab("L_it2")
                self.iteration(j)
                if self.peel and j == self.exitpos: e("s_cbranch_scc0 L_last")
            if self.peel: e("s_branch L_loop")
            else: e("s_cbranch_scc1 L_loop")
        self.inloop = False
        if self.peel:
            self.lab("L_last")
            self.stamp(11, 2)
            self.last_iteration()
        else:
            self.stamp(11, 2)
            red = self.lreduce()
            e("s_nop 1")
            for dt in range(8):
                e(self.pv(63 & 1, 5, dt))
                for x in red[2*dt:2*dt+2]: e(x)
            for x in red[16:]: e(x)
            self.check()
            self.lab("L_norm")
            for t in range(6): e(f"v_rcp_f32 {v(L0+t)}, {v(L0+t)}")
            self.stamp(12, 3)
            self.epilogue()
        self.stamp(13, 4)
        if opt.get("stamp") and opt.get("dbg") is None:
            e("s_waitcnt vmcnt(0)")
            self.stamp(14, 5)
            e(f"s_load_dwordx2 {s(S_WS,2)}, s[0:1], 40")
            e("s_waitcnt lgkmcnt(0)")
            e(f"s_mov_b32 {s(S_WS+2)}, 0x20000000")
            e(f"s_mov_b32 {s(S_WS+3)}, 0x20000")
            e(f"v_mov_b32 {v(V_T0)}, 0")
            for i in range(16): e(f"v_writelane_b32 {v(V_T0)}, {s(S_RST + 2*i)}, {i}")
            for i in range(8): e(f"v_writelane_b32 {v(V_T0)}, {s(S_CST + 2*i)}, {16+i}")
            e(f"s_lshl_b32 {s(S_T0)}, s2, 2")
            e(f"s_add_u32 {s(S_T0)}, {s(S_T0)}, {s(S_W)}")
            e(f"s_lshl_b32 {s(S_T0)}, {s(S_T0)}, 8")
            e(f"v_lshlrev_b32 {v(V_T1)}, 2, {v(V_LANE)}")
            e(f"buffer_store_dword {v(V_T0)}, {v(V_T1)}, {s(S_WS,4)}, {s(S_T0)} offen")
        if opt.get("dbg") is not None:
            e("s_waitcnt vmcnt(0)")
            self.stamp(14, 5)
            e(f"s_load_dwordx2 {s(S_WS,2)}, s[0:1], 32")
            e("s_waitcnt lgkmcnt(0)")
            e(f"s_cmp_lg_u32 s2, {opt['dbg']}")
            e("s_cbranch_scc1 L_end")
            e(f"s_cmp_lg_u32 {s(S_W)}, 0")
            e("s_cbranch_scc1 L_end")
            e(f"s_mov_b32 {s(S_WS+2)}, 256")
            e(f"s_mov_b32 {s(S_WS+3)}, 0x20000")
            e(f"v_mov_b32 {v(V_T0)}, 0")
            for i in range(1, 15):
                e(f"s_sub_u32 {s(S_T0)}, {s(S_RST + 2*i)}, {s(S_RST)}")
                e(f"v_writelane_b32 {v(V_T0)}, {s(S_T0)}, {i - 1}")
            e(f"s_sub_u32 {s(S_T0)}, {s(S_CST + 4)}, {s(S_CST + 2)}")
            e(f"v_writelane_b32 {v(V_T0)}, {s(S_T0)}, 14")
            e(f"s_sub_u32 {s(S_T0)}, {s(S_CST + 10)}, {s(S_CST)}")
            e(f"v_writelane_b32 {v(V_T0)}, {s(S_T0)}, 15")
            e(f"v_lshlrev_b32 {v(V_T1)}, 2, {v(V_LANE)}")
            e(f"buffer_store_dword {v(V_T0)}, {v(V_T1)}, {s(S_WS,4)}, 0 offen")
        for _ in range(opt.get("sleep1", 0)): e("s_sleep 32")
        self.lab("L_end")
        e("s_endpgm")
        if not opt.get("nocheck"): self.fallback()
        self.o.append(f""".section .rodata,"a"
.p2align 6
.amdhsa_kernel {KN}
  .amdhsa_next_free_vgpr 512
  .amdhsa_next_free_sgpr 102
  .amdhsa_accum_offset 256
  .amdhsa_group_segment_fixed_size 0
  .amdhsa_kernarg_size 48
  .amdhsa_user_sgpr_count 2
  .amdhsa_user_sgpr_kernarg_segment_ptr 1
  .amdhsa_system_sgpr_workgroup_id_x 1
.end_amdhsa_kernel""")
        return self.pad_hazards("\n".join(self.o) + "\n")

    def check(self):
        if self.opt.get("nocheck"): return
        e = self.e
        e(f"v_max3_f32 {v(NEGM)}, {v(L0)}, {v(L0+1)}, {v(L0+2)}")
        e(f"v_min3_f32 {v(NEGM+1)}, {v(L0)}, {v(L0+1)}, {v(L0+2)}")
        e(f"v_max3_f32 {v(NEGM)}, {v(NEGM)}, {v(L0+3)}, {v(L0+4)}")
        e(f"v_min3_f32 {v(NEGM+1)}, {v(NEGM+1)}, {v(L0+3)}, {v(L0+4)}")
        e(f"v_max_f32 {v(NEGM)}, {v(NEGM)}, {v(L0+5)}")
        e(f"v_min_f32 {v(NEGM+1)}, {v(NEGM+1)}, {v(L0+5)}")
        e(f"s_mov_b32 {s(S_T1)}, 0x53800000")
        e(f"s_mov_b32 {s(S_T3)}, 0x3d800000")
        e(f"v_cmp_ge_f32 vcc, {s(S_T1)}, {v(NEGM)}")
        e(f"v_cmp_le_f32 {s(S_CMP,2)}, {s(S_T3)}, {v(NEGM+1)}")
        e(f"s_and_b64 vcc, vcc, {s(S_CMP,2)}")
        if self.opt.get("ofin", True) and self.tail2:
            e(f"v_add_f32 {v(FIN)}, {v(FIN)}, {v(FIN+1)}")
            e(f"v_add_f32 {v(FIN+2)}, {v(FIN+2)}, {v(FIN+3)}")
            e(f"v_add_f32 {v(FIN)}, {v(FIN)}, {v(FIN+2)}")
            e(f"v_cmp_o_f32 {s(S_CMP,2)}, {v(FIN)}, {v(FIN)}")
            e(f"s_and_b64 vcc, vcc, {s(S_CMP,2)}")
        e("s_cmp_eq_u64 vcc, -1")
        e("s_cbranch_scc0 L_fallback")

    def epi_addr(self):
        e = self.e
        WA, RA, GA = V_T2, V_T3, V_OST
        e(f"v_and_b32 {v(NEGM+16)}, 15, {v(V_LANE)}")
        e(f"v_lshrrev_b32 {v(NEGM+17)}, 4, {v(V_LANE)}")
        e(f"v_mul_u32_u24 {v(WA)}, 272, {v(NEGM+16)}")
        e(f"v_lshl_add_u32 {v(WA)}, {v(NEGM+17)}, 3, {v(WA)}")
        e(f"v_add_u32 {v(WA)}, {s(S_PRIV)}, {v(WA)}")
        e(f"v_mul_u32_u24 {v(RA)}, 272, {v(NEGM+17)}")
        e(f"v_lshl_add_u32 {v(RA)}, {v(NEGM+16)}, 4, {v(RA)}")
        e(f"v_add_u32 {v(RA)}, {s(S_PRIV)}, {v(RA)}")
        e(f"s_mul_i32 {s(S_T1)}, {s(S_W)}, {96 * 256}")
        e(f"v_lshlrev_b32 {v(GA)}, 4, {v(V_LANE)}")
        e(f"v_add_u32 {v(GA)}, {s(S_T1)}, {v(GA)}")

    def last_iteration(self):
        e = self.e; opt = self.opt
        WA, RA, GA = V_T2, V_T3, V_OST
        RC = NEGM + 8
        def lred(t):
            L, T = L0 + t, NEGM + t
            fold = [f"v_add_f32 {v(L)}, {v(L)}, {v(NEGM+16+2*t)}", f"v_add_f32 {v(L)}, {v(L)}, {v(NEGM+17+2*t)}"] if opt.get("bp", False) and t < 4 else []
            return fold + [f"v_mov_b32 {v(T)}, {v(L)}", f"v_permlane32_swap_b32 {v(L)}, {v(T)}", f"v_add_f32 {v(L)}, {v(L)}, {v(T)}",
                    f"v_mov_b32 {v(T)}, {v(L)}", f"v_permlane16_swap_b32 {v(L)}, {v(T)}", f"v_add_f32 {v(L)}, {v(L)}, {v(T)}",
                    f"v_rcp_f32 {v(RC+t)}, {v(L)}"]
        def norm(t, pk=False):
            x = []
            if pk:
                x += [f"v_mov_b32 {v(V_T0)}, {v(RC+t)}", f"v_mov_b32 {v(V_T1)}, {v(RC+t)}"]
            for dt in range(8):
                o = O(t, dt)
                if pk:
                    x += [f"v_pk_mul_f32 {v(o,2)}, {v(o,2)}, {v(V_T0,2)}", f"v_pk_mul_f32 {v(o+2,2)}, {v(o+2,2)}, {v(V_T0,2)}"]
                else:
                    x += [f"v_mul_f32 {v(o+r)}, {v(o+r)}, {v(RC+t)}" for r in range(4)]
                x += [f"v_cvt_pk_bf16_f32 {v(o)}, {v(o)}, {v(o+1)}", f"v_cvt_pk_bf16_f32 {v(o+1)}, {v(o+2)}, {v(o+3)}",
                      f"ds_write_b64 {v(WA)}, {v(o,2)} offset:{(t & 1) * STG + 32 * dt}"]
            x += [f"ds_read_b128 {v(O(t, 0) + 4 * k, 4)}, {v(RA)} offset:{(t & 1) * STG + k * 4 * 272}" for k in range(4)]
            return x
        def stores(t):
            if opt.get("nostore"): return []
            fl = self.stfl if t < opt.get("wbfrom", 6) else opt.get("wbfl", "")
            return [f"buffer_store_dwordx4 {v(O(t, 0) + 4 * k, 4)}, {v(GA)}, {s(S_OSRD,4)}, {s(S_T0)} offen offset:{1024 * k}{fl}" for k in range(4)]
        def pre(t, n=0): return [f"s_waitcnt lgkmcnt({n})", f"s_mov_b32 {s(S_T0)}, {t * 4096}"]
        _stores = stores
        if opt.get("ofin", True):
            def stores(t):
                x = []
                for k, st in enumerate(_stores(t)):
                    x += [st, f"{M16} {v(FIN,4)}, {a(AZERO,4)}, {v(O(t, 0) + 4 * k, 4)}, {'0' if (t == 0 and k == 0) else v(FIN,4)}"]
                return x
        def weave(main, sts):
            out = []; n = len(main); k = len(sts); j = 0
            for i, x in enumerate(main):
                while j < k and (j * n) // k + 1 <= i:
                    out.append(sts[j]); j += 1
                out.append(x)
            out += sts[j:]
            assert len(out) == n + k
            return out
        pk = opt.get("epipk", False)
        def weave2(main, sts):
            if not main: return list(sts)
            return weave(main, sts)
        if self.tail2:
            self.c("---- last two tiles, q-tile major")
            b = [(0, 62), (1, 62), (0, 63), (1, 63), (2, 62), (2, 63), (3, 62), (3, 63), (4, 62), (4, 63), (5, 62), (5, 63)]
            K63 = [self.kread(1, 63 % R, kt, ks) for kt in range(2) for ks in range(4)]
            V63 = [self.vread(1, 63 % R, dt, hh) for dt in range(8) for hh in range(2)]
            exs = {3: lambda: lred(0), 4: lambda: lred(1) + norm(0, pk),
                   5: lambda: pre(0) + weave2(norm(1, pk), stores(0)), 6: lambda: pre(1) + weave2(lred(2), stores(1)),
                   7: lambda: norm(2, pk), 8: lambda: pre(2) + weave2(lred(3), stores(2)),
                   9: lambda: norm(3, pk), 10: lambda: pre(3) + weave2(lred(4), stores(3)),
                   11: lambda: norm(4, pk) + ((pre(4) + stores(4)) if opt.get("early4") else [])}
            for n in range(12):
                sh = {}; lds = []
                if opt.get("fst") and n in (2, 4, 5, 6, 8, 10): self.stamp({2: 3, 4: 4, 5: 5, 6: 6, 8: 7, 10: 8}[n])
                if n == 0:
                    sh[0] = [f"s_waitcnt vmcnt({4 * (self.D - 2)})", "s_barrier"]
                    lds = K63[0:4]
                    for i, g in enumerate((1, 3, 5, 7)): sh[g] = [K63[4 + i]]
                if n == 1:
                    sh[0] = []
                    e("s_waitcnt lgkmcnt(0)")
                if n in (1, 2):
                    o = 8 * (n - 1)
                    lds = V63[o:o + 4]
                    for i, g in enumerate((1, 3, 5, 7)): sh[g] = [V63[o + 4 + i]]
                if n == 3: sh[0] = ["s_waitcnt lgkmcnt(0)"]
                qkb = (b[n + 1][1] & 1, b[n + 1][0], (n + 1) & 1) if n < 11 else None
                pvb = (b[n - 1][1] & 1, b[n - 1][0], (n - 1) & 1) if n >= 1 else (1, 5, 1)
                self.period_x(qkb, (b[n][0], n & 1), pvb, lds, sh, exs[n]() if n in exs else None)
            if opt.get("fst"): self.stamp(9)
            ex = lred(5) if opt.get("early4") else pre(4) + weave2(lred(5), stores(4))
            e("s_nop 1")
            n = len(ex)
            for dt in range(8):
                e(self.pv(1, 5, dt, pb=1))
                for x in ex[dt * n // 8:(dt + 1) * n // 8]: e(x)
            self.stamp(12, 3)
            for x in norm(5, pk=True): e(x)
            for x in pre(5) + stores(5): e(x)
            self.check()
            return
        self.c("---- last tile")
        for t in range(6):
            sh = {}
            if t == 1: sh[0] = ["s_waitcnt lgkmcnt(0)"]
            ex = []
            if t >= 1: ex += lred(t - 1)
            if t >= 2: ex += norm(t - 2, pk)
            if t >= 3: ex = pre(t - 3) + weave(ex, stores(t - 3))
            self.period(63, t, [], sh, do_qk=(t < 5), extras=ex)
        ex = pre(3) + weave(lred(5) + norm(4, pk), stores(3))
        e("s_nop 1")
        n = len(ex)
        for dt in range(8):
            e(self.pv(63 & 1, 5, dt))
            for x in ex[dt * n // 8:(dt + 1) * n // 8]: e(x)
        self.check()
        self.stamp(12, 3)
        nx = norm(5, pk=True)
        for x in pre(4) + weave(nx[:-4], stores(4)) + nx[-4:]: e(x)
        for x in pre(5) + stores(5): e(x)

    def epilogue(self):
        e = self.e; opt = self.opt
        WA, RA, GA = V_T2, V_T3, V_OST
        PK = [SB[0], NEGM]
        RD = [160 - 160 + 0, 0]
        e(f"s_mul_i32 {s(S_T1)}, {s(S_W)}, {PRIV}")
        e(f"s_add_u32 {s(S_T1)}, {s(S_T1)}, {R * SLOT}")
        e(f"v_and_b32 {v(V_T0)}, 15, {v(V_LANE)}")
        e(f"v_lshrrev_b32 {v(V_T1)}, 4, {v(V_LANE)}")
        e(f"v_mul_u32_u24 {v(WA)}, 272, {v(V_T0)}")
        e(f"v_lshl_add_u32 {v(WA)}, {v(V_T1)}, 3, {v(WA)}")
        e(f"v_add_u32 {v(WA)}, {s(S_T1)}, {v(WA)}")
        e(f"v_mul_u32_u24 {v(RA)}, 272, {v(V_T1)}")
        e(f"v_lshl_add_u32 {v(RA)}, {v(V_T0)}, 4, {v(RA)}")
        e(f"v_add_u32 {v(RA)}, {s(S_T1)}, {v(RA)}")
        e(f"s_mul_i32 {s(S_T1)}, {s(S_W)}, {96 * 256}")
        e(f"v_lshlrev_b32 {v(GA)}, 4, {v(V_LANE)}")
        e(f"v_add_u32 {v(GA)}, {s(S_T1)}, {v(GA)}")
        def pack(t):
            L = L0 + t
            e(f"v_mov_b32 {v(V_T0)}, {v(L)}")
            e(f"v_mov_b32 {v(V_T1)}, {v(L)}")
            for dt in range(8):
                o = O(t, dt)
                e(f"v_pk_mul_f32 {v(o,2)}, {v(o,2)}, {v(V_T0,2)}")
                e(f"v_pk_mul_f32 {v(o+2,2)}, {v(o+2,2)}, {v(V_T0,2)}")
            for dt in range(8):
                o = O(t, dt)
                e(f"v_cvt_pk_bf16_f32 {v(o)}, {v(o)}, {v(o+1)}")
                e(f"v_cvt_pk_bf16_f32 {v(o+1)}, {v(o+2)}, {v(o+3)}")
                e(f"ds_write_b64 {v(WA)}, {v(o,2)} offset:{(t & 1) * STG + 32 * dt}")
        def unload(t):
            for k in range(4):
                e(f"ds_read_b128 {v(O(t, 0) + 4 * k, 4)}, {v(RA)} offset:{(t & 1) * STG + k * 4 * 272}")
        def store(t):
            e(f"s_mov_b32 {s(S_T0)}, {t * 4096}")
            for k in range(4):
                if not opt.get("nostore"):
                    e(f"buffer_store_dwordx4 {v(O(t, 0) + 4 * k, 4)}, {v(GA)}, {s(S_OSRD,4)}, {s(S_T0)} offen offset:{1024 * k}{self.stfl}")
        pack(0); unload(0)
        for t in range(1, 6):
            pack(t)
            e("s_waitcnt lgkmcnt(8)")
            store(t - 1)
            unload(t)
        e("s_waitcnt lgkmcnt(0)")
        store(5)

    def pad_hazards(self, text):
        import hazchk
        lines = text.split("\n")
        out = []; hist = []; code = False
        for raw in lines:
            line = raw.split(';')[0].strip()
            if line.endswith('_kernel:'): code = True
            if line.startswith('.section'): code = False
            if not code or not line or line.startswith('.') or line.endswith(':'):
                out.append(raw); continue
            b = hazchk.I(line, 0)
            need_pad = hazchk.required_pad(hist, b)
            if need_pad:
                out.append(f"    s_nop {need_pad - 1}")
                hist.append(hazchk.I(f"s_nop {need_pad - 1}", 0))
            out.append(raw); hist.append(b)
            hist = hist[-40:]
        return "\n".join(out)

    def fallback(self):
        e = self.e
        FA, FB, FK, FV = V_T0, V_T1, V_T2, V_T3
        MX = L0
        self.lab("L_fallback")
        e("s_waitcnt vmcnt(0) lgkmcnt(0)")
        e("s_barrier")
        e(f"s_lshl_b32 {s(S_T0)}, {s(S_W)}, 11")
        e(f"v_subrev_u32 {v(FA)}, {s(S_T0)}, {v(V_OFFA)}")
        e(f"v_subrev_u32 {v(FB)}, {s(S_T0)}, {v(V_OFFB)}")
        e(f"s_mul_i32 {s(S_WOFF)}, {s(S_W)}, {SLOT}")
        e(f"v_add_u32 {v(FK)}, {s(S_WOFF)}, {v(V_KADDR)}")
        e(f"v_add_u32 {v(FV)}, {s(S_WOFF)}, {v(V_VADDR)}")
        def load_tile(with_v):
            for q in range(4):
                e(f"s_add_u32 m0, {s(S_WOFF)}, {q * QRT}")
                e(f"s_add_u32 {s(S_TOFF)}, {s(S_T1)}, {q * 2048}")
                for i in range(4 if with_v else 2): e(self.dma(i, FA, FB))
            e("s_waitcnt vmcnt(0)")
            for kt in range(2):
                for ks in range(4): e(self.kread(0, 0, kt, ks, FK))
            if with_v:
                for dt in range(8):
                    for hh in range(2): e(self.vread(0, 0, dt, hh, FV))
            e("s_waitcnt lgkmcnt(0)")
        for t in range(6): e(f"v_mov_b32 {v(MX+t)}, 0xff800000")
        e(f"s_mov_b32 {s(S_T1)}, 0")
        self.lab("L_fb1")
        load_tile(False)
        for t in range(6):
            for kt in range(2):
                for ks in range(4): e(self.qk(0, t, kt, ks))
            e("s_nop 7")
            e("s_nop 1")
            S = SB[t & 1]
            for i in range(0, 8, 2): e(f"v_max3_f32 {v(MX+t)}, {v(MX+t)}, {v(S+i)}, {v(S+i+1)}")
        e(f"s_add_u32 {s(S_T1)}, {s(S_T1)}, 8192")
        e(f"s_cmp_lt_u32 {s(S_T1)}, {NT * 8192}")
        e("s_cbranch_scc1 L_fb1")
        for x in self.lreduce("v_max_f32"):
            e(x); e("s_nop 1")
        for t in range(6):
            for r in range(4): e(f"v_sub_f32 {v(NEGM + 4*t + r)}, 0, {v(MX+t)}")
        for t in range(6): e(f"v_mov_b32 {v(L0+t)}, 0")
        for i in range(192): e(f"v_mov_b32 {v(i)}, 0")
        e(f"s_mov_b32 {s(S_T1)}, 0")
        self.lab("L_fb2")
        load_tile(True)
        for t in range(6):
            for kt in range(2):
                for ks in range(4): e(self.qk(0, t, kt, ks, v(NEGM + 4*t, 4)))
            e("s_nop 7")
            e("s_nop 1")
            S = SB[t & 1]; P = PB[t & 1]
            for i in range(8): e(f"v_exp_f32 {v(S+i)}, {v(S+i)}")
            e("s_nop 0")
            for i in range(8): e(f"v_add_f32 {v(L0+t)}, {v(L0+t)}, {v(S+i)}")
            for i in range(4): e(f"v_cvt_pk_bf16_f32 {v(P+i)}, {v(S+2*i)}, {v(S+2*i+1)}")
            e("s_nop 1")
            for dt in range(8): e(self.pv(0, t, dt))
        e(f"s_add_u32 {s(S_T1)}, {s(S_T1)}, 8192")
        e(f"s_cmp_lt_u32 {s(S_T1)}, {NT * 8192}")
        e("s_cbranch_scc1 L_fb2")
        for x in self.lreduce():
            e(x); e("s_nop 1")
        e("s_nop 7")
        if self.peel:
            for t in range(6): e(f"v_rcp_f32 {v(L0+t)}, {v(L0+t)}")
            self.epilogue()
            e("s_endpgm")
        else:
            e("s_branch L_norm")

if __name__ == "__main__":
    opt = {}
    out = sys.argv[1]
    for x in sys.argv[2:]:
        k, _, val = x.partition("=")
        opt[k] = eval(val) if val else True
    open(out, "w").write(Gen(opt).build())
```

```python
import sys

KN = "standalone__mha_softmax__near_ridge_kernel"
M16 = "v_mfma_f32_16x16x32_bf16"
NT = 64
BLK = 1056
QRT = 4 * BLK
SLOT = 4 * QRT
R = 4
STG = 16 * 272
QBUF = 4 * BLK
PRIV = 2 * STG

def O(t, dt): return 32 * t + 4 * dt
SB = [192, 200]
PB = [208, 212]
L0 = 216
V_KADDR, V_VADDR, V_OFFA, V_OFFB = 222, 223, 224, 225
V_LANE, V_OST, V_T0, V_T1, V_T2, V_T3 = 226, 227, 228, 229, 230, 231
NEGM = 232
def AQ(t, ks): return 16 * t + 4 * ks
def AK(p, kt, ks): return 96 + 32 * p + 16 * kt + 4 * ks
def AV(p, dt): return 160 + 32 * p + 4 * dt

S_QSRD, S_KSRD, S_VSRD, S_OSRD = 4, 8, 12, 16
S_W, S_WOFF, S_TOFF, S_CNT, S_T0, S_T1, S_T2, S_T3 = 20, 21, 22, 23, 24, 25, 26, 27
S_WS = 28
S_PRIV = 88
S_CMP = 90
S_RST = 40
S_CST = 72

def v(a, n=1): return f"v{a}" if n == 1 else f"v[{a}:{a+n-1}]"
def a(x, n=1): return f"a{x}" if n == 1 else f"a[{x}:{x+n-1}]"
def s(x, n=1): return f"s{x}" if n == 1 else f"s[{x}:{x+n-1}]"

class Gen:
    def __init__(self, opt):
        self.o = []
        self.opt = opt
        self.LDS = R * SLOT + 4 * PRIV
        self.ldfl = opt.get("ldfl", " nt")
        self.qfl = opt.get("qfl", " nt")
        self.stfl = opt.get("stfl", " sc0 sc1 nt")
        self.inloop = False
        self.D = 3
        self.peel = opt.get('peel', True)
        self.tail2 = opt.get('tail2', True) and self.peel
        self.exitpos = (1 if self.tail2 else 2) if self.peel else 3
    def e(self, line): self.o.append("    " + line)
    def lab(self, name): self.o.append(name + ":")
    def c(self, txt): self.o.append("    ; " + txt)
    def nit(self):
        first = 2 if self.opt.get("hd", "2") == "2" else 1
        last = 63 if not self.peel else (61 if self.tail2 else 62)
        if self.opt.get("xu8"): return 56
        return last - first + 1
    def capture(self, fn):
        saved = self.o; self.o = []
        fn()
        lines = [x.strip() for x in self.o]; self.o = saved
        return lines
    def stamp(self, idx, cyc=None):
        if self.opt.get("stamp"):
            self.e(f"s_memrealtime {s(S_RST + 2 * idx, 2)}")
            if cyc is not None: self.e(f"s_memtime {s(S_CST + 2 * cyc, 2)}")

    def dma(self, i, va=V_OFFA, vb=V_OFFB):
        srd = S_KSRD if i < 2 else S_VSRD
        off = f" offset:{i * BLK}" if i else ""
        return f"buffer_load_dwordx4 {v(va if i % 2 == 0 else vb)}, {s(srd,4)}, {s(S_TOFF)} offen{off}{self.ldfl} lds"
    def m0set(self, slot): return f"s_add_u32 m0, {s(S_WOFF)}, {slot * SLOT}"
    def kread(self, p, slot, kt, ks, addr=V_KADDR):
        return f"ds_read_b128 {a(AK(p, kt, ks), 4)}, {v(addr)} offset:{slot * SLOT + kt * 2 * QRT + 256 * ks}"
    def vread(self, p, slot, dt, hh, addr=V_VADDR):
        return f"ds_read_b64_tr_b16 {a(AV(p, dt) + 2 * hh, 2)}, {v(addr)} offset:{slot * SLOT + hh * 2 * QRT + 256 * (dt >> 1) + 32 * (dt & 1)}"
    def qk(self, p, t, kt, ks, cinit="0", sb=None):
        d = v(SB[t & 1 if sb is None else sb] + 4 * kt, 4)
        first = ks == 0
        if self.opt.get("rev", True) and kt == 1: ks = 3 - ks
        return f"{M16} {d}, {a(AK(p, kt, ks), 4)}, {a(AQ(t, ks), 4)}, {cinit if first else d}"
    def pv(self, p, t, dt, pb=None, first=False):
        d = v(O(t, dt), 4)
        return f"{M16} {d}, {a(AV(p, dt), 4)}, {v(PB[t & 1 if pb is None else pb], 4)}, {'0' if first else d}"

    def period(self, j, t, lds, shadow, do_qk=True, do_pv=True, extras=None, bp=None):
        jq, tq = (j, t + 1) if t < 5 else (j + 1, 0)
        jp, tp = (j, t - 1) if t > 0 else (j - 1, 5)
        self.period_x((jq & 1, tq, tq & 1) if do_qk else None, (t, t & 1), (jp & 1, tp, tp & 1) if do_pv else None, lds, shadow, extras, bp)

    def period_x(self, qkb, sm, pvb, lds, shadow, extras=None, bp=None):
        Q = [self.qk(qkb[0], qkb[1], kt, ks, sb=qkb[2]) if qkb else None for kt in range(2) for ks in range(4)]
        V = [self.pv(pvb[0], pvb[1], dt, pb=pvb[2], first=len(pvb) > 3 and pvb[3]) if pvb else None for dt in range(8)]
        if self.opt.get("order", "88") == "4444": mf = Q[0:4] + V[0:4] + Q[4:8] + V[4:8]
        else: mf = Q + V
        t, sb = sm
        S = SB[sb]; P = PB[sb]; L = L0 + t
        e64 = self.opt.get("e64", "")
        ex = lambda i: f"v_exp_f32{'_e64' if 'e' in e64 else ''} {v(S+i)}, {v(S+i)}"
        ad = lambda i: f"v_add_f32{'_e64' if 'a' in e64 else ''} {v(L)}, {v(L)}, {v(S+i)}"
        cv = lambda i: f"v_cvt_pk_bf16_f32 {v(P+i)}, {v(S+2*i)}, {v(S+2*i+1)}"
        lds = list(lds) + [None] * (4 - len(lds))
        fill = {0: [ex(0)], 1: [ex(1)], 2: [lds[0], ad(0)], 3: [ex(2)], 4: [ad(1), cv(0)], 5: [ex(3)],
                6: [lds[1], ad(2)], 7: [ex(4)], 8: [ad(3), cv(1)], 9: [ex(5)], 10: [lds[2], ad(4)],
                11: [ex(6)], 12: [ad(5), cv(2)], 13: [ex(7)], 14: [lds[3], ad(6)], 15: [ad(7), cv(3)]}
        if bp:
            LP = NEGM + 16 + 2 * t
            fill[6] = [lds[1], cv(1)]
            fill[8] = [bp, f"v_pk_add_f32 {v(LP,2)}, {v(LP,2)}, {v(S+2,2)}"]
        abl = self.opt.get("abl", "") if self.inloop else ""
        for g in range(16):
            if mf[g]: self.e(mf[g])
            for x in shadow.get(g, []):
                if 'D' in abl and x.startswith("buffer_load"): continue
                if 'B' in abl and x.startswith("s_barrier"): continue
                self.e(x)
            for x in fill[g]:
                if x is None: continue
                if 'e' in abl and x.startswith("v_exp"): continue
                if 'a' in abl and x.startswith("v_add"): continue
                if 'c' in abl and x.startswith("v_cvt"): continue
                if 'l' in abl and x.startswith("ds_read"): continue
                self.e(x)
            if extras:
                n = len(extras)
                for x in extras[g * n // 16:(g + 1) * n // 16]: self.e(x)

    def iteration(self, j):
        self.c(f"---- iteration j%R={j % R}")
        p1 = (j + 1) & 1
        s1 = (j + 1) % R
        K = [self.kread(p1, s1, kt, ks) for kt in range(2) for ks in range(4)]
        V = [self.vread(p1, s1, dt, hh) for dt in range(8) for hh in range(2)]
        sched = [K[0:4], [K[4]] + V[0:3], [K[5]] + V[3:6], [K[6]] + V[6:9], [K[7]] + V[9:12], V[12:16]]
        sl = (j + self.D) % R
        bpm = self.opt.get("bp", False)
        pos = self.opt.get("dmapos", {0: [(1, 'm')], 3: [(11, 'inc')]} if bpm else {0: [(1, 'm'), (3, 0)], 1: [(3, 1)], 2: [(3, 2)], 3: [(3, 3), (5, 'inc')]})
        for t in range(6):
            sh = {}
            if t == 0:
                sh[0] = [f"s_waitcnt vmcnt({self.opt.get('xvm', 4 * (self.D - 2))})", "s_barrier"]
                if self.opt.get("xb2") and j % 2 == 0: sh[0] = []
            if t == 1: sh[0] = ["s_waitcnt lgkmcnt(4)"]
            if t == 4: sh[15] = ["s_waitcnt lgkmcnt(3)"]
            for (g, what) in pos.get(t, []):
                if what == 'm': ins = self.m0set(sl)
                elif what == 'inc': ins = f"s_add_u32 {s(S_TOFF)}, {s(S_TOFF)}, 8192"
                else: ins = self.dma(what)
                sh.setdefault(g, []).append(ins)
            if t == 5 and j % R == self.exitpos:
                sh.setdefault(3, []).append(f"s_sub_u32 {s(S_CNT)}, {s(S_CNT)}, 1")
                sh.setdefault(5, []).append(f"s_cmp_lg_u32 {s(S_CNT)}, 0")
            self.period(j, t, sched[t], sh, bp=(self.dma(t) if bpm and t < 4 else None))

    def lreduce(self, op="v_add_f32", regs=None):
        regs = regs or [L0 + t for t in range(6)]
        red = []
        for t in range(6): red.append(f"v_mov_b32 {v(NEGM+t)}, {v(regs[t])}")
        for t in range(6): red.append(f"v_permlane32_swap_b32 {v(regs[t])}, {v(NEGM+t)}")
        for t in range(6): red.append(f"{op} {v(regs[t])}, {v(regs[t])}, {v(NEGM+t)}")
        for t in range(6): red.append(f"v_mov_b32 {v(NEGM+t)}, {v(regs[t])}")
        for t in range(6): red.append(f"v_permlane16_swap_b32 {v(regs[t])}, {v(NEGM+t)}")
        for t in range(6): red.append(f"{op} {v(regs[t])}, {v(regs[t])}, {v(NEGM+t)}")
        return red

    def build(self):
        opt = self.opt
        e = self.e
        self.o.append(f"""; MHA forward (softmax(Q K^T / sqrt(D)) V), B=8 H=32 Sq=384 Sk=2048 D=128, bf16 in / bf16 out.
; @launch grid=(256,1,1) block=(256,1,1) lds={self.LDS}
;
.amdgcn_target "amdgcn-amd-amdhsa--gfx950"
.text
.globl {KN}
.p2align 8
.type {KN},@function
{KN}:""")
        e("s_load_dwordx4 s[32:35], s[0:1], 0")
        e("s_load_dwordx4 s[36:39], s[0:1], 16")
        e("s_cmpk_ge_u32 s2, 0x100")
        e("s_cbranch_scc1 L_end")
        self.stamp(0)
        for _ in range(opt.get("sleep0", 0)): e("s_sleep 32")
        QV = NEGM + 8
        X = QV + 3
        e(f"v_lshrrev_b32 {v(V_T1)}, 6, v0")
        e(f"v_bfe_u32 {v(V_T2)}, v0, 2, 2")
        e(f"v_bfe_u32 {v(V_T0)}, v0, 4, 2")
        e(f"v_readfirstlane_b32 {s(S_W)}, {v(V_T1)}")
        e(f"v_and_b32 {v(V_T3)}, 3, v0")
        e(f"v_lshlrev_b32 {v(X)}, 8, {v(V_T2)}")
        e(f"v_lshl_add_u32 {v(X)}, {v(V_T0)}, 6, {v(X)}")
        e(f"v_lshl_add_u32 {v(X)}, {v(V_T3)}, 4, {v(X)}")
        if opt.get("dmalin"):
            e(f"v_and_b32 {v(X)}, 63, v0"); e(f"v_lshlrev_b32 {v(X)}, 4, {v(X)}")
        e(f"s_lshl_b32 {s(S_T0)}, {s(S_W)}, {10 if opt.get('xdma') else 11}")
        e(f"s_mul_i32 {s(S_WOFF)}, {s(S_W)}, {QRT}")
        e(f"v_add_u32 {v(V_OFFB)}, {s(S_T0)}, {v(X)}")
        e(f"v_add_u32 {v(V_OFFA)}, 32, {v(V_OFFB)}")
        if opt.get('xdma'): e(f"v_add_u32 {v(V_OFFB)}, 3072, {v(V_OFFB)}")
        e(f"s_mul_i32 {s(S_T0)}, {s(S_W)}, {96 * 256}")
        e(f"v_add_u32 {v(QV+3)}, {s(S_T0)}, {v(X)}")
        e(f"v_add_u32 {v(QV+2)}, 32, {v(QV+3)}")
        e(f"v_add_u32 {v(QV+1)}, 32, {v(QV+2)}")
        e(f"v_add_u32 {v(QV)}, 32, {v(QV+1)}")
        e(f"s_mul_i32 {s(S_PRIV)}, {s(S_W)}, {PRIV}")
        e(f"s_add_u32 {s(S_PRIV)}, {s(S_PRIV)}, {R * SLOT}")
        if opt.get("remap", False):
            e(f"s_and_b32 {s(S_T0)}, s2, 7")
            e(f"s_lshl_b32 {s(S_T0)}, {s(S_T0)}, 5")
            e(f"s_lshr_b32 {s(S_T1)}, s2, 3")
            e(f"s_add_u32 s2, {s(S_T0)}, {s(S_T1)}")
        e(f"s_mul_i32 {s(S_T0)}, s2, 98304")
        e(f"s_lshl_b32 {s(S_T1)}, s2, 19")
        e(f"s_mov_b32 {s(S_KSRD+3)}, 0x20000")
        e(f"s_mov_b32 {s(S_KSRD+2)}, {524288 + 32}")
        e(f"s_mov_b32 {s(S_QSRD+3)}, {s(S_KSRD+3)}")
        e(f"s_mov_b32 {s(S_QSRD+2)}, {s(S_KSRD+2)}")
        e(f"s_mov_b32 {s(S_VSRD+3)}, {s(S_KSRD+3)}")
        e(f"s_mov_b32 {s(S_VSRD+2)}, {s(S_KSRD+2)}")
        e(f"s_mov_b32 {s(S_TOFF)}, 0")
        e(f"s_mov_b32 m0, {s(S_WOFF)}")
        e("s_waitcnt lgkmcnt(0)")
        if opt.get("fine"): self.stamp(1)
        e(f"s_add_u32 {s(S_KSRD)}, s34, {s(S_T1)}")
        e(f"s_addc_u32 {s(S_KSRD+1)}, s35, 0")
        e(f"s_sub_u32 {s(S_KSRD)}, {s(S_KSRD)}, 32")
        e(f"s_subb_u32 {s(S_KSRD+1)}, {s(S_KSRD+1)}, 0")
        vm = []
        e(self.dma(0)); e(self.dma(1)); vm += ["K0", "K0"]
        if opt.get("fine"): self.stamp(3)
        e(f"s_add_u32 {s(S_QSRD)}, s32, {s(S_T0)}")
        e(f"s_addc_u32 {s(S_QSRD+1)}, s33, 0")
        e(f"s_sub_u32 {s(S_QSRD)}, {s(S_QSRD)}, 96")
        e(f"s_subb_u32 {s(S_QSRD+1)}, {s(S_QSRD+1)}, 0")
        QPLACE = {0: ('p', 0), 1: ('p', STG), 2: ('r', 2 * SLOT), 3: ('r', 3 * SLOT), 4: ('p', 0), 5: ('p', STG)}
        def qload(t, pad=None):
            kind, off_ = QPLACE[t]
            base = s(S_PRIV if kind == 'p' else S_WOFF)
            e(f"s_add_u32 m0, {base}, {off_}" if off_ else f"s_mov_b32 m0, {base}")
            if t == 0: e(pad or "s_nop 0")
            else: e(f"s_movk_i32 {s(S_T3)}, {t * 4096}")
            for b in range(4):
                off = f" offset:{b * BLK}" if b else ""
                e(f"buffer_load_dwordx4 {v(QV+b)}, {s(S_QSRD,4)}, {s(S_TOFF if t == 0 else S_T3)} offen{off}{self.qfl} lds")
                vm.append(f"Q{t}")
        qload(0, pad=f"s_add_u32 {s(S_VSRD)}, s36, {s(S_T1)}")
        if opt.get("fine"): self.stamp(4)
        e(f"s_addc_u32 {s(S_VSRD+1)}, s37, 0")
        e(f"s_sub_u32 {s(S_VSRD)}, {s(S_VSRD)}, 2144")
        e(f"s_mov_b32 m0, {s(S_WOFF)}")
        e(f"s_subb_u32 {s(S_VSRD+1)}, {s(S_VSRD+1)}, 0")
        e(self.dma(2)); e(self.dma(3)); vm += ["V0", "V0"]
        if opt.get("fine"): self.stamp(5)
        if opt.get("hd", "2") == "2":
            e(f"s_add_u32 m0, {s(S_WOFF)}, {SLOT}")
            e(f"s_movk_i32 {s(S_TOFF)}, 0x2000")
            for i in range(4): e(self.dma(i))
            vm += ["K1", "K1", "V1", "V1"]
        else:
            qload(1)
        self.stamp(2, 0)
        if opt.get("stamp") and not opt.get("fine"): self.stamp(1)
        e(f"s_mov_b32 {s(S_QSRD+2)}, {98304 + 96}")
        e(f"s_mov_b32 {s(S_VSRD+2)}, {524288 + 2144}")
        e(f"s_mov_b32 {s(S_OSRD+2)}, 98304")
        e(f"s_mov_b32 {s(S_OSRD+3)}, {s(S_KSRD+3)}")
        e(f"s_add_u32 {s(S_OSRD)}, s38, {s(S_T0)}")
        e(f"s_addc_u32 {s(S_OSRD+1)}, s39, 0")
        e(f"v_and_b32 {v(V_LANE)}, 63, v0")
        def dma_half(tile, kv):
            e(f"s_mov_b32 {s(S_TOFF)}, {tile * 8192}")
            e(self.m0set(tile % R))
            e("s_nop 0")
            for i in ((0, 1) if kv == 'K' else (2, 3)): e(self.dma(i))
            vm.extend([f"{kv}{tile}"] * 2)
        def wait_for(lbl):
            last = max(i for i, x in enumerate(vm) if x == lbl)
            e(f"s_waitcnt vmcnt({len(vm) - 1 - last})")
        TMPC = NEGM
        QA = NEGM + 12
        two = opt.get("hd", "2") == "2"
        def qread(t):
            land = (O(5, 0) + (16 if t == 5 else 0)) if two else O(t, 0)
            wait_for(f"Q{t}")
            if not opt.get("fs"): self.stamp(3 + t)
            for ks in range(4):
                kind, off_ = QPLACE[t]
                e(f"ds_read_b128 {v(land + 4 * ks, 4)}, {v(QA if kind == 'p' else QA + 2)} offset:{off_ + 256 * ks}")
        def qcvt(t, after_read=None):
            land = (O(5, 0) + (16 if t == 5 else 0)) if two else O(t, 0)
            e("s_waitcnt lgkmcnt(0)")
            if after_read: after_read()
            for i in range(16):
                x = land + i
                lo = TMPC + 2 * (i % 4); hi = lo + 1
                e(f"v_lshlrev_b32 {v(lo)}, 16, {v(x)}")
                e(f"v_and_b32 {v(hi)}, {s(S_T2)}, {v(x)}")
                e(f"v_pk_mul_f32 {v(lo,2)}, {v(lo,2)}, {v(V_T0,2)}")
                e(f"v_cvt_pk_bf16_f32 {v(lo)}, {v(lo)}, {v(hi)}")
                e(f"v_accvgpr_write_b32 {a(AQ(t,0)+i)}, {v(lo)}")
                if not two: e(f"v_mov_b32 {v(x)}, 0")
        def qconv(t, after_read=None):
            qread(t); qcvt(t, after_read)
        e(f"v_lshrrev_b32 {v(V_KADDR)}, 1, {v(V_T2)}")
        e(f"v_mul_u32_u24 {v(V_KADDR)}, {QRT}, {v(V_KADDR)}")
        e(f"v_and_b32 {v(V_VADDR)}, 1, {v(V_T2)}")
        e(f"v_mul_u32_u24 {v(V_VADDR)}, {BLK}, {v(V_VADDR)}")
        e(f"v_add_u32 {v(V_KADDR)}, {v(V_KADDR)}, {v(V_VADDR)}")
        e(f"v_lshl_add_u32 {v(V_KADDR)}, {v(V_T3)}, 6, {v(V_KADDR)}")
        e(f"v_lshl_add_u32 {v(V_KADDR)}, {v(V_T0)}, 4, {v(V_KADDR)}")
        e(f"v_mul_u32_u24 {v(QA)}, {BLK}, {v(V_T2)}")
        e(f"v_lshl_add_u32 {v(QA)}, {v(V_T3)}, 6, {v(QA)}")
        e(f"v_lshl_add_u32 {v(QA)}, {v(V_T0)}, 4, {v(QA)}")
        e(f"v_add_u32 {v(QA+2)}, {s(S_WOFF)}, {v(QA)}")
        e(f"v_add_u32 {v(QA)}, {s(S_PRIV)}, {v(QA)}")
        e(f"v_lshrrev_b32 {v(V_VADDR)}, 1, {v(V_T0)}")
        e(f"v_mul_u32_u24 {v(V_VADDR)}, {QRT}, {v(V_VADDR)}")
        e(f"v_and_b32 {v(V_T1)}, 1, {v(V_T0)}")
        e(f"v_mul_u32_u24 {v(NEGM+13)}, {BLK}, {v(V_T1)}")
        e(f"v_add_u32 {v(V_VADDR)}, {v(V_VADDR)}, {v(NEGM+13)}")
        e(f"v_lshl_add_u32 {v(V_VADDR)}, {v(V_T2)}, 6, {v(V_VADDR)}")
        e(f"v_lshl_add_u32 {v(V_VADDR)}, {v(V_T3)}, 3, {v(V_VADDR)}")
        e(f"v_add_u32 {v(V_VADDR)}, {2 * BLK}, {v(V_VADDR)}")
        for i in range(6): e(f"v_mov_b32 {v(L0+i)}, 0")
        if opt.get("hd", "2") != "2":
            for i in range(4): e(f"v_mov_b32 {v(PB[1]+i)}, 0")
            for i in range(32): e(f"v_accvgpr_write_b32 {a(AV(1,0)+i)}, 0")
        if opt.get("hd", "2") == "2":
            pass
        else:
            for t in range(6):
                for i in range(16, 32): e(f"v_mov_b32 {v(O(t,0)+i)}, 0")
        self.epi_addr()
        if opt.get("bp", False):
            for i in range(8): e(f"v_mov_b32 {v(NEGM+16+i)}, 0")
        e(f"s_mov_b32 {s(S_T1)}, 0x3e0293ee")
        e(f"v_mov_b32 {v(V_T0)}, {s(S_T1)}")
        e(f"v_mov_b32 {v(V_T1)}, {s(S_T1)}")
        e(f"s_mov_b32 {s(S_T2)}, 0xffff0000")
        hd = opt.get("hd", "2")
        if hd == "2":
            Kf = lambda tile: [self.kread(tile & 1, tile % R, kt, ks) for kt in range(2) for ks in range(4)]
            Vf = lambda tile: [self.vread(tile & 1, tile % R, dt, hh) for dt in range(8) for hh in range(2)]
            def tile_dma(tile): dma_half(tile, 'K'); dma_half(tile, 'V')
            qload(1)
            qconv(0, lambda: qload(2))
            wait_for("V1")
            e("s_barrier")
            for x in Kf(0) + Kf(1): e(x)
            e("s_waitcnt lgkmcnt(8)")
            V0r = Vf(0)
            for kt in range(2):
                for ks in range(4):
                    e(self.qk(0, 0, kt, ks, sb=0))
                    for x in V0r[8 * kt + 2 * ks: 8 * kt + 2 * ks + 2]: e(x)
            e("s_waitcnt lgkmcnt(15)")
            qload(3)
            K2 = Kf(2)
            for n in range(12):
                nq = n + 1
                lds = []; extras = []; sh = {}
                if n % 2 == 0 and n // 2 + 1 <= 5 and n > 0: qread(n // 2 + 1)
                if nq < 12 and nq % 2 == 0:
                    tq = nq >> 1
                    if tq == 1: qread(1)
                    qcvt(tq)
                    e("s_nop 1")
                    if tq == 1: extras = self.capture(lambda: qload(4))
                    if tq == 2: extras = self.capture(lambda: qload(5))
                    if tq == 3: extras = self.capture(lambda: tile_dma(2))
                    if tq == 4: extras = self.capture(lambda: tile_dma(3))
                if n == 0: extras = Vf(1)
                if n == 9:
                    wait_for("K2")
                    e("s_barrier")
                    if not opt.get("fs"): self.stamp(9)
                    lds = [None, None, K2[0], K2[1]]
                if n == 10:
                    lds = K2[2:6]
                    sh = {1: [K2[6]], 3: [K2[7]]}
                    extras = self.capture(lambda: tile_dma(4))
                if n == 11:
                    wait_for("V2")
                    e("s_waitcnt lgkmcnt(0)")
                    e("s_barrier")
                    V2 = Vf(2)
                    for dt in range(7): sh[9 + dt] = V2[2 * dt: 2 * dt + 2]
                qkb = (nq & 1, nq >> 1, nq & 1) if nq < 12 else (0, 0, 0)
                pvb = ((n - 1) & 1, (n - 1) >> 1, (n - 1) & 1, (n - 1) % 2 == 0) if n >= 1 else None
                self.period_x(qkb, (n >> 1, n & 1), pvb, lds, sh, extras)
            for x in Vf(2)[14:16]: e(x)
            e(f"s_mov_b32 {s(S_TOFF)}, {5 * 8192}")
            self.stamp(10, 1)
            e(f"s_mov_b32 {s(S_CNT)}, {30 if opt.get('xu2') else (7 if opt.get('xu8') else (15 if self.tail2 else 16))}")
            if not (opt.get("rot", True) and self.tail2 and not opt.get("xu2")): e("s_branch L_it2")
        else:
            fs = opt.get("fs")
            def fstamp(i):
                if fs and not (opt.get("fine") and i in (3, 4, 5)): self.stamp(i)
            qload(2)
            fstamp(3)
            if hd == "d":
                qconv(0, lambda: (fstamp(4), qload(3), fstamp(5)))
                fstamp(6)
            else:
                qconv(0, lambda: qload(3))
                qload(4)
            wait_for("V0")
            fstamp(7)
            e("s_barrier")
            fstamp(8)
            for kt in range(2):
                for ks in range(4): e(self.kread(0, 0, kt, ks))
            for dt in range(8):
                for hh in range(2): e(self.vread(0, 0, dt, hh))
            if hd != "d":
                qload(5)
                dma_half(1, 'K'); dma_half(1, 'V')
            e("s_waitcnt lgkmcnt(15)")
            for kt in range(2):
                for ks in range(4): e(self.qk(0, 0, kt, ks))
            fstamp(9)
            K1 = [self.kread(1, 1 % R, kt, ks) for kt in range(2) for ks in range(4)]
            V1 = [self.vread(1, 1 % R, dt, hh) for dt in range(8) for hh in range(2)]
            for t in range(6):
                if t + 1 <= 5:
                    def after(t=t):
                        if hd == "d":
                            if t == 0: qload(4)
                            if t == 1: qload(5)
                            if t == 2: dma_half(1, 'K'); dma_half(1, 'V')
                            if t == 3: dma_half(2, 'K'); dma_half(2, 'V')
                        else:
                            if t == 2: dma_half(2, 'K'); dma_half(2, 'V')
                            if t == 3: dma_half(3, 'K'); dma_half(3, 'V')
                    qconv(t + 1, after)
                    e("s_nop 1")
                if t == 0: e("s_waitcnt lgkmcnt(0)")
                if t == 5:
                    wait_for("K1")
                    e("s_barrier")
                    if not opt.get("fs"): self.stamp(9)
                    for x in K1: e(x)
                    e("s_waitcnt lgkmcnt(0)")
                self.period(0, t, [], {}, do_pv=True)
            wait_for("V1")
            e("s_barrier")
            for x in V1: e(x)
            if hd == "d":
                dma_half(3, 'K'); dma_half(3, 'V')
            e(f"s_mov_b32 {s(S_TOFF)}, {(self.D + 1) * 8192}")
            self.stamp(10, 1)
            e(f"s_mov_b32 {s(S_CNT)}, {NT // R}")
            e("s_branch L_it1")
        rot = opt.get("rot", True) and opt.get("hd", "2") == "2" and self.tail2 and not opt.get("xu2")
        e(".p2align 6")
        self.lab("L_loop")
        self.inloop = True
        if rot:
            if opt.get("xu8"):
                for j in (2, 3, 0, 1):
                    self.exitpos = -1
                    self.iteration(j)
                self.exitpos = 1
            for j in (2, 3, 0, 1): self.iteration(j)
            e("s_cbranch_scc1 L_loop")
        else:
            if opt.get("xu2"):
                self.lab("L_it1")
                self.iteration(1)
                e("s_cbranch_scc0 L_last")
                self.lab("L_it2")
                self.iteration(2)
                e(f"v_add_u32 {v(V_KADDR)}, 0, {v(V_KADDR)}")
                e(f"v_add_u32 {v(V_VADDR)}, 0, {v(V_VADDR)}")
            for j in (range(R) if not opt.get("xu2") else []):
                if j == 1: self.lab("L_it1")
                if j == 2: self.lab("L_it2")
                self.iteration(j)
                if self.peel and j == self.exitpos: e("s_cbranch_scc0 L_last")
            if self.peel: e("s_branch L_loop")
            else: e("s_cbranch_scc1 L_loop")
        self.inloop = False
        if self.peel:
            self.lab("L_last")
            self.stamp(11, 2)
            self.last_iteration()
        else:
            self.stamp(11, 2)
            red = self.lreduce()
            e("s_nop 1")
            for dt in range(8):
                e(self.pv(63 & 1, 5, dt))
                for x in red[2*dt:2*dt+2]: e(x)
            for x in red[16:]: e(x)
            self.check()
            self.lab("L_norm")
            for t in range(6): e(f"v_rcp_f32 {v(L0+t)}, {v(L0+t)}")
            self.stamp(12, 3)
            self.epilogue()
        self.stamp(13, 4)
        if opt.get("stamp") and opt.get("dbg") is None:
            e("s_waitcnt vmcnt(0)")
            self.stamp(14, 5)
            e(f"s_load_dwordx2 {s(S_WS,2)}, s[0:1], 40")
            e("s_waitcnt lgkmcnt(0)")
            e(f"s_mov_b32 {s(S_WS+2)}, 0x20000000")
            e(f"s_mov_b32 {s(S_WS+3)}, 0x20000")
            e(f"v_mov_b32 {v(V_T0)}, 0")
            for i in range(16): e(f"v_writelane_b32 {v(V_T0)}, {s(S_RST + 2*i)}, {i}")
            for i in range(8): e(f"v_writelane_b32 {v(V_T0)}, {s(S_CST + 2*i)}, {16+i}")
            e(f"s_lshl_b32 {s(S_T0)}, s2, 2")
            e(f"s_add_u32 {s(S_T0)}, {s(S_T0)}, {s(S_W)}")
            e(f"s_lshl_b32 {s(S_T0)}, {s(S_T0)}, 8")
            e(f"v_lshlrev_b32 {v(V_T1)}, 2, {v(V_LANE)}")
            e(f"buffer_store_dword {v(V_T0)}, {v(V_T1)}, {s(S_WS,4)}, {s(S_T0)} offen")
        if opt.get("dbg") is not None:
            e("s_waitcnt vmcnt(0)")
            self.stamp(14, 5)
            e(f"s_load_dwordx2 {s(S_WS,2)}, s[0:1], 32")
            e("s_waitcnt lgkmcnt(0)")
            e(f"s_cmp_lg_u32 s2, {opt['dbg']}")
            e("s_cbranch_scc1 L_end")
            e(f"s_cmp_lg_u32 {s(S_W)}, 0")
            e("s_cbranch_scc1 L_end")
            e(f"s_mov_b32 {s(S_WS+2)}, 256")
            e(f"s_mov_b32 {s(S_WS+3)}, 0x20000")
            e(f"v_mov_b32 {v(V_T0)}, 0")
            for i in range(1, 15):
                e(f"s_sub_u32 {s(S_T0)}, {s(S_RST + 2*i)}, {s(S_RST)}")
                e(f"v_writelane_b32 {v(V_T0)}, {s(S_T0)}, {i - 1}")
            e(f"s_sub_u32 {s(S_T0)}, {s(S_CST + 4)}, {s(S_CST + 2)}")
            e(f"v_writelane_b32 {v(V_T0)}, {s(S_T0)}, 14")
            e(f"s_sub_u32 {s(S_T0)}, {s(S_CST + 10)}, {s(S_CST)}")
            e(f"v_writelane_b32 {v(V_T0)}, {s(S_T0)}, 15")
            e(f"v_lshlrev_b32 {v(V_T1)}, 2, {v(V_LANE)}")
            e(f"buffer_store_dword {v(V_T0)}, {v(V_T1)}, {s(S_WS,4)}, 0 offen")
        for _ in range(opt.get("sleep1", 0)): e("s_sleep 32")
        self.lab("L_end")
        e("s_endpgm")
        if not opt.get("nocheck"): self.fallback()
        self.o.append(f""".section .rodata,"a"
.p2align 6
.amdhsa_kernel {KN}
  .amdhsa_next_free_vgpr 512
  .amdhsa_next_free_sgpr 102
  .amdhsa_accum_offset 256
  .amdhsa_group_segment_fixed_size 0
  .amdhsa_kernarg_size 48
  .amdhsa_user_sgpr_count 2
  .amdhsa_user_sgpr_kernarg_segment_ptr 1
  .amdhsa_system_sgpr_workgroup_id_x 1
.end_amdhsa_kernel""")
        return self.pad_hazards("\n".join(self.o) + "\n")

    def check(self):
        if self.opt.get("nocheck"): return
        e = self.e
        e(f"v_max3_f32 {v(NEGM)}, {v(L0)}, {v(L0+1)}, {v(L0+2)}")
        e(f"v_min3_f32 {v(NEGM+1)}, {v(L0)}, {v(L0+1)}, {v(L0+2)}")
        e(f"v_max3_f32 {v(NEGM)}, {v(NEGM)}, {v(L0+3)}, {v(L0+4)}")
        e(f"v_min3_f32 {v(NEGM+1)}, {v(NEGM+1)}, {v(L0+3)}, {v(L0+4)}")
        e(f"v_max_f32 {v(NEGM)}, {v(NEGM)}, {v(L0+5)}")
        e(f"v_min_f32 {v(NEGM+1)}, {v(NEGM+1)}, {v(L0+5)}")
        e(f"s_mov_b32 {s(S_T1)}, 0x53800000")
        e(f"s_mov_b32 {s(S_T3)}, 0x37800000")
        e(f"v_cmp_ge_f32 vcc, {s(S_T1)}, {v(NEGM)}")
        e(f"v_cmp_le_f32 {s(S_CMP,2)}, {s(S_T3)}, {v(NEGM+1)}")
        e(f"s_and_b64 vcc, vcc, {s(S_CMP,2)}")
        e("s_cmp_eq_u64 vcc, -1")
        e("s_cbranch_scc0 L_fallback")

    def epi_addr(self):
        e = self.e
        WA, RA, GA = V_T2, V_T3, V_OST
        e(f"v_and_b32 {v(NEGM+16)}, 15, {v(V_LANE)}")
        e(f"v_lshrrev_b32 {v(NEGM+17)}, 4, {v(V_LANE)}")
        e(f"v_mul_u32_u24 {v(WA)}, 272, {v(NEGM+16)}")
        e(f"v_lshl_add_u32 {v(WA)}, {v(NEGM+17)}, 3, {v(WA)}")
        e(f"v_add_u32 {v(WA)}, {s(S_PRIV)}, {v(WA)}")
        e(f"v_mul_u32_u24 {v(RA)}, 272, {v(NEGM+17)}")
        e(f"v_lshl_add_u32 {v(RA)}, {v(NEGM+16)}, 4, {v(RA)}")
        e(f"v_add_u32 {v(RA)}, {s(S_PRIV)}, {v(RA)}")
        e(f"s_mul_i32 {s(S_T1)}, {s(S_W)}, {96 * 256}")
        e(f"v_lshlrev_b32 {v(GA)}, 4, {v(V_LANE)}")
        e(f"v_add_u32 {v(GA)}, {s(S_T1)}, {v(GA)}")

    def last_iteration(self):
        e = self.e; opt = self.opt
        WA, RA, GA = V_T2, V_T3, V_OST
        RC = NEGM + 8
        def lred(t):
            L, T = L0 + t, NEGM + t
            fold = [f"v_add_f32 {v(L)}, {v(L)}, {v(NEGM+16+2*t)}", f"v_add_f32 {v(L)}, {v(L)}, {v(NEGM+17+2*t)}"] if opt.get("bp", False) and t < 4 else []
            return fold + [f"v_mov_b32 {v(T)}, {v(L)}", f"v_permlane32_swap_b32 {v(L)}, {v(T)}", f"v_add_f32 {v(L)}, {v(L)}, {v(T)}",
                    f"v_mov_b32 {v(T)}, {v(L)}", f"v_permlane16_swap_b32 {v(L)}, {v(T)}", f"v_add_f32 {v(L)}, {v(L)}, {v(T)}",
                    f"v_rcp_f32 {v(RC+t)}, {v(L)}"]
        def norm(t, pk=False):
            x = []
            if pk:
                x += [f"v_mov_b32 {v(V_T0)}, {v(RC+t)}", f"v_mov_b32 {v(V_T1)}, {v(RC+t)}"]
            for dt in range(8):
                o = O(t, dt)
                if pk:
                    x += [f"v_pk_mul_f32 {v(o,2)}, {v(o,2)}, {v(V_T0,2)}", f"v_pk_mul_f32 {v(o+2,2)}, {v(o+2,2)}, {v(V_T0,2)}"]
                else:
                    x += [f"v_mul_f32 {v(o+r)}, {v(o+r)}, {v(RC+t)}" for r in range(4)]
                x += [f"v_cvt_pk_bf16_f32 {v(o)}, {v(o)}, {v(o+1)}", f"v_cvt_pk_bf16_f32 {v(o+1)}, {v(o+2)}, {v(o+3)}",
                      f"ds_write_b64 {v(WA)}, {v(o,2)} offset:{(t & 1) * STG + 32 * dt}"]
            x += [f"ds_read_b128 {v(O(t, 0) + 4 * k, 4)}, {v(RA)} offset:{(t & 1) * STG + k * 4 * 272}" for k in range(4)]
            return x
        def stores(t):
            if opt.get("nostore"): return []
            return [f"buffer_store_dwordx4 {v(O(t, 0) + 4 * k, 4)}, {v(GA)}, {s(S_OSRD,4)}, {s(S_T0)} offen offset:{1024 * k}{self.stfl}" for k in range(4)]
        def pre(t, n=0): return [f"s_waitcnt lgkmcnt({n})", f"s_mov_b32 {s(S_T0)}, {t * 4096}"]
        def weave(main, sts):
            out = []; n = len(main); k = len(sts)
            marks = {(i * n) // k + 1: i for i in range(k)} if k else {}
            for i, x in enumerate(main):
                if i in marks: out.append(sts[marks[i]])
                out.append(x)
            return out
        pk = opt.get("epipk", False)
        def weave2(main, sts):
            if not main: return list(sts)
            return weave(main, sts)
        if self.tail2:
            self.c("---- last two tiles, q-tile major")
            b = [(0, 62), (1, 62), (0, 63), (1, 63), (2, 62), (2, 63), (3, 62), (3, 63), (4, 62), (4, 63), (5, 62), (5, 63)]
            K63 = [self.kread(1, 63 % R, kt, ks) for kt in range(2) for ks in range(4)]
            V63 = [self.vread(1, 63 % R, dt, hh) for dt in range(8) for hh in range(2)]
            exs = {3: lambda: lred(0), 4: lambda: lred(1) + norm(0, pk),
                   5: lambda: pre(0) + weave2(norm(1, pk), stores(0)), 6: lambda: pre(1) + weave2(lred(2), stores(1)),
                   7: lambda: norm(2, pk), 8: lambda: pre(2) + weave2(lred(3), stores(2)),
                   9: lambda: norm(3, pk), 10: lambda: pre(3) + weave2(lred(4), stores(3)), 11: lambda: norm(4, pk)}
            for n in range(12):
                sh = {}; lds = []
                if n == 0:
                    sh[0] = [f"s_waitcnt vmcnt({4 * (self.D - 2)})", "s_barrier"]
                    lds = K63[0:4]
                    for i, g in enumerate((1, 3, 5, 7)): sh[g] = [K63[4 + i]]
                if n == 1:
                    sh[0] = []
                    e("s_waitcnt lgkmcnt(0)")
                if n in (1, 2):
                    o = 8 * (n - 1)
                    lds = V63[o:o + 4]
                    for i, g in enumerate((1, 3, 5, 7)): sh[g] = [V63[o + 4 + i]]
                if n == 3: sh[0] = ["s_waitcnt lgkmcnt(0)"]
                qkb = (b[n + 1][1] & 1, b[n + 1][0], (n + 1) & 1) if n < 11 else None
                pvb = (b[n - 1][1] & 1, b[n - 1][0], (n - 1) & 1) if n >= 1 else (1, 5, 1)
                self.period_x(qkb, (b[n][0], n & 1), pvb, lds, sh, exs[n]() if n in exs else None)
            ex = pre(4) + weave2(lred(5), stores(4))
            e("s_nop 1")
            n = len(ex)
            for dt in range(8):
                e(self.pv(1, 5, dt, pb=1))
                for x in ex[dt * n // 8:(dt + 1) * n // 8]: e(x)
            self.stamp(12, 3)
            for x in norm(5, pk=True): e(x)
            for x in pre(5) + stores(5): e(x)
            self.check()
            return
        self.c("---- last tile")
        for t in range(6):
            sh = {}
            if t == 1: sh[0] = ["s_waitcnt lgkmcnt(0)"]
            ex = []
            if t >= 1: ex += lred(t - 1)
            if t >= 2: ex += norm(t - 2, pk)
            if t >= 3: ex = pre(t - 3) + weave(ex, stores(t - 3))
            self.period(63, t, [], sh, do_qk=(t < 5), extras=ex)
        ex = pre(3) + weave(lred(5) + norm(4, pk), stores(3))
        e("s_nop 1")
        n = len(ex)
        for dt in range(8):
            e(self.pv(63 & 1, 5, dt))
            for x in ex[dt * n // 8:(dt + 1) * n // 8]: e(x)
        self.check()
        self.stamp(12, 3)
        nx = norm(5, pk=True)
        for x in pre(4) + weave(nx[:-4], stores(4)) + nx[-4:]: e(x)
        for x in pre(5) + stores(5): e(x)

    def epilogue(self):
        e = self.e; opt = self.opt
        WA, RA, GA = V_T2, V_T3, V_OST
        PK = [SB[0], NEGM]
        RD = [160 - 160 + 0, 0]
        e(f"s_mul_i32 {s(S_T1)}, {s(S_W)}, {PRIV}")
        e(f"s_add_u32 {s(S_T1)}, {s(S_T1)}, {R * SLOT}")
        e(f"v_and_b32 {v(V_T0)}, 15, {v(V_LANE)}")
        e(f"v_lshrrev_b32 {v(V_T1)}, 4, {v(V_LANE)}")
        e(f"v_mul_u32_u24 {v(WA)}, 272, {v(V_T0)}")
        e(f"v_lshl_add_u32 {v(WA)}, {v(V_T1)}, 3, {v(WA)}")
        e(f"v_add_u32 {v(WA)}, {s(S_T1)}, {v(WA)}")
        e(f"v_mul_u32_u24 {v(RA)}, 272, {v(V_T1)}")
        e(f"v_lshl_add_u32 {v(RA)}, {v(V_T0)}, 4, {v(RA)}")
        e(f"v_add_u32 {v(RA)}, {s(S_T1)}, {v(RA)}")
        e(f"s_mul_i32 {s(S_T1)}, {s(S_W)}, {96 * 256}")
        e(f"v_lshlrev_b32 {v(GA)}, 4, {v(V_LANE)}")
        e(f"v_add_u32 {v(GA)}, {s(S_T1)}, {v(GA)}")
        def pack(t):
            L = L0 + t
            e(f"v_mov_b32 {v(V_T0)}, {v(L)}")
            e(f"v_mov_b32 {v(V_T1)}, {v(L)}")
            for dt in range(8):
                o = O(t, dt)
                e(f"v_pk_mul_f32 {v(o,2)}, {v(o,2)}, {v(V_T0,2)}")
                e(f"v_pk_mul_f32 {v(o+2,2)}, {v(o+2,2)}, {v(V_T0,2)}")
            for dt in range(8):
                o = O(t, dt)
                e(f"v_cvt_pk_bf16_f32 {v(o)}, {v(o)}, {v(o+1)}")
                e(f"v_cvt_pk_bf16_f32 {v(o+1)}, {v(o+2)}, {v(o+3)}")
                e(f"ds_write_b64 {v(WA)}, {v(o,2)} offset:{(t & 1) * STG + 32 * dt}")
        def unload(t):
            for k in range(4):
                e(f"ds_read_b128 {v(O(t, 0) + 4 * k, 4)}, {v(RA)} offset:{(t & 1) * STG + k * 4 * 272}")
        def store(t):
            e(f"s_mov_b32 {s(S_T0)}, {t * 4096}")
            for k in range(4):
                if not opt.get("nostore"):
                    e(f"buffer_store_dwordx4 {v(O(t, 0) + 4 * k, 4)}, {v(GA)}, {s(S_OSRD,4)}, {s(S_T0)} offen offset:{1024 * k}{self.stfl}")
        pack(0); unload(0)
        for t in range(1, 6):
            pack(t)
            e("s_waitcnt lgkmcnt(8)")
            store(t - 1)
            unload(t)
        e("s_waitcnt lgkmcnt(0)")
        store(5)

    def pad_hazards(self, text):
        import hazchk
        lines = text.split("\n")
        out = []; hist = []; code = False
        for raw in lines:
            line = raw.split(';')[0].strip()
            if line.endswith('_kernel:'): code = True
            if line.startswith('.section'): code = False
            if not code or not line or line.startswith('.') or line.endswith(':'):
                out.append(raw); continue
            b = hazchk.I(line, 0)
            need_pad = hazchk.required_pad(hist, b)
            if need_pad:
                out.append(f"    s_nop {need_pad - 1}")
                hist.append(hazchk.I(f"s_nop {need_pad - 1}", 0))
            out.append(raw); hist.append(b)
            hist = hist[-40:]
        return "\n".join(out)

    def fallback(self):
        e = self.e
        FA, FB, FK, FV = V_T0, V_T1, V_T2, V_T3
        MX = L0
        self.lab("L_fallback")
        e("s_waitcnt vmcnt(0) lgkmcnt(0)")
        e("s_barrier")
        e(f"s_lshl_b32 {s(S_T0)}, {s(S_W)}, 11")
        e(f"v_subrev_u32 {v(FA)}, {s(S_T0)}, {v(V_OFFA)}")
        e(f"v_subrev_u32 {v(FB)}, {s(S_T0)}, {v(V_OFFB)}")
        e(f"s_mul_i32 {s(S_WOFF)}, {s(S_W)}, {SLOT}")
        e(f"v_add_u32 {v(FK)}, {s(S_WOFF)}, {v(V_KADDR)}")
        e(f"v_add_u32 {v(FV)}, {s(S_WOFF)}, {v(V_VADDR)}")
        def load_tile(with_v):
            for q in range(4):
                e(f"s_add_u32 m0, {s(S_WOFF)}, {q * QRT}")
                e(f"s_add_u32 {s(S_TOFF)}, {s(S_T1)}, {q * 2048}")
                for i in range(4 if with_v else 2): e(self.dma(i, FA, FB))
            e("s_waitcnt vmcnt(0)")
            for kt in range(2):
                for ks in range(4): e(self.kread(0, 0, kt, ks, FK))
            if with_v:
                for dt in range(8):
                    for hh in range(2): e(self.vread(0, 0, dt, hh, FV))
            e("s_waitcnt lgkmcnt(0)")
        for t in range(6): e(f"v_mov_b32 {v(MX+t)}, 0xff800000")
        e(f"s_mov_b32 {s(S_T1)}, 0")
        self.lab("L_fb1")
        load_tile(False)
        for t in range(6):
            for kt in range(2):
                for ks in range(4): e(self.qk(0, t, kt, ks))
            e("s_nop 7")
            e("s_nop 1")
            S = SB[t & 1]
            for i in range(0, 8, 2): e(f"v_max3_f32 {v(MX+t)}, {v(MX+t)}, {v(S+i)}, {v(S+i+1)}")
        e(f"s_add_u32 {s(S_T1)}, {s(S_T1)}, 8192")
        e(f"s_cmp_lt_u32 {s(S_T1)}, {NT * 8192}")
        e("s_cbranch_scc1 L_fb1")
        for x in self.lreduce("v_max_f32"):
            e(x); e("s_nop 1")
        for t in range(6):
            for r in range(4): e(f"v_sub_f32 {v(NEGM + 4*t + r)}, 0, {v(MX+t)}")
        for t in range(6): e(f"v_mov_b32 {v(L0+t)}, 0")
        for i in range(192): e(f"v_mov_b32 {v(i)}, 0")
        e(f"s_mov_b32 {s(S_T1)}, 0")
        self.lab("L_fb2")
        load_tile(True)
        for t in range(6):
            for kt in range(2):
                for ks in range(4): e(self.qk(0, t, kt, ks, v(NEGM + 4*t, 4)))
            e("s_nop 7")
            e("s_nop 1")
            S = SB[t & 1]; P = PB[t & 1]
            for i in range(8): e(f"v_exp_f32 {v(S+i)}, {v(S+i)}")
            e("s_nop 0")
            for i in range(8): e(f"v_add_f32 {v(L0+t)}, {v(L0+t)}, {v(S+i)}")
            for i in range(4): e(f"v_cvt_pk_bf16_f32 {v(P+i)}, {v(S+2*i)}, {v(S+2*i+1)}")
            e("s_nop 1")
            for dt in range(8): e(self.pv(0, t, dt))
        e(f"s_add_u32 {s(S_T1)}, {s(S_T1)}, 8192")
        e(f"s_cmp_lt_u32 {s(S_T1)}, {NT * 8192}")
        e("s_cbranch_scc1 L_fb2")
        for x in self.lreduce():
            e(x); e("s_nop 1")
        e("s_nop 7")
        if self.peel:
            for t in range(6): e(f"v_rcp_f32 {v(L0+t)}, {v(L0+t)}")
            self.epilogue()
            e("s_endpgm")
        else:
            e("s_branch L_norm")

if __name__ == "__main__":
    opt = {}
    out = sys.argv[1]
    for x in sys.argv[2:]:
        k, _, val = x.partition("=")
        opt[k] = eval(val) if val else True
    open(out, "w").write(Gen(opt).build())
```

```python
import sys

KN = "standalone__mha_softmax__near_ridge_kernel"
M16 = "v_mfma_f32_16x16x32_bf16"
NT = 64
BLK = 1056
QRT = 4 * BLK
SLOT = 4 * QRT
R = 4
STG = 16 * 272
QBUF = 4 * BLK
PRIV = 2 * STG

def O(t, dt): return 32 * t + 4 * dt
SB = [192, 200]
PB = [208, 212]
L0 = 216
V_KADDR, V_VADDR, V_OFFA, V_OFFB = 222, 223, 224, 225
V_LANE, V_OST, V_T0, V_T1, V_T2, V_T3 = 226, 227, 228, 229, 230, 231
NEGM = 232
def AQ(t, ks): return 16 * t + 4 * ks
def AK(p, kt, ks): return 96 + 32 * p + 16 * kt + 4 * ks
def AV(p, dt): return 160 + 32 * p + 4 * dt

S_QSRD, S_KSRD, S_VSRD, S_OSRD = 4, 8, 12, 16
S_W, S_WOFF, S_TOFF, S_CNT, S_T0, S_T1, S_T2, S_T3 = 20, 21, 22, 23, 24, 25, 26, 27
S_WS = 28
S_PRIV = 88
AZERO = 224
FIN = 248
S_CMP = 90
S_RST = 40
S_CST = 72

def v(a, n=1): return f"v{a}" if n == 1 else f"v[{a}:{a+n-1}]"
def a(x, n=1): return f"a{x}" if n == 1 else f"a[{x}:{x+n-1}]"
def s(x, n=1): return f"s{x}" if n == 1 else f"s[{x}:{x+n-1}]"

class Gen:
    def __init__(self, opt):
        self.o = []
        self.opt = opt
        self.LDS = R * SLOT + 4 * PRIV
        self.ldfl = opt.get("ldfl", " nt")
        self.qfl = opt.get("qfl", " nt")
        self.stfl = opt.get("stfl", " sc0 sc1 nt")
        self.inloop = False
        self.D = 3
        self.peel = opt.get('peel', True)
        self.tail2 = opt.get('tail2', True) and self.peel
        self.exitpos = (1 if self.tail2 else 2) if self.peel else 3
    def e(self, line): self.o.append("    " + line)
    def lab(self, name): self.o.append(name + ":")
    def c(self, txt): self.o.append("    ; " + txt)
    def nit(self):
        first = 2 if self.opt.get("hd", "2") == "2" else 1
        last = 63 if not self.peel else (61 if self.tail2 else 62)
        if self.opt.get("xu8"): return 56
        return last - first + 1
    def capture(self, fn):
        saved = self.o; self.o = []
        fn()
        lines = [x.strip() for x in self.o]; self.o = saved
        return lines
    def stamp(self, idx, cyc=None):
        if self.opt.get("stamp"):
            self.e(f"s_memrealtime {s(S_RST + 2 * idx, 2)}")
            if cyc is not None: self.e(f"s_memtime {s(S_CST + 2 * cyc, 2)}")

    def dma(self, i, va=V_OFFA, vb=V_OFFB):
        srd = S_KSRD if i < 2 else S_VSRD
        off = f" offset:{i * BLK}" if i else ""
        return f"buffer_load_dwordx4 {v(va if i % 2 == 0 else vb)}, {s(srd,4)}, {s(S_TOFF)} offen{off}{self.ldfl} lds"
    def m0set(self, slot): return f"s_add_u32 m0, {s(S_WOFF)}, {slot * SLOT}"
    def kread(self, p, slot, kt, ks, addr=V_KADDR):
        return f"ds_read_b128 {a(AK(p, kt, ks), 4)}, {v(addr)} offset:{slot * SLOT + kt * 2 * QRT + 256 * ks}"
    def vread(self, p, slot, dt, hh, addr=V_VADDR):
        return f"ds_read_b64_tr_b16 {a(AV(p, dt) + 2 * hh, 2)}, {v(addr)} offset:{slot * SLOT + hh * 2 * QRT + 256 * (dt >> 1) + 32 * (dt & 1)}"
    def qk(self, p, t, kt, ks, cinit="0", sb=None):
        d = v(SB[t & 1 if sb is None else sb] + 4 * kt, 4)
        first = ks == 0
        if self.opt.get("rev", True) and kt == 1: ks = 3 - ks
        return f"{M16} {d}, {a(AK(p, kt, ks), 4)}, {a(AQ(t, ks), 4)}, {cinit if first else d}"
    def pv(self, p, t, dt, pb=None, first=False):
        d = v(O(t, dt), 4)
        return f"{M16} {d}, {a(AV(p, dt), 4)}, {v(PB[t & 1 if pb is None else pb], 4)}, {'0' if first else d}"

    def period(self, j, t, lds, shadow, do_qk=True, do_pv=True, extras=None, bp=None, ptype=None):
        jq, tq = (j, t + 1) if t < 5 else (j + 1, 0)
        jp, tp = (j, t - 1) if t > 0 else (j - 1, 5)
        self.period_x((jq & 1, tq, tq & 1) if do_qk else None, (t, t & 1), (jp & 1, tp, tp & 1) if do_pv else None, lds, shadow, extras, bp, ptype)

    def period_x(self, qkb, sm, pvb, lds, shadow, extras=None, bp=None, ptype=None):
        Q = [self.qk(qkb[0], qkb[1], kt, ks, sb=qkb[2]) if qkb else None for kt in range(2) for ks in range(4)]
        V = [self.pv(pvb[0], pvb[1], dt, pb=pvb[2], first=len(pvb) > 3 and pvb[3]) if pvb else None for dt in range(8)]
        if self.opt.get("order", "88") == "4444": mf = Q[0:4] + V[0:4] + Q[4:8] + V[4:8]
        else: mf = Q + V
        if ptype:
            def qseq(seq):
                out = []; seen = set()
                for kt, ks in seq:
                    d = v(SB[qkb[2]] + 4 * kt, 4)
                    out.append(f"{M16} {d}, {a(AK(qkb[0], kt, ks), 4)}, {a(AQ(qkb[1], ks), 4)}, {d if kt in seen else '0'}")
                    seen.add(kt)
                return out
            if ptype == 'A': mf = qseq([(1,0),(1,1),(1,2),(1,3),(0,3),(0,2),(0,1),(0,0)]) + V
            else: mf = V[::-1] + qseq([(0,0),(0,1),(0,2),(0,3),(1,3),(1,2),(1,1),(1,0)])
        t, sb = sm
        S = SB[sb]; P = PB[sb]; L = L0 + t
        e64 = self.opt.get("e64", "")
        ex = lambda i: f"v_exp_f32{'_e64' if 'e' in e64 else ''} {v(S+i)}, {v(S+i)}"
        ad = lambda i: f"v_add_f32{'_e64' if 'a' in e64 else ''} {v(L)}, {v(L)}, {v(S+i)}"
        cv = lambda i: f"v_cvt_pk_bf16_f32 {v(P+i)}, {v(S+2*i)}, {v(S+2*i+1)}"
        lds = list(lds) + [None] * (4 - len(lds))
        fill = {0: [ex(0)], 1: [ex(1)], 2: [lds[0], ad(0)], 3: [ex(2)], 4: [ad(1), cv(0)], 5: [ex(3)],
                6: [lds[1], ad(2)], 7: [ex(4)], 8: [ad(3), cv(1)], 9: [ex(5)], 10: [lds[2], ad(4)],
                11: [ex(6)], 12: [ad(5), cv(2)], 13: [ex(7)], 14: [lds[3], ad(6)], 15: [ad(7), cv(3)]}
        if ptype == 'A':
            fill[14] = [cv(3), ad(6)]
            fill[15] = [lds[3], ad(7)]
        if bp:
            LP = NEGM + 16 + 2 * t
            fill[6] = [lds[1], cv(1)]
            fill[8] = [bp, f"v_pk_add_f32 {v(LP,2)}, {v(LP,2)}, {v(S+2,2)}"]
        abl = self.opt.get("abl", "") if self.inloop else ""
        for g in range(16):
            if mf[g]: self.e(mf[g])
            for x in shadow.get(g, []):
                if 'D' in abl and x.startswith("buffer_load"): continue
                if 'B' in abl and x.startswith("s_barrier"): continue
                self.e(x)
            for x in fill[g]:
                if x is None: continue
                if 'e' in abl and x.startswith("v_exp"): continue
                if 'a' in abl and x.startswith("v_add"): continue
                if 'c' in abl and x.startswith("v_cvt"): continue
                if 'l' in abl and x.startswith("ds_read"): continue
                self.e(x)
            if extras:
                n = len(extras)
                for x in extras[g * n // 16:(g + 1) * n // 16]: self.e(x)

    def iteration(self, j):
        self.c(f"---- iteration j%R={j % R}")
        p1 = (j + 1) & 1
        s1 = (j + 1) % R
        K = [self.kread(p1, s1, kt, ks) for kt in range(2) for ks in range(4)]
        V = [self.vread(p1, s1, dt, hh) for dt in range(8) for hh in range(2)]
        sched = [K[0:4], [K[4]] + V[0:3], [K[5]] + V[3:6], [K[6]] + V[6:9], [K[7]] + V[9:12], V[12:16]]
        sl = (j + self.D) % R
        bpm = self.opt.get("bp", False)
        pos = self.opt.get("dmapos", {0: [(1, 'm')], 3: [(11, 'inc')]} if bpm else {0: [(1, 'm'), (3, 0)], 1: [(3, 1)], 2: [(3, 2)], 3: [(3, 3), (5, 'inc')]})
        for t in range(6):
            sh = {}
            if t == 0:
                sh[0] = [f"s_waitcnt vmcnt({self.opt.get('xvm', 4 * (self.D - 2))})", "s_barrier"]
                if self.opt.get("xb2") and j % 2 == 0: sh[0] = []
            alt = self.opt.get("alt", True)
            if alt:
                if t == 0: sh[15] = ["s_waitcnt lgkmcnt(3)"]
                if t == 5: sh[4] = ["s_waitcnt lgkmcnt(4)"]
            else:
                if t == 1: sh[0] = ["s_waitcnt lgkmcnt(4)"]
                if t == 4: sh[15] = ["s_waitcnt lgkmcnt(3)"]
            for (g, what) in pos.get(t, []):
                if what == 'm': ins = self.m0set(sl)
                elif what == 'inc': ins = f"s_add_u32 {s(S_TOFF)}, {s(S_TOFF)}, 8192"
                else: ins = self.dma(what)
                sh.setdefault(g, []).append(ins)
            if t == 5 and j % R == self.exitpos:
                sh.setdefault(3, []).append(f"s_sub_u32 {s(S_CNT)}, {s(S_CNT)}, 1")
                sh.setdefault(5, []).append(f"s_cmp_lg_u32 {s(S_CNT)}, 0")
            self.period(j, t, sched[t], sh, bp=(self.dma(t) if bpm and t < 4 else None), ptype=(('A', 'B')[t & 1] if alt else None))

    def lreduce(self, op="v_add_f32", regs=None):
        regs = regs or [L0 + t for t in range(6)]
        red = []
        for t in range(6): red.append(f"v_mov_b32 {v(NEGM+t)}, {v(regs[t])}")
        for t in range(6): red.append(f"v_permlane32_swap_b32 {v(regs[t])}, {v(NEGM+t)}")
        for t in range(6): red.append(f"{op} {v(regs[t])}, {v(regs[t])}, {v(NEGM+t)}")
        for t in range(6): red.append(f"v_mov_b32 {v(NEGM+t)}, {v(regs[t])}")
        for t in range(6): red.append(f"v_permlane16_swap_b32 {v(regs[t])}, {v(NEGM+t)}")
        for t in range(6): red.append(f"{op} {v(regs[t])}, {v(regs[t])}, {v(NEGM+t)}")
        return red

    def build(self):
        opt = self.opt
        e = self.e
        self.o.append(f"""; MHA forward (softmax(Q K^T / sqrt(D)) V), B=8 H=32 Sq=384 Sk=2048 D=128, bf16 in / bf16 out.
; @launch grid=(256,1,1) block=(256,1,1) lds={self.LDS}
;
.amdgcn_target "amdgcn-amd-amdhsa--gfx950"
.text
.globl {KN}
.p2align 8
.type {KN},@function
{KN}:""")
        e("s_load_dwordx4 s[32:35], s[0:1], 0")
        e("s_load_dwordx4 s[36:39], s[0:1], 16")
        e("s_cmpk_ge_u32 s2, 0x100")
        e("s_cbranch_scc1 L_end")
        self.stamp(0)
        for _ in range(opt.get("sleep0", 0)): e("s_sleep 32")
        QV = NEGM + 8
        X = QV + 3
        e(f"v_lshrrev_b32 {v(V_T1)}, 6, v0")
        e(f"v_bfe_u32 {v(V_T2)}, v0, 2, 2")
        e(f"v_bfe_u32 {v(V_T0)}, v0, 4, 2")
        e(f"v_readfirstlane_b32 {s(S_W)}, {v(V_T1)}")
        e(f"v_and_b32 {v(V_T3)}, 3, v0")
        e(f"v_lshlrev_b32 {v(X)}, 8, {v(V_T2)}")
        e(f"v_lshl_add_u32 {v(X)}, {v(V_T0)}, 6, {v(X)}")
        e(f"v_lshl_add_u32 {v(X)}, {v(V_T3)}, 4, {v(X)}")
        if opt.get("dmalin"):
            e(f"v_and_b32 {v(X)}, 63, v0"); e(f"v_lshlrev_b32 {v(X)}, 4, {v(X)}")
        e(f"s_lshl_b32 {s(S_T0)}, {s(S_W)}, {10 if opt.get('xdma') else 11}")
        e(f"s_mul_i32 {s(S_WOFF)}, {s(S_W)}, {QRT}")
        e(f"v_add_u32 {v(V_OFFB)}, {s(S_T0)}, {v(X)}")
        e(f"v_add_u32 {v(V_OFFA)}, 32, {v(V_OFFB)}")
        if opt.get('xdma'): e(f"v_add_u32 {v(V_OFFB)}, 3072, {v(V_OFFB)}")
        e(f"s_mul_i32 {s(S_T0)}, {s(S_W)}, {96 * 256}")
        e(f"v_add_u32 {v(QV+3)}, {s(S_T0)}, {v(X)}")
        e(f"v_add_u32 {v(QV+2)}, 32, {v(QV+3)}")
        e(f"v_add_u32 {v(QV+1)}, 32, {v(QV+2)}")
        e(f"v_add_u32 {v(QV)}, 32, {v(QV+1)}")
        e(f"s_mul_i32 {s(S_PRIV)}, {s(S_W)}, {PRIV}")
        e(f"s_add_u32 {s(S_PRIV)}, {s(S_PRIV)}, {R * SLOT}")
        if opt.get("remap", False):
            e(f"s_and_b32 {s(S_T0)}, s2, 7")
            e(f"s_lshl_b32 {s(S_T0)}, {s(S_T0)}, 5")
            e(f"s_lshr_b32 {s(S_T1)}, s2, 3")
            e(f"s_add_u32 s2, {s(S_T0)}, {s(S_T1)}")
        e(f"s_mul_i32 {s(S_T0)}, s2, 98304")
        e(f"s_lshl_b32 {s(S_T1)}, s2, 19")
        e(f"s_mov_b32 {s(S_KSRD+3)}, 0x20000")
        e(f"s_mov_b32 {s(S_KSRD+2)}, {524288 + 32}")
        e(f"s_mov_b32 {s(S_QSRD+3)}, {s(S_KSRD+3)}")
        e(f"s_mov_b32 {s(S_QSRD+2)}, {s(S_KSRD+2)}")
        e(f"s_mov_b32 {s(S_VSRD+3)}, {s(S_KSRD+3)}")
        e(f"s_mov_b32 {s(S_VSRD+2)}, {s(S_KSRD+2)}")
        e(f"s_mov_b32 {s(S_TOFF)}, 0")
        e(f"s_mov_b32 m0, {s(S_WOFF)}")
        e("s_waitcnt lgkmcnt(0)")
        if opt.get("fine"): self.stamp(1)
        e(f"s_add_u32 {s(S_KSRD)}, s34, {s(S_T1)}")
        e(f"s_addc_u32 {s(S_KSRD+1)}, s35, 0")
        e(f"s_sub_u32 {s(S_KSRD)}, {s(S_KSRD)}, 32")
        e(f"s_subb_u32 {s(S_KSRD+1)}, {s(S_KSRD+1)}, 0")
        vm = []
        e(self.dma(0)); e(self.dma(1)); vm += ["K0", "K0"]
        if opt.get("fine"): self.stamp(3)
        e(f"s_add_u32 {s(S_QSRD)}, s32, {s(S_T0)}")
        e(f"s_addc_u32 {s(S_QSRD+1)}, s33, 0")
        e(f"s_sub_u32 {s(S_QSRD)}, {s(S_QSRD)}, 96")
        e(f"s_subb_u32 {s(S_QSRD+1)}, {s(S_QSRD+1)}, 0")
        QPLACE = {0: ('p', 0), 1: ('p', STG), 2: ('r', 2 * SLOT), 3: ('r', 3 * SLOT), 4: ('p', 0), 5: ('p', STG)}
        def qload(t, pad=None):
            kind, off_ = QPLACE[t]
            base = s(S_PRIV if kind == 'p' else S_WOFF)
            e(f"s_add_u32 m0, {base}, {off_}" if off_ else f"s_mov_b32 m0, {base}")
            if t == 0: e(pad or "s_nop 0")
            else: e(f"s_movk_i32 {s(S_T3)}, {t * 4096}")
            for b in range(4):
                off = f" offset:{b * BLK}" if b else ""
                e(f"buffer_load_dwordx4 {v(QV+b)}, {s(S_QSRD,4)}, {s(S_TOFF if t == 0 else S_T3)} offen{off}{self.qfl} lds")
                vm.append(f"Q{t}")
        qload(0, pad=f"s_add_u32 {s(S_VSRD)}, s36, {s(S_T1)}")
        if opt.get("fine"): self.stamp(4)
        e(f"s_addc_u32 {s(S_VSRD+1)}, s37, 0")
        e(f"s_sub_u32 {s(S_VSRD)}, {s(S_VSRD)}, 2144")
        e(f"s_mov_b32 m0, {s(S_WOFF)}")
        e(f"s_subb_u32 {s(S_VSRD+1)}, {s(S_VSRD+1)}, 0")
        e(self.dma(2)); e(self.dma(3)); vm += ["V0", "V0"]
        if opt.get("fine"): self.stamp(5)
        if opt.get("hd", "2") == "2":
            e(f"s_add_u32 m0, {s(S_WOFF)}, {SLOT}")
            e(f"s_movk_i32 {s(S_TOFF)}, 0x2000")
            for i in range(4): e(self.dma(i))
            vm += ["K1", "K1", "V1", "V1"]
        else:
            qload(1)
        self.stamp(2, 0)
        if opt.get("stamp") and not opt.get("fine"): self.stamp(1)
        e(f"s_mov_b32 {s(S_QSRD+2)}, {98304 + 96}")
        e(f"s_mov_b32 {s(S_VSRD+2)}, {524288 + 2144}")
        e(f"s_mov_b32 {s(S_OSRD+2)}, 98304")
        e(f"s_mov_b32 {s(S_OSRD+3)}, {s(S_KSRD+3)}")
        e(f"s_add_u32 {s(S_OSRD)}, s38, {s(S_T0)}")
        e(f"s_addc_u32 {s(S_OSRD+1)}, s39, 0")
        e(f"v_and_b32 {v(V_LANE)}, 63, v0")
        def dma_half(tile, kv):
            e(f"s_mov_b32 {s(S_TOFF)}, {tile * 8192}")
            e(self.m0set(tile % R))
            e("s_nop 0")
            for i in ((0, 1) if kv == 'K' else (2, 3)): e(self.dma(i))
            vm.extend([f"{kv}{tile}"] * 2)
        def wait_for(lbl):
            last = max(i for i, x in enumerate(vm) if x == lbl)
            e(f"s_waitcnt vmcnt({len(vm) - 1 - last})")
        TMPC = NEGM
        QA = NEGM + 12
        two = opt.get("hd", "2") == "2"
        def qread(t):
            land = (O(5, 0) + (16 if t == 5 else 0)) if two else O(t, 0)
            wait_for(f"Q{t}")
            if not opt.get("fs") and not opt.get("fst"): self.stamp(3 + t)
            for ks in range(4):
                kind, off_ = QPLACE[t]
                e(f"ds_read_b128 {v(land + 4 * ks, 4)}, {v(QA if kind == 'p' else QA + 2)} offset:{off_ + 256 * ks}")
        def qcvt(t, after_read=None):
            land = (O(5, 0) + (16 if t == 5 else 0)) if two else O(t, 0)
            e("s_waitcnt lgkmcnt(0)")
            if after_read: after_read()
            for i in range(16):
                x = land + i
                lo = TMPC + 2 * (i % 4); hi = lo + 1
                e(f"v_lshlrev_b32 {v(lo)}, 16, {v(x)}")
                e(f"v_and_b32 {v(hi)}, {s(S_T2)}, {v(x)}")
                e(f"v_pk_mul_f32 {v(lo,2)}, {v(lo,2)}, {v(V_T0,2)}")
                e(f"v_cvt_pk_bf16_f32 {v(lo)}, {v(lo)}, {v(hi)}")
                e(f"v_accvgpr_write_b32 {a(AQ(t,0)+i)}, {v(lo)}")
                if not two: e(f"v_mov_b32 {v(x)}, 0")
        def qconv(t, after_read=None):
            qread(t); qcvt(t, after_read)
        e(f"v_lshrrev_b32 {v(V_KADDR)}, 1, {v(V_T2)}")
        e(f"v_mul_u32_u24 {v(V_KADDR)}, {QRT}, {v(V_KADDR)}")
        e(f"v_and_b32 {v(V_VADDR)}, 1, {v(V_T2)}")
        e(f"v_mul_u32_u24 {v(V_VADDR)}, {BLK}, {v(V_VADDR)}")
        e(f"v_add_u32 {v(V_KADDR)}, {v(V_KADDR)}, {v(V_VADDR)}")
        e(f"v_lshl_add_u32 {v(V_KADDR)}, {v(V_T3)}, 6, {v(V_KADDR)}")
        e(f"v_lshl_add_u32 {v(V_KADDR)}, {v(V_T0)}, 4, {v(V_KADDR)}")
        e(f"v_mul_u32_u24 {v(QA)}, {BLK}, {v(V_T2)}")
        e(f"v_lshl_add_u32 {v(QA)}, {v(V_T3)}, 6, {v(QA)}")
        e(f"v_lshl_add_u32 {v(QA)}, {v(V_T0)}, 4, {v(QA)}")
        e(f"v_add_u32 {v(QA+2)}, {s(S_WOFF)}, {v(QA)}")
        e(f"v_add_u32 {v(QA)}, {s(S_PRIV)}, {v(QA)}")
        e(f"v_lshrrev_b32 {v(V_VADDR)}, 1, {v(V_T0)}")
        e(f"v_mul_u32_u24 {v(V_VADDR)}, {QRT}, {v(V_VADDR)}")
        e(f"v_and_b32 {v(V_T1)}, 1, {v(V_T0)}")
        e(f"v_mul_u32_u24 {v(NEGM+13)}, {BLK}, {v(V_T1)}")
        e(f"v_add_u32 {v(V_VADDR)}, {v(V_VADDR)}, {v(NEGM+13)}")
        e(f"v_lshl_add_u32 {v(V_VADDR)}, {v(V_T2)}, 6, {v(V_VADDR)}")
        e(f"v_lshl_add_u32 {v(V_VADDR)}, {v(V_T3)}, 3, {v(V_VADDR)}")
        e(f"v_add_u32 {v(V_VADDR)}, {2 * BLK}, {v(V_VADDR)}")
        for i in range(6): e(f"v_mov_b32 {v(L0+i)}, 0")
        if opt.get("hd", "2") != "2":
            for i in range(4): e(f"v_mov_b32 {v(PB[1]+i)}, 0")
            for i in range(32): e(f"v_accvgpr_write_b32 {a(AV(1,0)+i)}, 0")
        if opt.get("hd", "2") == "2":
            pass
        else:
            for t in range(6):
                for i in range(16, 32): e(f"v_mov_b32 {v(O(t,0)+i)}, 0")
        self.epi_addr()
        if opt.get("ofin", True):
            for i in range(4): e(f"v_accvgpr_write_b32 {a(AZERO+i)}, 0")
        if opt.get("bp", False):
            for i in range(8): e(f"v_mov_b32 {v(NEGM+16+i)}, 0")
        e(f"s_mov_b32 {s(S_T1)}, 0x3e0293ee")
        e(f"v_mov_b32 {v(V_T0)}, {s(S_T1)}")
        e(f"v_mov_b32 {v(V_T1)}, {s(S_T1)}")
        e(f"s_mov_b32 {s(S_T2)}, 0xffff0000")
        hd = opt.get("hd", "2")
        if hd == "2":
            Kf = lambda tile: [self.kread(tile & 1, tile % R, kt, ks) for kt in range(2) for ks in range(4)]
            Vf = lambda tile: [self.vread(tile & 1, tile % R, dt, hh) for dt in range(8) for hh in range(2)]
            def tile_dma(tile): dma_half(tile, 'K'); dma_half(tile, 'V')
            qload(1)
            qconv(0, lambda: qload(2))
            wait_for("V1")
            e("s_barrier")
            for x in Kf(0) + Kf(1): e(x)
            e("s_waitcnt lgkmcnt(8)")
            V0r = Vf(0)
            for kt in range(2):
                for ks in range(4):
                    e(self.qk(0, 0, kt, ks, sb=0))
                    for x in V0r[8 * kt + 2 * ks: 8 * kt + 2 * ks + 2]: e(x)
            e("s_waitcnt lgkmcnt(15)")
            qload(3)
            K2 = Kf(2)
            for n in range(12):
                nq = n + 1
                lds = []; extras = []; sh = {}
                if n % 2 == 0 and n // 2 + 1 <= 5 and n > 0: qread(n // 2 + 1)
                if nq < 12 and nq % 2 == 0:
                    tq = nq >> 1
                    if tq == 1: qread(1)
                    qcvt(tq)
                    e("s_nop 1")
                    if tq == 1: extras = self.capture(lambda: qload(4))
                    if tq == 2: extras = self.capture(lambda: qload(5))
                    if tq == 3: extras = self.capture(lambda: tile_dma(2))
                    if tq == 4: extras = self.capture(lambda: tile_dma(3))
                if n == 0: extras = Vf(1)
                if n == 9:
                    wait_for("K2")
                    e("s_barrier")
                    if not opt.get("fs") and not opt.get("fst"): self.stamp(9)
                    lds = [None, None, K2[0], K2[1]]
                if n == 10:
                    lds = K2[2:6]
                    sh = {1: [K2[6]], 3: [K2[7]]}
                    extras = self.capture(lambda: tile_dma(4))
                if n == 11:
                    wait_for("V2")
                    e("s_waitcnt lgkmcnt(0)")
                    e("s_barrier")
                    V2 = Vf(2)
                    for dt in range(7): sh[9 + dt] = V2[2 * dt: 2 * dt + 2]
                qkb = (nq & 1, nq >> 1, nq & 1) if nq < 12 else (0, 0, 0)
                pvb = ((n - 1) & 1, (n - 1) >> 1, (n - 1) & 1, (n - 1) % 2 == 0) if n >= 1 else None
                self.period_x(qkb, (n >> 1, n & 1), pvb, lds, sh, extras)
            for x in Vf(2)[14:16]: e(x)
            e(f"s_mov_b32 {s(S_TOFF)}, {5 * 8192}")
            self.stamp(10, 1)
            e(f"s_mov_b32 {s(S_CNT)}, {30 if opt.get('xu2') else (7 if opt.get('xu8') else (15 if self.tail2 else 16))}")
            if not (opt.get("rot", True) and self.tail2 and not opt.get("xu2")): e("s_branch L_it2")
        else:
            fs = opt.get("fs")
            def fstamp(i):
                if fs and not (opt.get("fine") and i in (3, 4, 5)): self.stamp(i)
            qload(2)
            fstamp(3)
            if hd == "d":
                qconv(0, lambda: (fstamp(4), qload(3), fstamp(5)))
                fstamp(6)
            else:
                qconv(0, lambda: qload(3))
                qload(4)
            wait_for("V0")
            fstamp(7)
            e("s_barrier")
            fstamp(8)
            for kt in range(2):
                for ks in range(4): e(self.kread(0, 0, kt, ks))
            for dt in range(8):
                for hh in range(2): e(self.vread(0, 0, dt, hh))
            if hd != "d":
                qload(5)
                dma_half(1, 'K'); dma_half(1, 'V')
            e("s_waitcnt lgkmcnt(15)")
            for kt in range(2):
                for ks in range(4): e(self.qk(0, 0, kt, ks))
            fstamp(9)
            K1 = [self.kread(1, 1 % R, kt, ks) for kt in range(2) for ks in range(4)]
            V1 = [self.vread(1, 1 % R, dt, hh) for dt in range(8) for hh in range(2)]
            for t in range(6):
                if t + 1 <= 5:
                    def after(t=t):
                        if hd == "d":
                            if t == 0: qload(4)
                            if t == 1: qload(5)
                            if t == 2: dma_half(1, 'K'); dma_half(1, 'V')
                            if t == 3: dma_half(2, 'K'); dma_half(2, 'V')
                        else:
                            if t == 2: dma_half(2, 'K'); dma_half(2, 'V')
                            if t == 3: dma_half(3, 'K'); dma_half(3, 'V')
                    qconv(t + 1, after)
                    e("s_nop 1")
                if t == 0: e("s_waitcnt lgkmcnt(0)")
                if t == 5:
                    wait_for("K1")
                    e("s_barrier")
                    if not opt.get("fs"): self.stamp(9)
                    for x in K1: e(x)
                    e("s_waitcnt lgkmcnt(0)")
                self.period(0, t, [], {}, do_pv=True)
            wait_for("V1")
            e("s_barrier")
            for x in V1: e(x)
            if hd == "d":
                dma_half(3, 'K'); dma_half(3, 'V')
            e(f"s_mov_b32 {s(S_TOFF)}, {(self.D + 1) * 8192}")
            self.stamp(10, 1)
            e(f"s_mov_b32 {s(S_CNT)}, {NT // R}")
            e("s_branch L_it1")
        rot = opt.get("rot", True) and opt.get("hd", "2") == "2" and self.tail2 and not opt.get("xu2")
        e(".p2align 6")
        self.lab("L_loop")
        self.inloop = True
        if rot:
            if opt.get("xu8"):
                for j in (2, 3, 0, 1):
                    self.exitpos = -1
                    self.iteration(j)
                self.exitpos = 1
            for j in (2, 3, 0, 1): self.iteration(j)
            e("s_cbranch_scc1 L_loop")
        else:
            if opt.get("xu2"):
                self.lab("L_it1")
                self.iteration(1)
                e("s_cbranch_scc0 L_last")
                self.lab("L_it2")
                self.iteration(2)
                e(f"v_add_u32 {v(V_KADDR)}, 0, {v(V_KADDR)}")
                e(f"v_add_u32 {v(V_VADDR)}, 0, {v(V_VADDR)}")
            for j in (range(R) if not opt.get("xu2") else []):
                if j == 1: self.lab("L_it1")
                if j == 2: self.lab("L_it2")
                self.iteration(j)
                if self.peel and j == self.exitpos: e("s_cbranch_scc0 L_last")
            if self.peel: e("s_branch L_loop")
            else: e("s_cbranch_scc1 L_loop")
        self.inloop = False
        if self.peel:
            self.lab("L_last")
            self.stamp(11, 2)
            self.last_iteration()
        else:
            self.stamp(11, 2)
            red = self.lreduce()
            e("s_nop 1")
            for dt in range(8):
                e(self.pv(63 & 1, 5, dt))
                for x in red[2*dt:2*dt+2]: e(x)
            for x in red[16:]: e(x)
            self.check()
            self.lab("L_norm")
            for t in range(6): e(f"v_rcp_f32 {v(L0+t)}, {v(L0+t)}")
            self.stamp(12, 3)
            self.epilogue()
        self.stamp(13, 4)
        if opt.get("stamp") and opt.get("dbg") is None:
            e("s_waitcnt vmcnt(0)")
            self.stamp(14, 5)
            e(f"s_load_dwordx2 {s(S_WS,2)}, s[0:1], 40")
            e("s_waitcnt lgkmcnt(0)")
            e(f"s_mov_b32 {s(S_WS+2)}, 0x20000000")
            e(f"s_mov_b32 {s(S_WS+3)}, 0x20000")
            e(f"v_mov_b32 {v(V_T0)}, 0")
            for i in range(16): e(f"v_writelane_b32 {v(V_T0)}, {s(S_RST + 2*i)}, {i}")
            for i in range(8): e(f"v_writelane_b32 {v(V_T0)}, {s(S_CST + 2*i)}, {16+i}")
            e(f"s_lshl_b32 {s(S_T0)}, s2, 2")
            e(f"s_add_u32 {s(S_T0)}, {s(S_T0)}, {s(S_W)}")
            e(f"s_lshl_b32 {s(S_T0)}, {s(S_T0)}, 8")
            e(f"v_lshlrev_b32 {v(V_T1)}, 2, {v(V_LANE)}")
            e(f"buffer_store_dword {v(V_T0)}, {v(V_T1)}, {s(S_WS,4)}, {s(S_T0)} offen")
        if opt.get("dbg") is not None:
            e("s_waitcnt vmcnt(0)")
            self.stamp(14, 5)
            e(f"s_load_dwordx2 {s(S_WS,2)}, s[0:1], 32")
            e("s_waitcnt lgkmcnt(0)")
            e(f"s_cmp_lg_u32 s2, {opt['dbg']}")
            e("s_cbranch_scc1 L_end")
            e(f"s_cmp_lg_u32 {s(S_W)}, 0")
            e("s_cbranch_scc1 L_end")
            e(f"s_mov_b32 {s(S_WS+2)}, 256")
            e(f"s_mov_b32 {s(S_WS+3)}, 0x20000")
            e(f"v_mov_b32 {v(V_T0)}, 0")
            for i in range(1, 15):
                e(f"s_sub_u32 {s(S_T0)}, {s(S_RST + 2*i)}, {s(S_RST)}")
                e(f"v_writelane_b32 {v(V_T0)}, {s(S_T0)}, {i - 1}")
            e(f"s_sub_u32 {s(S_T0)}, {s(S_CST + 4)}, {s(S_CST + 2)}")
            e(f"v_writelane_b32 {v(V_T0)}, {s(S_T0)}, 14")
            e(f"s_sub_u32 {s(S_T0)}, {s(S_CST + 10)}, {s(S_CST)}")
            e(f"v_writelane_b32 {v(V_T0)}, {s(S_T0)}, 15")
            e(f"v_lshlrev_b32 {v(V_T1)}, 2, {v(V_LANE)}")
            e(f"buffer_store_dword {v(V_T0)}, {v(V_T1)}, {s(S_WS,4)}, 0 offen")
        for _ in range(opt.get("sleep1", 0)): e("s_sleep 32")
        self.lab("L_end")
        e("s_endpgm")
        if not opt.get("nocheck"): self.fallback()
        self.o.append(f""".section .rodata,"a"
.p2align 6
.amdhsa_kernel {KN}
  .amdhsa_next_free_vgpr 512
  .amdhsa_next_free_sgpr 102
  .amdhsa_accum_offset 256
  .amdhsa_group_segment_fixed_size 0
  .amdhsa_kernarg_size 48
  .amdhsa_user_sgpr_count 2
  .amdhsa_user_sgpr_kernarg_segment_ptr 1
  .amdhsa_system_sgpr_workgroup_id_x 1
.end_amdhsa_kernel""")
        return self.pad_hazards("\n".join(self.o) + "\n")

    def check(self):
        if self.opt.get("nocheck"): return
        e = self.e
        e(f"v_max3_f32 {v(NEGM)}, {v(L0)}, {v(L0+1)}, {v(L0+2)}")
        e(f"v_min3_f32 {v(NEGM+1)}, {v(L0)}, {v(L0+1)}, {v(L0+2)}")
        e(f"v_max3_f32 {v(NEGM)}, {v(NEGM)}, {v(L0+3)}, {v(L0+4)}")
        e(f"v_min3_f32 {v(NEGM+1)}, {v(NEGM+1)}, {v(L0+3)}, {v(L0+4)}")
        e(f"v_max_f32 {v(NEGM)}, {v(NEGM)}, {v(L0+5)}")
        e(f"v_min_f32 {v(NEGM+1)}, {v(NEGM+1)}, {v(L0+5)}")
        e(f"s_mov_b32 {s(S_T1)}, 0x53800000")
        e(f"s_mov_b32 {s(S_T3)}, 0x3d800000")
        e(f"v_cmp_ge_f32 vcc, {s(S_T1)}, {v(NEGM)}")
        e(f"v_cmp_le_f32 {s(S_CMP,2)}, {s(S_T3)}, {v(NEGM+1)}")
        e(f"s_and_b64 vcc, vcc, {s(S_CMP,2)}")
        if self.opt.get("ofin", True) and self.tail2:
            e(f"v_add_f32 {v(FIN)}, {v(FIN)}, {v(FIN+1)}")
            e(f"v_add_f32 {v(FIN+2)}, {v(FIN+2)}, {v(FIN+3)}")
            e(f"v_add_f32 {v(FIN)}, {v(FIN)}, {v(FIN+2)}")
            e(f"v_cmp_o_f32 {s(S_CMP,2)}, {v(FIN)}, {v(FIN)}")
            e(f"s_and_b64 vcc, vcc, {s(S_CMP,2)}")
        e("s_cmp_eq_u64 vcc, -1")
        e("s_cbranch_scc0 L_fallback")

    def epi_addr(self):
        e = self.e
        WA, RA, GA = V_T2, V_T3, V_OST
        e(f"v_and_b32 {v(NEGM+16)}, 15, {v(V_LANE)}")
        e(f"v_lshrrev_b32 {v(NEGM+17)}, 4, {v(V_LANE)}")
        e(f"v_mul_u32_u24 {v(WA)}, 272, {v(NEGM+16)}")
        e(f"v_lshl_add_u32 {v(WA)}, {v(NEGM+17)}, 3, {v(WA)}")
        e(f"v_add_u32 {v(WA)}, {s(S_PRIV)}, {v(WA)}")
        e(f"v_mul_u32_u24 {v(RA)}, 272, {v(NEGM+17)}")
        e(f"v_lshl_add_u32 {v(RA)}, {v(NEGM+16)}, 4, {v(RA)}")
        e(f"v_add_u32 {v(RA)}, {s(S_PRIV)}, {v(RA)}")
        e(f"s_mul_i32 {s(S_T1)}, {s(S_W)}, {96 * 256}")
        e(f"v_lshlrev_b32 {v(GA)}, 4, {v(V_LANE)}")
        e(f"v_add_u32 {v(GA)}, {s(S_T1)}, {v(GA)}")

    def last_iteration(self):
        e = self.e; opt = self.opt
        WA, RA, GA = V_T2, V_T3, V_OST
        RC = NEGM + 8
        def lred(t):
            L, T = L0 + t, NEGM + t
            fold = [f"v_add_f32 {v(L)}, {v(L)}, {v(NEGM+16+2*t)}", f"v_add_f32 {v(L)}, {v(L)}, {v(NEGM+17+2*t)}"] if opt.get("bp", False) and t < 4 else []
            return fold + [f"v_mov_b32 {v(T)}, {v(L)}", f"v_permlane32_swap_b32 {v(L)}, {v(T)}", f"v_add_f32 {v(L)}, {v(L)}, {v(T)}",
                    f"v_mov_b32 {v(T)}, {v(L)}", f"v_permlane16_swap_b32 {v(L)}, {v(T)}", f"v_add_f32 {v(L)}, {v(L)}, {v(T)}",
                    f"v_rcp_f32 {v(RC+t)}, {v(L)}"]
        def norm(t, pk=False):
            x = []
            if pk:
                x += [f"v_mov_b32 {v(V_T0)}, {v(RC+t)}", f"v_mov_b32 {v(V_T1)}, {v(RC+t)}"]
            for dt in range(8):
                o = O(t, dt)
                if pk:
                    x += [f"v_pk_mul_f32 {v(o,2)}, {v(o,2)}, {v(V_T0,2)}", f"v_pk_mul_f32 {v(o+2,2)}, {v(o+2,2)}, {v(V_T0,2)}"]
                else:
                    x += [f"v_mul_f32 {v(o+r)}, {v(o+r)}, {v(RC+t)}" for r in range(4)]
                x += [f"v_cvt_pk_bf16_f32 {v(o)}, {v(o)}, {v(o+1)}", f"v_cvt_pk_bf16_f32 {v(o+1)}, {v(o+2)}, {v(o+3)}",
                      f"ds_write_b64 {v(WA)}, {v(o,2)} offset:{(t & 1) * STG + 32 * dt}"]
            x += [f"ds_read_b128 {v(O(t, 0) + 4 * k, 4)}, {v(RA)} offset:{(t & 1) * STG + k * 4 * 272}" for k in range(4)]
            return x
        def stores(t):
            if opt.get("nostore"): return []
            fl = self.stfl if t < opt.get("wbfrom", 6) else opt.get("wbfl", "")
            return [f"buffer_store_dwordx4 {v(O(t, 0) + 4 * k, 4)}, {v(GA)}, {s(S_OSRD,4)}, {s(S_T0)} offen offset:{1024 * k}{fl}" for k in range(4)]
        def pre(t, n=0): return [f"s_waitcnt lgkmcnt({n})", f"s_mov_b32 {s(S_T0)}, {t * 4096}"]
        _stores = stores
        if opt.get("ofin", True):
            def stores(t):
                x = []
                for k, st in enumerate(_stores(t)):
                    x += [st, f"{M16} {v(FIN,4)}, {a(AZERO,4)}, {v(O(t, 0) + 4 * k, 4)}, {'0' if (t == 0 and k == 0) else v(FIN,4)}"]
                return x
        def weave(main, sts):
            out = []; n = len(main); k = len(sts); j = 0
            for i, x in enumerate(main):
                while j < k and (j * n) // k + 1 <= i:
                    out.append(sts[j]); j += 1
                out.append(x)
            out += sts[j:]
            assert len(out) == n + k
            return out
        pk = opt.get("epipk", False)
        def weave2(main, sts):
            if not main: return list(sts)
            return weave(main, sts)
        if self.tail2:
            self.c("---- last two tiles, q-tile major")
            b = [(0, 62), (1, 62), (0, 63), (1, 63), (2, 62), (2, 63), (3, 62), (3, 63), (4, 62), (4, 63), (5, 62), (5, 63)]
            K63 = [self.kread(1, 63 % R, kt, ks) for kt in range(2) for ks in range(4)]
            V63 = [self.vread(1, 63 % R, dt, hh) for dt in range(8) for hh in range(2)]
            exs = {3: lambda: lred(0), 4: lambda: lred(1) + norm(0, pk),
                   5: lambda: pre(0) + weave2(norm(1, pk), stores(0)), 6: lambda: pre(1) + weave2(lred(2), stores(1)),
                   7: lambda: norm(2, pk), 8: lambda: pre(2) + weave2(lred(3), stores(2)),
                   9: lambda: norm(3, pk), 10: lambda: pre(3) + weave2(lred(4), stores(3)),
                   11: lambda: norm(4, pk) + ((pre(4) + stores(4)) if opt.get("early4") else [])}
            for n in range(12):
                sh = {}; lds = []
                if opt.get("fst") and n in (2, 4, 5, 6, 8, 10): self.stamp({2: 3, 4: 4, 5: 5, 6: 6, 8: 7, 10: 8}[n])
                if n == 0:
                    sh[0] = [f"s_waitcnt vmcnt({4 * (self.D - 2)})", "s_barrier"]
                    lds = K63[0:4]
                    for i, g in enumerate((1, 3, 5, 7)): sh[g] = [K63[4 + i]]
                if n == 1:
                    sh[0] = []
                    e("s_waitcnt lgkmcnt(0)")
                if n in (1, 2):
                    o = 8 * (n - 1)
                    lds = V63[o:o + 4]
                    for i, g in enumerate((1, 3, 5, 7)): sh[g] = [V63[o + 4 + i]]
                if n == 3: sh[0] = ["s_waitcnt lgkmcnt(0)"]
                qkb = (b[n + 1][1] & 1, b[n + 1][0], (n + 1) & 1) if n < 11 else None
                pvb = (b[n - 1][1] & 1, b[n - 1][0], (n - 1) & 1) if n >= 1 else (1, 5, 1)
                self.period_x(qkb, (b[n][0], n & 1), pvb, lds, sh, exs[n]() if n in exs else None)
            if opt.get("fst"): self.stamp(9)
            ex = lred(5) if opt.get("early4") else pre(4) + weave2(lred(5), stores(4))
            e("s_nop 1")
            n = len(ex)
            for dt in range(8):
                e(self.pv(1, 5, dt, pb=1))
                for x in ex[dt * n // 8:(dt + 1) * n // 8]: e(x)
            self.stamp(12, 3)
            for x in norm(5, pk=True): e(x)
            for x in pre(5) + stores(5): e(x)
            self.check()
            return
        self.c("---- last tile")
        for t in range(6):
            sh = {}
            if t == 1: sh[0] = ["s_waitcnt lgkmcnt(0)"]
            ex = []
            if t >= 1: ex += lred(t - 1)
            if t >= 2: ex += norm(t - 2, pk)
            if t >= 3: ex = pre(t - 3) + weave(ex, stores(t - 3))
            self.period(63, t, [], sh, do_qk=(t < 5), extras=ex)
        ex = pre(3) + weave(lred(5) + norm(4, pk), stores(3))
        e("s_nop 1")
        n = len(ex)
        for dt in range(8):
            e(self.pv(63 & 1, 5, dt))
            for x in ex[dt * n // 8:(dt + 1) * n // 8]: e(x)
        self.check()
        self.stamp(12, 3)
        nx = norm(5, pk=True)
        for x in pre(4) + weave(nx[:-4], stores(4)) + nx[-4:]: e(x)
        for x in pre(5) + stores(5): e(x)

    def epilogue(self):
        e = self.e; opt = self.opt
        WA, RA, GA = V_T2, V_T3, V_OST
        PK = [SB[0], NEGM]
        RD = [160 - 160 + 0, 0]
        e(f"s_mul_i32 {s(S_T1)}, {s(S_W)}, {PRIV}")
        e(f"s_add_u32 {s(S_T1)}, {s(S_T1)}, {R * SLOT}")
        e(f"v_and_b32 {v(V_T0)}, 15, {v(V_LANE)}")
        e(f"v_lshrrev_b32 {v(V_T1)}, 4, {v(V_LANE)}")
        e(f"v_mul_u32_u24 {v(WA)}, 272, {v(V_T0)}")
        e(f"v_lshl_add_u32 {v(WA)}, {v(V_T1)}, 3, {v(WA)}")
        e(f"v_add_u32 {v(WA)}, {s(S_T1)}, {v(WA)}")
        e(f"v_mul_u32_u24 {v(RA)}, 272, {v(V_T1)}")
        e(f"v_lshl_add_u32 {v(RA)}, {v(V_T0)}, 4, {v(RA)}")
        e(f"v_add_u32 {v(RA)}, {s(S_T1)}, {v(RA)}")
        e(f"s_mul_i32 {s(S_T1)}, {s(S_W)}, {96 * 256}")
        e(f"v_lshlrev_b32 {v(GA)}, 4, {v(V_LANE)}")
        e(f"v_add_u32 {v(GA)}, {s(S_T1)}, {v(GA)}")
        def pack(t):
            L = L0 + t
            e(f"v_mov_b32 {v(V_T0)}, {v(L)}")
            e(f"v_mov_b32 {v(V_T1)}, {v(L)}")
            for dt in range(8):
                o = O(t, dt)
                e(f"v_pk_mul_f32 {v(o,2)}, {v(o,2)}, {v(V_T0,2)}")
                e(f"v_pk_mul_f32 {v(o+2,2)}, {v(o+2,2)}, {v(V_T0,2)}")
            for dt in range(8):
                o = O(t, dt)
                e(f"v_cvt_pk_bf16_f32 {v(o)}, {v(o)}, {v(o+1)}")
                e(f"v_cvt_pk_bf16_f32 {v(o+1)}, {v(o+2)}, {v(o+3)}")
                e(f"ds_write_b64 {v(WA)}, {v(o,2)} offset:{(t & 1) * STG + 32 * dt}")
        def unload(t):
            for k in range(4):
                e(f"ds_read_b128 {v(O(t, 0) + 4 * k, 4)}, {v(RA)} offset:{(t & 1) * STG + k * 4 * 272}")
        def store(t):
            e(f"s_mov_b32 {s(S_T0)}, {t * 4096}")
            for k in range(4):
                if not opt.get("nostore"):
                    e(f"buffer_store_dwordx4 {v(O(t, 0) + 4 * k, 4)}, {v(GA)}, {s(S_OSRD,4)}, {s(S_T0)} offen offset:{1024 * k}{self.stfl}")
        pack(0); unload(0)
        for t in range(1, 6):
            pack(t)
            e("s_waitcnt lgkmcnt(8)")
            store(t - 1)
            unload(t)
        e("s_waitcnt lgkmcnt(0)")
        store(5)

    def pad_hazards(self, text):
        import hazchk
        lines = text.split("\n")
        out = []; hist = []; code = False
        for raw in lines:
            line = raw.split(';')[0].strip()
            if line.endswith('_kernel:'): code = True
            if line.startswith('.section'): code = False
            if not code or not line or line.startswith('.') or line.endswith(':'):
                out.append(raw); continue
            b = hazchk.I(line, 0)
            need_pad = hazchk.required_pad(hist, b)
            if need_pad:
                out.append(f"    s_nop {need_pad - 1}")
                hist.append(hazchk.I(f"s_nop {need_pad - 1}", 0))
            out.append(raw); hist.append(b)
            hist = hist[-40:]
        return "\n".join(out)

    def fallback(self):
        e = self.e
        FA, FB, FK, FV = V_T0, V_T1, V_T2, V_T3
        MX = L0
        self.lab("L_fallback")
        e("s_waitcnt vmcnt(0) lgkmcnt(0)")
        e("s_barrier")
        e(f"s_lshl_b32 {s(S_T0)}, {s(S_W)}, 11")
        e(f"v_subrev_u32 {v(FA)}, {s(S_T0)}, {v(V_OFFA)}")
        e(f"v_subrev_u32 {v(FB)}, {s(S_T0)}, {v(V_OFFB)}")
        e(f"s_mul_i32 {s(S_WOFF)}, {s(S_W)}, {SLOT}")
        e(f"v_add_u32 {v(FK)}, {s(S_WOFF)}, {v(V_KADDR)}")
        e(f"v_add_u32 {v(FV)}, {s(S_WOFF)}, {v(V_VADDR)}")
        def load_tile(with_v):
            for q in range(4):
                e(f"s_add_u32 m0, {s(S_WOFF)}, {q * QRT}")
                e(f"s_add_u32 {s(S_TOFF)}, {s(S_T1)}, {q * 2048}")
                for i in range(4 if with_v else 2): e(self.dma(i, FA, FB))
            e("s_waitcnt vmcnt(0)")
            for kt in range(2):
                for ks in range(4): e(self.kread(0, 0, kt, ks, FK))
            if with_v:
                for dt in range(8):
                    for hh in range(2): e(self.vread(0, 0, dt, hh, FV))
            e("s_waitcnt lgkmcnt(0)")
        for t in range(6): e(f"v_mov_b32 {v(MX+t)}, 0xff800000")
        e(f"s_mov_b32 {s(S_T1)}, 0")
        self.lab("L_fb1")
        load_tile(False)
        for t in range(6):
            for kt in range(2):
                for ks in range(4): e(self.qk(0, t, kt, ks))
            e("s_nop 7")
            e("s_nop 1")
            S = SB[t & 1]
            for i in range(0, 8, 2): e(f"v_max3_f32 {v(MX+t)}, {v(MX+t)}, {v(S+i)}, {v(S+i+1)}")
        e(f"s_add_u32 {s(S_T1)}, {s(S_T1)}, 8192")
        e(f"s_cmp_lt_u32 {s(S_T1)}, {NT * 8192}")
        e("s_cbranch_scc1 L_fb1")
        for x in self.lreduce("v_max_f32"):
            e(x); e("s_nop 1")
        for t in range(6):
            for r in range(4): e(f"v_sub_f32 {v(NEGM + 4*t + r)}, 0, {v(MX+t)}")
        for t in range(6): e(f"v_mov_b32 {v(L0+t)}, 0")
        for i in range(192): e(f"v_mov_b32 {v(i)}, 0")
        e(f"s_mov_b32 {s(S_T1)}, 0")
        self.lab("L_fb2")
        load_tile(True)
        for t in range(6):
            for kt in range(2):
                for ks in range(4): e(self.qk(0, t, kt, ks, v(NEGM + 4*t, 4)))
            e("s_nop 7")
            e("s_nop 1")
            S = SB[t & 1]; P = PB[t & 1]
            for i in range(8): e(f"v_exp_f32 {v(S+i)}, {v(S+i)}")
            e("s_nop 0")
            for i in range(8): e(f"v_add_f32 {v(L0+t)}, {v(L0+t)}, {v(S+i)}")
            for i in range(4): e(f"v_cvt_pk_bf16_f32 {v(P+i)}, {v(S+2*i)}, {v(S+2*i+1)}")
            e("s_nop 1")
            for dt in range(8): e(self.pv(0, t, dt))
        e(f"s_add_u32 {s(S_T1)}, {s(S_T1)}, 8192")
        e(f"s_cmp_lt_u32 {s(S_T1)}, {NT * 8192}")
        e("s_cbranch_scc1 L_fb2")
        for x in self.lreduce():
            e(x); e("s_nop 1")
        e("s_nop 7")
        if self.peel:
            for t in range(6): e(f"v_rcp_f32 {v(L0+t)}, {v(L0+t)}")
            self.epilogue()
            e("s_endpgm")
        else:
            e("s_branch L_norm")

if __name__ == "__main__":
    opt = {}
    out = sys.argv[1]
    for x in sys.argv[2:]:
        k, _, val = x.partition("=")
        opt[k] = eval(val) if val else True
    open(out, "w").write(Gen(opt).build())
```

```python
import sys

KN = "standalone__mha_softmax__near_ridge_kernel"
M16 = "v_mfma_f32_16x16x32_bf16"
NT = 64
BLK = 1056
QRT = 4 * BLK
SLOT = 4 * QRT
R = 6
STG = 16 * 272
QBUF = 4 * BLK
PRIV = 2 * STG

def O(t, dt): return 32 * t + 4 * dt
SB = [192, 200]
PB = [208, 212]
def PO(par, k): return 232 + 12 * par + 4 * k
L0 = 216
V_KADDR, V_VADDR, V_OFFA, V_OFFB = 222, 223, 224, 225
V_LANE, V_OST, V_T0, V_T1, V_T2, V_T3 = 226, 227, 228, 229, 230, 231
NEGM = 232
def AQ(t, ks): return 16 * t + 4 * ks
def AK(p, kt, ks): return 96 + 32 * p + 16 * kt + 4 * ks
def AV(p, dt): return 160 + 32 * p + 4 * dt

S_QSRD, S_KSRD, S_VSRD, S_OSRD = 4, 8, 12, 16
S_W, S_WOFF, S_TOFF, S_CNT, S_T0, S_T1, S_T2, S_T3 = 20, 21, 22, 23, 24, 25, 26, 27
S_WS = 28
S_PRIV = 88
VZERO = 252
V_KHI, V_VHI = 228, 229
FIN = 248
S_CMP = 90
S_RST = 40
S_CST = 72

def v(a, n=1): return f"v{a}" if n == 1 else f"v[{a}:{a+n-1}]"
def a(x, n=1): return f"a{x}" if n == 1 else f"a[{x}:{x+n-1}]"
def s(x, n=1): return f"s{x}" if n == 1 else f"s[{x}:{x+n-1}]"

class Gen:
    def __init__(self, opt):
        self.o = []
        self.opt = opt
        self.LDS = R * SLOT + 4 * PRIV
        self.ldfl = opt.get("ldfl", " nt")
        self.qfl = opt.get("qfl", " nt")
        self.stfl = opt.get("stfl", " sc0 sc1 nt")
        self.inloop = False
        self.D = 3
        self.peel = opt.get('peel', True)
        self.tail2 = opt.get('tail2', True) and self.peel
        self.exitpos = 1
    def e(self, line): self.o.append("    " + line)
    def lab(self, name): self.o.append(name + ":")
    def c(self, txt): self.o.append("    ; " + txt)
    def nit(self):
        first = 2 if self.opt.get("hd", "2") == "2" else 1
        last = 63 if not self.peel else (61 if self.tail2 else 62)
        if self.opt.get("xu8"): return 56
        return last - first + 1
    def capture(self, fn):
        saved = self.o; self.o = []
        fn()
        lines = [x.strip() for x in self.o]; self.o = saved
        return lines
    def stamp(self, idx, cyc=None):
        if self.opt.get("stamp"):
            self.e(f"s_memrealtime {s(S_RST + 2 * idx, 2)}")
            if cyc is not None: self.e(f"s_memtime {s(S_CST + 2 * cyc, 2)}")

    def dma(self, i, va=V_OFFA, vb=V_OFFB):
        srd = S_KSRD if i < 2 else S_VSRD
        off = f" offset:{i * BLK}" if i else ""
        return f"buffer_load_dwordx4 {v(va if i % 2 == 0 else vb)}, {s(srd,4)}, {s(S_TOFF)} offen{off}{self.ldfl} lds"
    def m0set(self, slot): return f"s_add_u32 m0, {s(S_WOFF)}, {slot * SLOT}"
    def kread(self, p, slot, kt, ks, addr=None):
        if addr is None: addr = V_KADDR if slot < 3 else V_KHI
        return f"ds_read_b128 {a(AK(p, kt, ks), 4)}, {v(addr)} offset:{(slot % 3) * SLOT + kt * 2 * QRT + 256 * ks}"
    def vread(self, p, slot, dt, hh, addr=None):
        if addr is None: addr = V_VADDR if slot < 3 else V_VHI
        return f"ds_read_b64_tr_b16 {a(AV(p, dt) + 2 * hh, 2)}, {v(addr)} offset:{(slot % 3) * SLOT + hh * 2 * QRT + 256 * (dt >> 1) + 32 * (dt & 1)}"
    def qk(self, p, t, kt, ks, cinit="0", sb=None):
        d = v(SB[t & 1 if sb is None else sb] + 4 * kt, 4)
        first = ks == 0
        if self.opt.get("rev", True) and kt == 1: ks = 3 - ks
        return f"{M16} {d}, {a(AK(p, kt, ks), 4)}, {a(AQ(t, ks), 4)}, {cinit if first else d}"
    def pv(self, p, t, dt, pb=None, first=False):
        d = v(O(t, dt), 4)
        return f"{M16} {d}, {a(AV(p, dt), 4)}, {v(PB[t & 1 if pb is None else pb], 4)}, {'0' if first else d}"

    def pvm(self, t, dt, vb, preg, first=False):
        d = v(O(t, dt), 4)
        return f"{M16} {d}, {a(AV(vb, dt), 4)}, {v(preg, 4)}, {'0' if first else d}"
    def pvgroup(self, t, vb, preg, first=False):
        return [self.pvm(t, dt, vb, preg, first) for dt in range(8)]
    def pvchain(self, t, dts, vb_old, p_old, vb_new, p_new, first=False, lead_new=False):
        out = []
        for i, dt in enumerate(dts):
            pair = [(vb_old, p_old), (vb_new, p_new)]
            if lead_new and i == 0: pair.reverse()
            out += [self.pvm(t, dt, pair[0][0], pair[0][1], first), self.pvm(t, dt, pair[1][0], pair[1][1])]
        return out
    @staticmethod
    def halfdts(c, second):
        if c % 2 == 0: return [4, 5, 6, 7] if second else [0, 1, 2, 3]
        return [3, 2, 1, 0] if second else [7, 6, 5, 4]
    def qkgroup(self, kb, t, sb, ptype=None):
        seq = [(1,0),(1,1),(1,2),(1,3),(0,3),(0,2),(0,1),(0,0)] if ptype == 'A' else [(0,0),(0,1),(0,2),(0,3),(1,3),(1,2),(1,1),(1,0)]
        out = []; seen = set()
        for kt, ks in seq:
            d = v(SB[sb] + 4 * kt, 4)
            out.append(f"{M16} {d}, {a(AK(kb, kt, ks), 4)}, {a(AQ(t, ks), 4)}, {d if kt in seen else '0'}")
            seen.add(kt)
        return out

    def period_x(self, Q, sm, V, lds, shadow, extras=None, ptype=None):
        Q = list(Q) if Q else [None] * 8
        V = list(V) if V else []
        tail = V[8:]
        V = V[:8] + [None] * (8 - len(V[:8]))
        mf = (V + Q) if ptype == 'B' else (Q + V)
        t, sb, P = sm
        S = SB[sb]; L = L0 + t
        bp = None
        e64 = self.opt.get("e64", "")
        ex = lambda i: f"v_exp_f32{'_e64' if 'e' in e64 else ''} {v(S+i)}, {v(S+i)}"
        ad = lambda i: f"v_add_f32{'_e64' if 'a' in e64 else ''} {v(L)}, {v(L)}, {v(S+i)}"
        cv = lambda i: f"v_cvt_pk_bf16_f32 {v(P+i)}, {v(S+2*i)}, {v(S+2*i+1)}"
        lds = list(lds) + [None] * (4 - len(lds))
        fill = {0: [ex(0)], 1: [ex(1)], 2: [lds[0], ad(0)], 3: [ex(2)], 4: [ad(1), cv(0)], 5: [ex(3)],
                6: [lds[1], ad(2)], 7: [ex(4)], 8: [ad(3), cv(1)], 9: [ex(5)], 10: [lds[2], ad(4)],
                11: [ex(6)], 12: [ad(5), cv(2)], 13: [ex(7)], 14: [lds[3], ad(6)], 15: [ad(7), cv(3)]}
        if ptype == 'A':
            fill[14] = [cv(3), ad(6)]
            fill[15] = [lds[3], ad(7)]
        if bp:
            LP = NEGM + 16 + 2 * t
            fill[6] = [lds[1], cv(1)]
            fill[8] = [bp, f"v_pk_add_f32 {v(LP,2)}, {v(LP,2)}, {v(S+2,2)}"]
        abl = self.opt.get("abl", "") if self.inloop else ""
        for g in range(16):
            if mf[g]: self.e(mf[g])
            for x in shadow.get(g, []):
                if 'D' in abl and x.startswith("buffer_load"): continue
                if 'B' in abl and x.startswith("s_barrier"): continue
                self.e(x)
            for x in fill[g]:
                if x is None: continue
                if 'e' in abl and x.startswith("v_exp"): continue
                if 'a' in abl and x.startswith("v_add"): continue
                if 'c' in abl and x.startswith("v_cvt"): continue
                if 'l' in abl and x.startswith("ds_read"): continue
                self.e(x)
            if extras:
                n = len(extras)
                for x in extras[g * n // 16:(g + 1) * n // 16]: self.e(x)
        for x in tail: self.e(x)

    def iteration(self, j):
        self.c(f"---- iteration j%R={j % R}")
        PI = lambda jj: (0, 1, 2, 3, 4, 5) if jj % 2 == 0 else (1, 0, 3, 2, 5, 4)
        K = [self.kread((j + 1) & 1, (j + 1) % R, kt, ks) for kt in range(2) for ks in range(4)]
        V = [self.vread((j + 1) % 3, (j + 1) % R, dt, hh) for dt in range(8) for hh in range(2)]
        sched = [K[0:4], [K[4]] + V[0:3], [K[5]] + V[3:6], [K[6]] + V[6:9], [K[7]] + V[9:12], V[12:16]]
        sl = (j + self.D) % R
        pos = self.opt.get("dmapos", {0: [(1, 'm'), (3, 0)], 1: [(3, 1)], 2: [(3, 2)], 3: [(3, 3), (5, 'inc')]})
        for p in range(6):
            sh = {}
            if p == 0:
                sh[0] = [f"s_waitcnt vmcnt({4 * (self.D - 2)})", "s_barrier"]
                sh[15] = ["s_waitcnt lgkmcnt(3)"]
            if p == 5: sh[4] = ["s_waitcnt lgkmcnt(4)"]
            for (g, what) in pos.get(p, []):
                if what == 'm': ins = self.m0set(sl)
                elif what == 'inc': ins = f"s_add_u32 {s(S_TOFF)}, {s(S_TOFF)}, 8192"
                else: ins = self.dma(what)
                sh.setdefault(g, []).append(ins)
            if p == 5 and j % R == self.exitpos:
                sh.setdefault(3, []).append(f"s_sub_u32 {s(S_CNT)}, {s(S_CNT)}, 1")
                sh.setdefault(5, []).append(f"s_cmp_lg_u32 {s(S_CNT)}, 0")
            ptype = 'AB'[p & 1]
            jq, tq = (j, PI(j)[p + 1]) if p < 5 else (j + 1, PI(j + 1)[0])
            Q = self.qkgroup(jq & 1, tq, (p + 1) & 1, ptype)
            pdst = PB[(3 * j + p // 2) & 1] if p % 2 == 0 else PO(j & 1, p // 2)
            jj, q = (j, (p - 1) // 2 * 2) if p >= 1 else (j - 1, 4)
            second = p % 2 == 0
            c = 3 * jj + q // 2
            seam = self.opt.get("seam", True)
            dts = self.halfdts(c, second) if seam else ([4, 5, 6, 7] if second else [0, 1, 2, 3])
            Vg = self.pvchain(PI(jj)[q], dts, (jj - 1) % 3, PO((jj - 1) & 1, q // 2), jj % 3, PB[c & 1],
                              lead_new=(seam and not second and q > 0))
            self.period_x(Q, (PI(j)[p], p & 1, pdst), Vg, sched[p], sh, ptype=ptype)

    def lreduce(self, op="v_add_f32", regs=None):
        regs = regs or [L0 + t for t in range(6)]
        red = []
        for t in range(6): red.append(f"v_mov_b32 {v(NEGM+t)}, {v(regs[t])}")
        for t in range(6): red.append(f"v_permlane32_swap_b32 {v(regs[t])}, {v(NEGM+t)}")
        for t in range(6): red.append(f"{op} {v(regs[t])}, {v(regs[t])}, {v(NEGM+t)}")
        for t in range(6): red.append(f"v_mov_b32 {v(NEGM+t)}, {v(regs[t])}")
        for t in range(6): red.append(f"v_permlane16_swap_b32 {v(regs[t])}, {v(NEGM+t)}")
        for t in range(6): red.append(f"{op} {v(regs[t])}, {v(regs[t])}, {v(NEGM+t)}")
        return red

    def build(self):
        opt = self.opt
        e = self.e
        self.o.append(f"""; MHA forward (softmax(Q K^T / sqrt(D)) V), B=8 H=32 Sq=384 Sk=2048 D=128, bf16 in / bf16 out.
; @launch grid=(256,1,1) block=(256,1,1) lds={self.LDS}
;
.amdgcn_target "amdgcn-amd-amdhsa--gfx950"
.text
.globl {KN}
.p2align 8
.type {KN},@function
{KN}:""")
        e("s_load_dwordx4 s[32:35], s[0:1], 0")
        e("s_load_dwordx4 s[36:39], s[0:1], 16")
        e("s_cmpk_ge_u32 s2, 0x100")
        e("s_cbranch_scc1 L_end")
        self.stamp(0)
        for _ in range(opt.get("sleep0", 0)): e("s_sleep 32")
        QV = NEGM + 4
        X = QV + 3
        e(f"v_lshrrev_b32 {v(V_T1)}, 6, v0")
        e(f"v_bfe_u32 {v(V_T2)}, v0, 2, 2")
        e(f"v_bfe_u32 {v(V_T0)}, v0, 4, 2")
        e(f"v_readfirstlane_b32 {s(S_W)}, {v(V_T1)}")
        e(f"v_and_b32 {v(V_T3)}, 3, v0")
        e(f"v_lshlrev_b32 {v(X)}, 8, {v(V_T2)}")
        e(f"v_lshl_add_u32 {v(X)}, {v(V_T0)}, 6, {v(X)}")
        e(f"v_lshl_add_u32 {v(X)}, {v(V_T3)}, 4, {v(X)}")
        if opt.get("dmalin"):
            e(f"v_and_b32 {v(X)}, 63, v0"); e(f"v_lshlrev_b32 {v(X)}, 4, {v(X)}")
        e(f"s_lshl_b32 {s(S_T0)}, {s(S_W)}, {10 if opt.get('xdma') else 11}")
        e(f"s_mul_i32 {s(S_WOFF)}, {s(S_W)}, {QRT}")
        e(f"v_add_u32 {v(V_OFFB)}, {s(S_T0)}, {v(X)}")
        e(f"v_add_u32 {v(V_OFFA)}, 32, {v(V_OFFB)}")
        if opt.get('xdma'): e(f"v_add_u32 {v(V_OFFB)}, 3072, {v(V_OFFB)}")
        e(f"s_mul_i32 {s(S_T0)}, {s(S_W)}, {96 * 256}")
        e(f"v_add_u32 {v(QV+3)}, {s(S_T0)}, {v(X)}")
        e(f"v_add_u32 {v(QV+2)}, 32, {v(QV+3)}")
        e(f"v_add_u32 {v(QV+1)}, 32, {v(QV+2)}")
        e(f"v_add_u32 {v(QV)}, 32, {v(QV+1)}")
        e(f"s_mul_i32 {s(S_PRIV)}, {s(S_W)}, {PRIV}")
        e(f"s_add_u32 {s(S_PRIV)}, {s(S_PRIV)}, {R * SLOT}")
        if opt.get("remap", False):
            e(f"s_and_b32 {s(S_T0)}, s2, 7")
            e(f"s_lshl_b32 {s(S_T0)}, {s(S_T0)}, 5")
            e(f"s_lshr_b32 {s(S_T1)}, s2, 3")
            e(f"s_add_u32 s2, {s(S_T0)}, {s(S_T1)}")
        e(f"s_mul_i32 {s(S_T0)}, s2, 98304")
        e(f"s_lshl_b32 {s(S_T1)}, s2, 19")
        e(f"s_mov_b32 {s(S_KSRD+3)}, 0x20000")
        e(f"s_mov_b32 {s(S_KSRD+2)}, {524288 + 32}")
        e(f"s_mov_b32 {s(S_QSRD+3)}, {s(S_KSRD+3)}")
        e(f"s_mov_b32 {s(S_QSRD+2)}, {s(S_KSRD+2)}")
        e(f"s_mov_b32 {s(S_VSRD+3)}, {s(S_KSRD+3)}")
        e(f"s_mov_b32 {s(S_VSRD+2)}, {s(S_KSRD+2)}")
        e(f"s_mov_b32 {s(S_TOFF)}, 0")
        e(f"s_mov_b32 m0, {s(S_WOFF)}")
        e("s_waitcnt lgkmcnt(0)")
        if opt.get("fine"): self.stamp(1)
        e(f"s_add_u32 {s(S_KSRD)}, s34, {s(S_T1)}")
        e(f"s_addc_u32 {s(S_KSRD+1)}, s35, 0")
        e(f"s_sub_u32 {s(S_KSRD)}, {s(S_KSRD)}, 32")
        e(f"s_subb_u32 {s(S_KSRD+1)}, {s(S_KSRD+1)}, 0")
        vm = []
        e(self.dma(0)); e(self.dma(1)); vm += ["K0", "K0"]
        if opt.get("fine"): self.stamp(3)
        e(f"s_add_u32 {s(S_QSRD)}, s32, {s(S_T0)}")
        e(f"s_addc_u32 {s(S_QSRD+1)}, s33, 0")
        e(f"s_sub_u32 {s(S_QSRD)}, {s(S_QSRD)}, 96")
        e(f"s_subb_u32 {s(S_QSRD+1)}, {s(S_QSRD+1)}, 0")
        QPLACE = {0: ('p', 0), 1: ('p', STG), 2: ('r', 5 * SLOT), 3: ('r', 4 * SLOT), 4: ('p', 0), 5: ('p', STG)}
        def qload(t, pad=None):
            kind, off_ = QPLACE[t]
            base = s(S_PRIV if kind == 'p' else S_WOFF)
            e(f"s_add_u32 m0, {base}, {off_}" if off_ else f"s_mov_b32 m0, {base}")
            if t == 0: e(pad or "s_nop 0")
            else: e(f"s_movk_i32 {s(S_T3)}, {t * 4096}")
            for b in range(4):
                off = f" offset:{b * BLK}" if b else ""
                e(f"buffer_load_dwordx4 {v(QV+b)}, {s(S_QSRD,4)}, {s(S_TOFF if t == 0 else S_T3)} offen{off}{self.qfl} lds")
                vm.append(f"Q{t}")
        qload(0, pad=f"s_add_u32 {s(S_VSRD)}, s36, {s(S_T1)}")
        if opt.get("fine"): self.stamp(4)
        e(f"s_addc_u32 {s(S_VSRD+1)}, s37, 0")
        e(f"s_sub_u32 {s(S_VSRD)}, {s(S_VSRD)}, 2144")
        e(f"s_mov_b32 m0, {s(S_WOFF)}")
        e(f"s_subb_u32 {s(S_VSRD+1)}, {s(S_VSRD+1)}, 0")
        e(self.dma(2)); e(self.dma(3)); vm += ["V0", "V0"]
        if opt.get("fine"): self.stamp(5)
        if opt.get("hd", "2") == "2":
            e(f"s_add_u32 m0, {s(S_WOFF)}, {SLOT}")
            e(f"s_movk_i32 {s(S_TOFF)}, 0x2000")
            for i in range(4): e(self.dma(i))
            vm += ["K1", "K1", "V1", "V1"]
        else:
            qload(1)
        self.stamp(2, 0)
        if opt.get("stamp") and not opt.get("fine"): self.stamp(1)
        e(f"s_mov_b32 {s(S_QSRD+2)}, {98304 + 96}")
        e(f"s_mov_b32 {s(S_VSRD+2)}, {524288 + 2144}")
        e(f"s_mov_b32 {s(S_OSRD+2)}, 98304")
        e(f"s_mov_b32 {s(S_OSRD+3)}, {s(S_KSRD+3)}")
        e(f"s_add_u32 {s(S_OSRD)}, s38, {s(S_T0)}")
        e(f"s_addc_u32 {s(S_OSRD+1)}, s39, 0")
        e(f"v_and_b32 {v(V_LANE)}, 63, v0")
        def dma_half(tile, kv):
            e(f"s_mov_b32 {s(S_TOFF)}, {tile * 8192}")
            e(self.m0set(tile % R))
            e("s_nop 0")
            for i in ((0, 1) if kv == 'K' else (2, 3)): e(self.dma(i))
            vm.extend([f"{kv}{tile}"] * 2)
        def wait_for(lbl):
            last = max(i for i, x in enumerate(vm) if x == lbl)
            e(f"s_waitcnt vmcnt({len(vm) - 1 - last})")
        TMPC = NEGM
        QA = NEGM + 8
        two = opt.get("hd", "2") == "2"
        def qread(t):
            land = (O(5, 0) + (16 if t == 5 else 0)) if two else O(t, 0)
            wait_for(f"Q{t}")
            if not opt.get("fs") and not opt.get("fst"): self.stamp(3 + t)
            for ks in range(4):
                kind, off_ = QPLACE[t]
                e(f"ds_read_b128 {v(land + 4 * ks, 4)}, {v(QA if kind == 'p' else QA + 1)} offset:{(off_ if kind == 'p' else off_ - 4 * SLOT) + 256 * ks}")
        def qcvt(t, after_read=None):
            land = (O(5, 0) + (16 if t == 5 else 0)) if two else O(t, 0)
            e("s_waitcnt lgkmcnt(0)")
            if after_read: after_read()
            for i in range(16):
                x = land + i
                lo = TMPC + 2 * (i % 2); hi = lo + 1
                e(f"v_lshlrev_b32 {v(lo)}, 16, {v(x)}")
                e(f"v_and_b32 {v(hi)}, {s(S_T2)}, {v(x)}")
                e(f"v_pk_mul_f32 {v(lo,2)}, {v(lo,2)}, {v(V_T0,2)}")
                e(f"v_cvt_pk_bf16_f32 {v(lo)}, {v(lo)}, {v(hi)}")
                e(f"v_accvgpr_write_b32 {a(AQ(t,0)+i)}, {v(lo)}")
                if not two: e(f"v_mov_b32 {v(x)}, 0")
        def qconv(t, after_read=None):
            qread(t); qcvt(t, after_read)
        e(f"v_lshrrev_b32 {v(V_KADDR)}, 1, {v(V_T2)}")
        e(f"v_mul_u32_u24 {v(V_KADDR)}, {QRT}, {v(V_KADDR)}")
        e(f"v_and_b32 {v(V_VADDR)}, 1, {v(V_T2)}")
        e(f"v_mul_u32_u24 {v(V_VADDR)}, {BLK}, {v(V_VADDR)}")
        e(f"v_add_u32 {v(V_KADDR)}, {v(V_KADDR)}, {v(V_VADDR)}")
        e(f"v_lshl_add_u32 {v(V_KADDR)}, {v(V_T3)}, 6, {v(V_KADDR)}")
        e(f"v_lshl_add_u32 {v(V_KADDR)}, {v(V_T0)}, 4, {v(V_KADDR)}")
        e(f"v_mul_u32_u24 {v(QA)}, {BLK}, {v(V_T2)}")
        e(f"v_lshl_add_u32 {v(QA)}, {v(V_T3)}, 6, {v(QA)}")
        e(f"v_lshl_add_u32 {v(QA)}, {v(V_T0)}, 4, {v(QA)}")
        e(f"v_add_u32 {v(QA+1)}, {s(S_WOFF)}, {v(QA)}")
        e(f"v_add_u32 {v(QA+1)}, {4 * SLOT}, {v(QA+1)}")
        e(f"v_add_u32 {v(QA)}, {s(S_PRIV)}, {v(QA)}")
        e(f"v_lshrrev_b32 {v(V_VADDR)}, 1, {v(V_T0)}")
        e(f"v_mul_u32_u24 {v(V_VADDR)}, {QRT}, {v(V_VADDR)}")
        e(f"v_and_b32 {v(V_T1)}, 1, {v(V_T0)}")
        e(f"v_mul_u32_u24 {v(NEGM+10)}, {BLK}, {v(V_T1)}")
        e(f"v_add_u32 {v(V_VADDR)}, {v(V_VADDR)}, {v(NEGM+10)}")
        e(f"v_lshl_add_u32 {v(V_VADDR)}, {v(V_T2)}, 6, {v(V_VADDR)}")
        e(f"v_lshl_add_u32 {v(V_VADDR)}, {v(V_T3)}, 3, {v(V_VADDR)}")
        e(f"v_add_u32 {v(V_VADDR)}, {2 * BLK}, {v(V_VADDR)}")
        for i in range(6): e(f"v_mov_b32 {v(L0+i)}, 0")
        if opt.get("hd", "2") != "2":
            for i in range(4): e(f"v_mov_b32 {v(PB[1]+i)}, 0")
            for i in range(32): e(f"v_accvgpr_write_b32 {a(AV(1,0)+i)}, 0")
        if opt.get("hd", "2") == "2":
            pass
        else:
            for t in range(6):
                for i in range(16, 32): e(f"v_mov_b32 {v(O(t,0)+i)}, 0")
        self.epi_addr()
        if opt.get("bp", False):
            for i in range(8): e(f"v_mov_b32 {v(NEGM+16+i)}, 0")
        e(f"s_mov_b32 {s(S_T1)}, 0x3e0293ee")
        e(f"v_mov_b32 {v(V_T0)}, {s(S_T1)}")
        e(f"v_mov_b32 {v(V_T1)}, {s(S_T1)}")
        e(f"s_mov_b32 {s(S_T2)}, 0xffff0000")
        hd = opt.get("hd", "2")
        if hd == "2":
            Kf = lambda tile: [self.kread(tile & 1, tile % R, kt, ks) for kt in range(2) for ks in range(4)]
            Vf = lambda tile: [self.vread(tile % 3, tile % R, dt, hh) for dt in range(8) for hh in range(2)]
            def tile_dma(tile): dma_half(tile, 'K'); dma_half(tile, 'V')
            qload(1)
            qconv(0, lambda: qload(2))
            wait_for("V1")
            e("s_barrier")
            for x in Kf(0) + Kf(1): e(x)
            e("s_waitcnt lgkmcnt(8)")
            V0r = Vf(0)
            for i, x in enumerate(self.qkgroup(0, 0, 0)):
                e(x)
                for y in V0r[2 * i: 2 * i + 2]: e(y)
            e("s_waitcnt lgkmcnt(15)")
            qload(3)
            K2 = Kf(2)
            def pdst(n):
                t, j = n >> 1, n & 1
                if t == 5 and j == 0: return PO(0, 2)
                if t % 2 == 0 and j == 1: return PO(1, t // 2)
                return PB[n & 1]
            for n in range(12):
                nq = n + 1
                lds = []; extras = []; sh = {}
                if n % 2 == 0 and n // 2 + 1 <= 5 and n > 0: qread(n // 2 + 1)
                if nq < 12 and nq % 2 == 0:
                    tq = nq >> 1
                    if tq == 1: qread(1)
                    qcvt(tq)
                    e("s_nop 1")
                    if tq == 1: extras = self.capture(lambda: qload(4))
                    if tq == 2: extras = self.capture(lambda: qload(5))
                    if tq == 3: extras = self.capture(lambda: tile_dma(2))
                    if tq == 4: extras = self.capture(lambda: tile_dma(3))
                if n == 0: extras = Vf(1)
                if n == 9:
                    wait_for("K2")
                    e("s_barrier")
                    if not opt.get("fs") and not opt.get("fst"): self.stamp(9)
                    lds = [None, None, K2[0], K2[1]]
                    extras = [f"v_add_u32 {v(V_KHI)}, {3 * SLOT}, {v(V_KADDR)}", f"v_add_u32 {v(V_VHI)}, {3 * SLOT}, {v(V_VADDR)}"]
                    zd = min(self.halfdts(5, True)) if opt.get("seam", True) else 4
                    extras += [f"v_mov_b32 {v(O(5, zd) + i)}, 0" for i in range(16)]
                if n == 10:
                    lds = K2[2:6]
                    sh = {1: [K2[6]], 3: [K2[7]]}
                    extras = self.capture(lambda: tile_dma(4))
                if n == 11:
                    wait_for("V2")
                    e("s_waitcnt lgkmcnt(0)")
                    e("s_barrier")
                    extras = Vf(2)
                Q = self.qkgroup(nq & 1, nq >> 1, nq & 1) if nq < 12 else self.qkgroup(0, 0, 0)
                Vg = None
                m = n - 1
                if m >= 0 and m < 10 and pdst(m) in PB:
                    Vg = self.pvgroup(m >> 1, m & 1, pdst(m), first=(m % 2 == 0))
                self.period_x(Q, (n >> 1, n & 1, pdst(n)), Vg, lds, sh, extras)
            e("s_nop 1")
            for x in self.pvchain(5, self.halfdts(5, False) if opt.get("seam", True) else range(4), 0, PO(0, 2), 1, PB[1], first=True): e(x)
            e(f"s_mov_b32 {s(S_TOFF)}, {5 * 8192}")
            self.stamp(10, 1)
            e(f"s_mov_b32 {s(S_CNT)}, 10")
        else:
            fs = opt.get("fs")
            def fstamp(i):
                if fs and not (opt.get("fine") and i in (3, 4, 5)): self.stamp(i)
            qload(2)
            fstamp(3)
            if hd == "d":
                qconv(0, lambda: (fstamp(4), qload(3), fstamp(5)))
                fstamp(6)
            else:
                qconv(0, lambda: qload(3))
                qload(4)
            wait_for("V0")
            fstamp(7)
            e("s_barrier")
            fstamp(8)
            for kt in range(2):
                for ks in range(4): e(self.kread(0, 0, kt, ks))
            for dt in range(8):
                for hh in range(2): e(self.vread(0, 0, dt, hh))
            if hd != "d":
                qload(5)
                dma_half(1, 'K'); dma_half(1, 'V')
            e("s_waitcnt lgkmcnt(15)")
            for kt in range(2):
                for ks in range(4): e(self.qk(0, 0, kt, ks))
            fstamp(9)
            K1 = [self.kread(1, 1 % R, kt, ks) for kt in range(2) for ks in range(4)]
            V1 = [self.vread(1, 1 % R, dt, hh) for dt in range(8) for hh in range(2)]
            for t in range(6):
                if t + 1 <= 5:
                    def after(t=t):
                        if hd == "d":
                            if t == 0: qload(4)
                            if t == 1: qload(5)
                            if t == 2: dma_half(1, 'K'); dma_half(1, 'V')
                            if t == 3: dma_half(2, 'K'); dma_half(2, 'V')
                        else:
                            if t == 2: dma_half(2, 'K'); dma_half(2, 'V')
                            if t == 3: dma_half(3, 'K'); dma_half(3, 'V')
                    qconv(t + 1, after)
                    e("s_nop 1")
                if t == 0: e("s_waitcnt lgkmcnt(0)")
                if t == 5:
                    wait_for("K1")
                    e("s_barrier")
                    if not opt.get("fs"): self.stamp(9)
                    for x in K1: e(x)
                    e("s_waitcnt lgkmcnt(0)")
                self.period(0, t, [], {}, do_pv=True)
            wait_for("V1")
            e("s_barrier")
            for x in V1: e(x)
            if hd == "d":
                dma_half(3, 'K'); dma_half(3, 'V')
            e(f"s_mov_b32 {s(S_TOFF)}, {(self.D + 1) * 8192}")
            self.stamp(10, 1)
            e(f"s_mov_b32 {s(S_CNT)}, {NT // R}")
            e("s_branch L_it1")
        e(".p2align 6")
        self.lab("L_loop")
        self.inloop = True
        for j in (2, 3, 4, 5, 0, 1): self.iteration(j)
        e("s_cbranch_scc1 L_loop")
        self.inloop = False
        if self.peel:
            self.lab("L_last")
            self.stamp(11, 2)
            self.last_iteration()
        else:
            self.stamp(11, 2)
            red = self.lreduce()
            e("s_nop 1")
            for dt in range(8):
                e(self.pv(63 & 1, 5, dt))
                for x in red[2*dt:2*dt+2]: e(x)
            for x in red[16:]: e(x)
            self.check()
            self.lab("L_norm")
            for t in range(6): e(f"v_rcp_f32 {v(L0+t)}, {v(L0+t)}")
            self.stamp(12, 3)
            self.epilogue()
        self.stamp(13, 4)
        if opt.get("stamp") and opt.get("dbg") is None:
            e("s_waitcnt vmcnt(0)")
            self.stamp(14, 5)
            e(f"s_load_dwordx2 {s(S_WS,2)}, s[0:1], 40")
            e("s_waitcnt lgkmcnt(0)")
            e(f"s_mov_b32 {s(S_WS+2)}, 0x20000000")
            e(f"s_mov_b32 {s(S_WS+3)}, 0x20000")
            e(f"v_mov_b32 {v(V_T0)}, 0")
            for i in range(16): e(f"v_writelane_b32 {v(V_T0)}, {s(S_RST + 2*i)}, {i}")
            for i in range(8): e(f"v_writelane_b32 {v(V_T0)}, {s(S_CST + 2*i)}, {16+i}")
            e(f"s_lshl_b32 {s(S_T0)}, s2, 2")
            e(f"s_add_u32 {s(S_T0)}, {s(S_T0)}, {s(S_W)}")
            e(f"s_lshl_b32 {s(S_T0)}, {s(S_T0)}, 8")
            e(f"v_lshlrev_b32 {v(V_T1)}, 2, {v(V_LANE)}")
            e(f"buffer_store_dword {v(V_T0)}, {v(V_T1)}, {s(S_WS,4)}, {s(S_T0)} offen")
        if opt.get("dbg") is not None:
            e("s_waitcnt vmcnt(0)")
            self.stamp(14, 5)
            e(f"s_load_dwordx2 {s(S_WS,2)}, s[0:1], 32")
            e("s_waitcnt lgkmcnt(0)")
            e(f"s_cmp_lg_u32 s2, {opt['dbg']}")
            e("s_cbranch_scc1 L_end")
            e(f"s_cmp_lg_u32 {s(S_W)}, 0")
            e("s_cbranch_scc1 L_end")
            e(f"s_mov_b32 {s(S_WS+2)}, 256")
            e(f"s_mov_b32 {s(S_WS+3)}, 0x20000")
            e(f"v_mov_b32 {v(V_T0)}, 0")
            for i in range(1, 15):
                e(f"s_sub_u32 {s(S_T0)}, {s(S_RST + 2*i)}, {s(S_RST)}")
                e(f"v_writelane_b32 {v(V_T0)}, {s(S_T0)}, {i - 1}")
            e(f"s_sub_u32 {s(S_T0)}, {s(S_CST + 4)}, {s(S_CST + 2)}")
            e(f"v_writelane_b32 {v(V_T0)}, {s(S_T0)}, 14")
            e(f"s_sub_u32 {s(S_T0)}, {s(S_CST + 10)}, {s(S_CST)}")
            e(f"v_writelane_b32 {v(V_T0)}, {s(S_T0)}, 15")
            e(f"v_lshlrev_b32 {v(V_T1)}, 2, {v(V_LANE)}")
            e(f"buffer_store_dword {v(V_T0)}, {v(V_T1)}, {s(S_WS,4)}, 0 offen")
        for _ in range(opt.get("sleep1", 0)): e("s_sleep 32")
        self.lab("L_end")
        e("s_endpgm")
        if not opt.get("nocheck"): self.fallback()
        self.o.append(f""".section .rodata,"a"
.p2align 6
.amdhsa_kernel {KN}
  .amdhsa_next_free_vgpr 512
  .amdhsa_next_free_sgpr 102
  .amdhsa_accum_offset 256
  .amdhsa_group_segment_fixed_size 0
  .amdhsa_kernarg_size 48
  .amdhsa_user_sgpr_count 2
  .amdhsa_user_sgpr_kernarg_segment_ptr 1
  .amdhsa_system_sgpr_workgroup_id_x 1
.end_amdhsa_kernel""")
        return self.pad_hazards("\n".join(self.o) + "\n")

    def check(self):
        if self.opt.get("nocheck"): return
        e = self.e
        e(f"v_max3_f32 {v(NEGM)}, {v(L0)}, {v(L0+1)}, {v(L0+2)}")
        e(f"v_min3_f32 {v(NEGM+1)}, {v(L0)}, {v(L0+1)}, {v(L0+2)}")
        e(f"v_max3_f32 {v(NEGM)}, {v(NEGM)}, {v(L0+3)}, {v(L0+4)}")
        e(f"v_min3_f32 {v(NEGM+1)}, {v(NEGM+1)}, {v(L0+3)}, {v(L0+4)}")
        e(f"v_max_f32 {v(NEGM)}, {v(NEGM)}, {v(L0+5)}")
        e(f"v_min_f32 {v(NEGM+1)}, {v(NEGM+1)}, {v(L0+5)}")
        e(f"s_mov_b32 {s(S_T1)}, 0x53800000")
        e(f"s_mov_b32 {s(S_T3)}, 0x3d800000")
        e(f"v_cmp_ge_f32 vcc, {s(S_T1)}, {v(NEGM)}")
        e(f"v_cmp_le_f32 {s(S_CMP,2)}, {s(S_T3)}, {v(NEGM+1)}")
        e(f"s_and_b64 vcc, vcc, {s(S_CMP,2)}")
        if self.opt.get("ofin", True) and self.tail2:
            e(f"v_add_f32 {v(FIN)}, {v(FIN)}, {v(FIN+1)}")
            e(f"v_add_f32 {v(FIN+2)}, {v(FIN+2)}, {v(FIN+3)}")
            e(f"v_add_f32 {v(FIN)}, {v(FIN)}, {v(FIN+2)}")
            e(f"v_cmp_o_f32 {s(S_CMP,2)}, {v(FIN)}, {v(FIN)}")
            e(f"s_and_b64 vcc, vcc, {s(S_CMP,2)}")
        e("s_cmp_eq_u64 vcc, -1")
        e("s_cbranch_scc0 L_fallback")

    def epi_addr(self):
        e = self.e
        WA, RA, GA = V_T2, V_T3, V_OST
        e(f"v_and_b32 {v(NEGM+10)}, 15, {v(V_LANE)}")
        e(f"v_lshrrev_b32 {v(NEGM+11)}, 4, {v(V_LANE)}")
        e(f"v_mul_u32_u24 {v(WA)}, 272, {v(NEGM+10)}")
        e(f"v_lshl_add_u32 {v(WA)}, {v(NEGM+11)}, 3, {v(WA)}")
        e(f"v_add_u32 {v(WA)}, {s(S_PRIV)}, {v(WA)}")
        e(f"v_mul_u32_u24 {v(RA)}, 272, {v(NEGM+11)}")
        e(f"v_lshl_add_u32 {v(RA)}, {v(NEGM+10)}, 4, {v(RA)}")
        e(f"v_add_u32 {v(RA)}, {s(S_PRIV)}, {v(RA)}")
        e(f"s_mul_i32 {s(S_T1)}, {s(S_W)}, {96 * 256}")
        e(f"v_lshlrev_b32 {v(GA)}, 4, {v(V_LANE)}")
        e(f"v_add_u32 {v(GA)}, {s(S_T1)}, {v(GA)}")

    def last_iteration(self):
        e = self.e; opt = self.opt
        WA, RA, GA = V_T2, V_T3, V_OST
        RC = NEGM + 6
        def lred(t):
            L, T = L0 + t, NEGM + t
            fold = [f"v_add_f32 {v(L)}, {v(L)}, {v(NEGM+16+2*t)}", f"v_add_f32 {v(L)}, {v(L)}, {v(NEGM+17+2*t)}"] if opt.get("bp", False) and t < 4 else []
            return fold + [f"v_mov_b32 {v(T)}, {v(L)}", f"v_permlane32_swap_b32 {v(L)}, {v(T)}", f"v_add_f32 {v(L)}, {v(L)}, {v(T)}",
                    f"v_mov_b32 {v(T)}, {v(L)}", f"v_permlane16_swap_b32 {v(L)}, {v(T)}", f"v_add_f32 {v(L)}, {v(L)}, {v(T)}",
                    f"v_rcp_f32 {v(RC+t)}, {v(L)}"]
        def norm(t, pk=False):
            x = []
            if pk:
                x += [f"v_mov_b32 {v(V_T0)}, {v(RC+t)}", f"v_mov_b32 {v(V_T1)}, {v(RC+t)}"]
            for dt in range(8):
                o = O(t, dt)
                if pk:
                    x += [f"v_pk_mul_f32 {v(o,2)}, {v(o,2)}, {v(V_T0,2)}", f"v_pk_mul_f32 {v(o+2,2)}, {v(o+2,2)}, {v(V_T0,2)}"]
                else:
                    x += [f"v_mul_f32 {v(o+r)}, {v(o+r)}, {v(RC+t)}" for r in range(4)]
                x += [f"v_cvt_pk_bf16_f32 {v(o)}, {v(o)}, {v(o+1)}", f"v_cvt_pk_bf16_f32 {v(o+1)}, {v(o+2)}, {v(o+3)}",
                      f"ds_write_b64 {v(WA)}, {v(o,2)} offset:{(t & 1) * STG + 32 * dt}"]
            x += [f"ds_read_b128 {v(O(t, 0) + 4 * k, 4)}, {v(RA)} offset:{(t & 1) * STG + k * 4 * 272}" for k in range(4)]
            return x
        def stores(t):
            if opt.get("nostore"): return []
            fl = self.stfl if t < opt.get("wbfrom", 6) else opt.get("wbfl", "")
            return [f"buffer_store_dwordx4 {v(O(t, 0) + 4 * k, 4)}, {v(GA)}, {s(S_OSRD,4)}, {s(S_T0)} offen offset:{1024 * k}{fl}" for k in range(4)]
        def pre(t, n=0): return [f"s_waitcnt lgkmcnt({n})", f"s_mov_b32 {s(S_T0)}, {t * 4096}"]
        _stores = stores
        if opt.get("ofin", True):
            def stores(t):
                x = []
                for k, st in enumerate(_stores(t)):
                    x += [st, f"{M16} {v(FIN,4)}, {v(VZERO,4)}, {v(O(t, 0) + 4 * k, 4)}, {'0' if (t == 0 and k == 0) else v(FIN,4)}"]
                return x
        def weave(main, sts):
            out = []; n = len(main); k = len(sts); j = 0
            for i, x in enumerate(main):
                while j < k and (j * n) // k + 1 <= i:
                    out.append(sts[j]); j += 1
                out.append(x)
            out += sts[j:]
            assert len(out) == n + k
            return out
        pk = opt.get("epipk", False)
        def weave2(main, sts):
            if not main: return list(sts)
            return weave(main, sts)
        if self.tail2:
            self.c("---- last two tiles, q-tile major")
            b = [(0, 62), (1, 62), (0, 63), (1, 63), (2, 62), (2, 63), (3, 62), (3, 63), (4, 62), (4, 63), (5, 62), (5, 63)]
            K63 = [self.kread(1, 63 % R, kt, ks) for kt in range(2) for ks in range(4)]
            V63 = [self.vread(63 % 3, 63 % R, dt, hh) for dt in range(8) for hh in range(2)]
            zq = [f"v_mov_b32 {v(VZERO+i)}, 0" for i in range(4)] if opt.get("ofin", True) else []
            exs = {3: lambda: lred(0), 4: lambda: zq + lred(1) + norm(0, pk),
                   5: lambda: pre(0) + weave2(norm(1, pk), stores(0)), 6: lambda: pre(1) + weave2(lred(2), stores(1)),
                   7: lambda: norm(2, pk), 8: lambda: pre(2) + weave2(lred(3), stores(2)),
                   9: lambda: norm(3, pk), 10: lambda: pre(3) + weave2(lred(4), stores(3)),
                   11: lambda: norm(4, pk)}
            for n in range(12):
                sh = {}; lds = []
                if opt.get("fst") and n in (2, 4, 5, 6, 8, 10): self.stamp({2: 3, 4: 4, 5: 5, 6: 6, 8: 7, 10: 8}[n])
                if n == 0:
                    sh[0] = [f"s_waitcnt vmcnt({4 * (self.D - 2)})", "s_barrier"]
                    lds = K63[0:4]
                    for i, g in enumerate((1, 3, 5, 7)): sh[g] = [K63[4 + i]]
                if n == 1:
                    sh[0] = []
                    e("s_waitcnt lgkmcnt(0)")
                if n in (1, 2):
                    o = 8 * (n - 1)
                    lds = V63[o:o + 4]
                    for i, g in enumerate((1, 3, 5, 7)): sh[g] = [V63[o + 4 + i]]
                if n == 3: sh[0] = ["s_waitcnt lgkmcnt(0)"]
                Q = self.qkgroup(b[n + 1][1] & 1, b[n + 1][0], (n + 1) & 1) if n < 11 else None
                if n == 0:
                    Vg = self.pvchain(5, self.halfdts(185, True) if opt.get("seam", True) else range(4, 8), 60 % 3, PO(0, 2), 61 % 3, PB[1])
                elif n == 1:
                    Vg = self.pvchain(0, range(8), 61 % 3, PO(1, 0), 62 % 3, PB[0])
                else:
                    Vg = self.pvgroup(b[n - 1][0], b[n - 1][1] % 3, PB[(n - 1) & 1])
                    if n in (2, 3): Vg += self.pvgroup(2 * (n - 1), 61 % 3, PO(1, n - 1))
                self.period_x(Q, (b[n][0], n & 1, PB[n & 1]), Vg, lds, sh, exs[n]() if n in exs else None)
            if opt.get("fst"): self.stamp(9)
            ex = pre(4) + weave2(lred(5), stores(4))
            e("s_nop 1")
            n = len(ex)
            for dt in range(8):
                e(self.pvm(5, dt, 63 % 3, PB[1]))
                for x in ex[dt * n // 8:(dt + 1) * n // 8]: e(x)
            self.stamp(12, 3)
            for x in norm(5, pk=True): e(x)
            for x in pre(5) + stores(5): e(x)
            self.check()
            return
        self.c("---- last tile")
        for t in range(6):
            sh = {}
            if t == 1: sh[0] = ["s_waitcnt lgkmcnt(0)"]
            ex = []
            if t >= 1: ex += lred(t - 1)
            if t >= 2: ex += norm(t - 2, pk)
            if t >= 3: ex = pre(t - 3) + weave(ex, stores(t - 3))
            self.period(63, t, [], sh, do_qk=(t < 5), extras=ex)
        ex = pre(3) + weave(lred(5) + norm(4, pk), stores(3))
        e("s_nop 1")
        n = len(ex)
        for dt in range(8):
            e(self.pv(63 & 1, 5, dt))
            for x in ex[dt * n // 8:(dt + 1) * n // 8]: e(x)
        self.check()
        self.stamp(12, 3)
        nx = norm(5, pk=True)
        for x in pre(4) + weave(nx[:-4], stores(4)) + nx[-4:]: e(x)
        for x in pre(5) + stores(5): e(x)

    def epilogue(self):
        e = self.e; opt = self.opt
        WA, RA, GA = V_T2, V_T3, V_OST
        PK = [SB[0], NEGM]
        RD = [160 - 160 + 0, 0]
        e(f"s_mul_i32 {s(S_T1)}, {s(S_W)}, {PRIV}")
        e(f"s_add_u32 {s(S_T1)}, {s(S_T1)}, {R * SLOT}")
        e(f"v_and_b32 {v(V_T0)}, 15, {v(V_LANE)}")
        e(f"v_lshrrev_b32 {v(V_T1)}, 4, {v(V_LANE)}")
        e(f"v_mul_u32_u24 {v(WA)}, 272, {v(V_T0)}")
        e(f"v_lshl_add_u32 {v(WA)}, {v(V_T1)}, 3, {v(WA)}")
        e(f"v_add_u32 {v(WA)}, {s(S_T1)}, {v(WA)}")
        e(f"v_mul_u32_u24 {v(RA)}, 272, {v(V_T1)}")
        e(f"v_lshl_add_u32 {v(RA)}, {v(V_T0)}, 4, {v(RA)}")
        e(f"v_add_u32 {v(RA)}, {s(S_T1)}, {v(RA)}")
        e(f"s_mul_i32 {s(S_T1)}, {s(S_W)}, {96 * 256}")
        e(f"v_lshlrev_b32 {v(GA)}, 4, {v(V_LANE)}")
        e(f"v_add_u32 {v(GA)}, {s(S_T1)}, {v(GA)}")
        def pack(t):
            L = L0 + t
            e(f"v_mov_b32 {v(V_T0)}, {v(L)}")
            e(f"v_mov_b32 {v(V_T1)}, {v(L)}")
            for dt in range(8):
                o = O(t, dt)
                e(f"v_pk_mul_f32 {v(o,2)}, {v(o,2)}, {v(V_T0,2)}")
                e(f"v_pk_mul_f32 {v(o+2,2)}, {v(o+2,2)}, {v(V_T0,2)}")
            for dt in range(8):
                o = O(t, dt)
                e(f"v_cvt_pk_bf16_f32 {v(o)}, {v(o)}, {v(o+1)}")
                e(f"v_cvt_pk_bf16_f32 {v(o+1)}, {v(o+2)}, {v(o+3)}")
                e(f"ds_write_b64 {v(WA)}, {v(o,2)} offset:{(t & 1) * STG + 32 * dt}")
        def unload(t):
            for k in range(4):
                e(f"ds_read_b128 {v(O(t, 0) + 4 * k, 4)}, {v(RA)} offset:{(t & 1) * STG + k * 4 * 272}")
        def store(t):
            e(f"s_mov_b32 {s(S_T0)}, {t * 4096}")
            for k in range(4):
                if not opt.get("nostore"):
                    e(f"buffer_store_dwordx4 {v(O(t, 0) + 4 * k, 4)}, {v(GA)}, {s(S_OSRD,4)}, {s(S_T0)} offen offset:{1024 * k}{self.stfl}")
        pack(0); unload(0)
        for t in range(1, 6):
            pack(t)
            e("s_waitcnt lgkmcnt(8)")
            store(t - 1)
            unload(t)
        e("s_waitcnt lgkmcnt(0)")
        store(5)

    def pad_hazards(self, text):
        import hazchk
        lines = text.split("\n")
        out = []; hist = []; code = False
        for raw in lines:
            line = raw.split(';')[0].strip()
            if line.endswith('_kernel:'): code = True
            if line.startswith('.section'): code = False
            if not code or not line or line.startswith('.') or line.endswith(':'):
                out.append(raw); continue
            b = hazchk.I(line, 0)
            need_pad = hazchk.required_pad(hist, b)
            if need_pad:
                out.append(f"    s_nop {need_pad - 1}")
                hist.append(hazchk.I(f"s_nop {need_pad - 1}", 0))
            out.append(raw); hist.append(b)
            hist = hist[-40:]
        return "\n".join(out)

    def fallback(self):
        e = self.e
        FA, FB, FK, FV = V_T0, V_T1, V_T2, V_T3
        MX = L0
        self.lab("L_fallback")
        e("s_waitcnt vmcnt(0) lgkmcnt(0)")
        e("s_barrier")
        e(f"s_lshl_b32 {s(S_T0)}, {s(S_W)}, 11")
        e(f"v_subrev_u32 {v(FA)}, {s(S_T0)}, {v(V_OFFA)}")
        e(f"v_subrev_u32 {v(FB)}, {s(S_T0)}, {v(V_OFFB)}")
        e(f"s_mul_i32 {s(S_WOFF)}, {s(S_W)}, {SLOT}")
        e(f"v_add_u32 {v(FK)}, {s(S_WOFF)}, {v(V_KADDR)}")
        e(f"v_add_u32 {v(FV)}, {s(S_WOFF)}, {v(V_VADDR)}")
        def load_tile(with_v):
            for q in range(4):
                e(f"s_add_u32 m0, {s(S_WOFF)}, {q * QRT}")
                e(f"s_add_u32 {s(S_TOFF)}, {s(S_T1)}, {q * 2048}")
                for i in range(4 if with_v else 2): e(self.dma(i, FA, FB))
            e("s_waitcnt vmcnt(0)")
            for kt in range(2):
                for ks in range(4): e(self.kread(0, 0, kt, ks, FK))
            if with_v:
                for dt in range(8):
                    for hh in range(2): e(self.vread(0, 0, dt, hh, FV))
            e("s_waitcnt lgkmcnt(0)")
        for t in range(6): e(f"v_mov_b32 {v(MX+t)}, 0xff800000")
        e(f"s_mov_b32 {s(S_T1)}, 0")
        self.lab("L_fb1")
        load_tile(False)
        for t in range(6):
            for kt in range(2):
                for ks in range(4): e(self.qk(0, t, kt, ks))
            e("s_nop 7")
            e("s_nop 1")
            S = SB[t & 1]
            for i in range(0, 8, 2): e(f"v_max3_f32 {v(MX+t)}, {v(MX+t)}, {v(S+i)}, {v(S+i+1)}")
        e(f"s_add_u32 {s(S_T1)}, {s(S_T1)}, 8192")
        e(f"s_cmp_lt_u32 {s(S_T1)}, {NT * 8192}")
        e("s_cbranch_scc1 L_fb1")
        for x in self.lreduce("v_max_f32"):
            e(x); e("s_nop 1")
        for t in range(6):
            for r in range(4): e(f"v_sub_f32 {v(NEGM + 4*t + r)}, 0, {v(MX+t)}")
        for t in range(6): e(f"v_mov_b32 {v(L0+t)}, 0")
        for i in range(192): e(f"v_mov_b32 {v(i)}, 0")
        e(f"s_mov_b32 {s(S_T1)}, 0")
        self.lab("L_fb2")
        load_tile(True)
        for t in range(6):
            for kt in range(2):
                for ks in range(4): e(self.qk(0, t, kt, ks, v(NEGM + 4*t, 4)))
            e("s_nop 7")
            e("s_nop 1")
            S = SB[t & 1]; P = PB[t & 1]
            for i in range(8): e(f"v_exp_f32 {v(S+i)}, {v(S+i)}")
            e("s_nop 0")
            for i in range(8): e(f"v_add_f32 {v(L0+t)}, {v(L0+t)}, {v(S+i)}")
            for i in range(4): e(f"v_cvt_pk_bf16_f32 {v(P+i)}, {v(S+2*i)}, {v(S+2*i+1)}")
            e("s_nop 1")
            for dt in range(8): e(self.pv(0, t, dt))
        e(f"s_add_u32 {s(S_T1)}, {s(S_T1)}, 8192")
        e(f"s_cmp_lt_u32 {s(S_T1)}, {NT * 8192}")
        e("s_cbranch_scc1 L_fb2")
        for x in self.lreduce():
            e(x); e("s_nop 1")
        e("s_nop 7")
        if self.peel:
            for t in range(6): e(f"v_rcp_f32 {v(L0+t)}, {v(L0+t)}")
            self.epilogue()
            e("s_endpgm")
        else:
            e("s_branch L_norm")

if __name__ == "__main__":
    opt = {}
    out = sys.argv[1]
    for x in sys.argv[2:]:
        k, _, val = x.partition("=")
        opt[k] = eval(val) if val else True
    open(out, "w").write(Gen(opt).build())
```
